```python
import torch

def _softmax(x, axis=-1):
    return torch.softmax(x, dim=axis)
def _gelu(x):
    return torch.nn.functional.gelu(x, approximate="tanh")
def _silu(x):
    return torch.nn.functional.silu(x)
def _sigmoid(x):
    return torch.sigmoid(x)
def _layernorm(x, axis=-1, eps=1e-5):
    m = x.mean(dim=axis, keepdim=True)
    v = x.var(dim=axis, keepdim=True, unbiased=False)
    return (x - m) / torch.sqrt(v + eps)
def _scatter_add(tgt, idx, src, axis=0):
    return tgt.clone().index_add_(axis, idx, src)
def _segment_sum(src, seg, n):
    out = torch.zeros((n,) + src.shape[1:], dtype=src.dtype)
    return out.index_add_(0, seg, src)
def _pad(x, pw):
    flat = tuple(v for pair in reversed(pw) for v in pair)
    return torch.nn.functional.pad(x, flat)

kernel_name = 'recurrent_scan__spectral_gfnet__glu_gated_geglu__prompt'

def setup_inputs():

    _w = (lambda a: (lambda t: t.to(torch.bfloat16) if t.is_floating_point() else t)(torch.as_tensor(a)))
    def _A_setup():
        B, S, D = 1, 2048, 512
        Df = D // 2 + 1
        return {
            "x": _w((lambda *s: torch.randn(*s, dtype=torch.bfloat16) * 0.2)(B, S, D)),
            "w_r": _w((lambda *s: torch.randn(*s, dtype=torch.bfloat16) * 1.6)(S, Df) * 0.02),
            "w_i": _w((lambda *s: torch.randn(*s, dtype=torch.bfloat16) * 1.6)(S, Df) * 0.02),
        }
    _A_in = _A_setup()

    def _B_setup():
        B, S, Dm, Df = 1, 2048, 512, 1792
        return {
            "x": _w((lambda *s: torch.randn(*s, dtype=torch.bfloat16) * 0.2)(B, S, Dm)),
            "w_gate": _w((lambda *s: torch.randn(*s, dtype=torch.bfloat16) * 0.8)(Dm, Df) * (Dm ** -0.5)),
            "w_up": _w((lambda *s: torch.randn(*s, dtype=torch.bfloat16) * 0.8)(Dm, Df) * (Dm ** -0.5)),
            "w_down": _w((lambda *s: torch.randn(*s, dtype=torch.bfloat16) * 0.8)(Df, Dm) * (Df ** -0.5)),
        }
    _B_in = _B_setup()

    return {
        "A_x": _A_in["x"],
        "A_w_r": _A_in["w_r"],
        "A_w_i": _A_in["w_i"],
        "B_x": _B_in["x"],
        "B_w_gate": _B_in["w_gate"],
        "B_w_up": _B_in["w_up"],
        "B_w_down": _B_in["w_down"],
    }

def reference(A_x, A_w_r, A_w_i, B_x, B_w_gate, B_w_up, B_w_down):
    def _A_ref(x, w_r, w_i):
        B, S, D = x.shape
        X = (lambda x, axes=(-2,-1): torch.fft.rfft2(x.float(), dim=axes))(x, axes=(-2, -1))
        W = w_r + 1j * w_i
        X = X * W
        y = (lambda x, s, axes=(-2,-1): torch.fft.irfft2(x, s=s, dim=axes).to(torch.bfloat16))(X, (S, D), axes=(-2, -1))
        return y

    def _B_ref(x, w_gate, w_up, w_down):
        g = torch.einsum("bsd,df->bsf", x, w_gate)
        u = torch.einsum("bsd,df->bsf", x, w_up)
        h = _gelu(g) * u
        return torch.einsum("bsf,fd->bsd", h, w_down)

    x = A_x
    xn = _layernorm(x, axis=-1)
    s = _A_ref(xn, A_w_r, A_w_i)
    g = _silu(_B_ref(xn, B_w_gate, B_w_up, B_w_down))
    return x + s * g
```

```python
import re

REG_RE = re.compile(r'(?<![\w.])([vas])(?:(\d+)|\[(\d+):(\d+)\])(?![\w])')
TRANS = ('v_exp_f32', 'v_log_f32', 'v_rcp_f32', 'v_rsq_f32', 'v_sqrt_f32', 'v_sin_f32', 'v_cos_f32')


def v(i, n=1):
    return f"v{i}" if n == 1 else f"v[{i}:{i+n-1}]"


def a(i, n=1):
    return f"a{i}" if n == 1 else f"a[{i}:{i+n-1}]"


def s(i, n=1):
    return f"s{i}" if n == 1 else f"s[{i}:{i+n-1}]"


def regs_of(op):
    op = op.strip()
    out = []
    if op in ('vcc', 'vcc_lo', 'vcc_hi'):
        return [('s', 'vcc')]
    if op in ('exec', 'exec_lo', 'exec_hi'):
        return [('s', 'exec')]
    if op == 'm0':
        return [('s', 'm0')]
    for m in REG_RE.finditer(op):
        k = m.group(1)
        if m.group(2) is not None:
            out.append((k, int(m.group(2))))
        else:
            out += [(k, i) for i in range(int(m.group(3)), int(m.group(4)) + 1)]
    return out


class I:
    __slots__ = ('text', 'op', 'kind', 'dst', 'src', 'srcc', 'tag', 'passes', 'cost', 'wide_store', 'dpp', 'meta')

    def __init__(self, text, tag=None):
        self.text = text.strip()
        self.tag = tag
        self.meta = None
        t = self.text.split(';')[0].strip()
        parts = t.split(None, 1)
        self.op = op = parts[0]
        rest = parts[1] if len(parts) > 1 else ''
        ops, depth, cur = [], 0, ''
        for ch in rest:
            if ch in '[(':
                depth += 1
            if ch in '])':
                depth -= 1
            if ch == ',' and depth == 0:
                ops.append(cur)
                cur = ''
            else:
                cur += ch
        if cur.strip():
            ops.append(cur)
        R = []
        for o in ops:
            o = o.strip()
            first = o.split()[0] if o else ''
            R.append(regs_of(first))
        self.dst, self.src, self.srcc = [], [], []
        self.passes = 0
        self.wide_store = False
        self.dpp = ('dpp' in op) or (' row_' in t) or (' quad_perm' in t)
        flat = lambda L: [x for l in L for x in l]
        if op.startswith('v_mfma'):
            self.kind = 'mfma'
            self.dst = R[0]
            self.src = R[1] + R[2] + R[3]
            self.srcc = R[3]
            self.passes = 8 if '32x32' in op else 4
            self.cost = 8
        elif op.startswith('v_'):
            self.kind = 'trans' if any(op.startswith(x) for x in TRANS) else 'valu'
            self.cost = 8 if self.kind == 'trans' else 4
            if op.startswith('v_cmp'):
                self.dst = R[0]
                self.src = flat(R[1:])
            elif 'permlane' in op and 'swap' in op:
                self.dst = R[0] + R[1]
                self.src = R[0] + R[1]
            elif op.startswith(('v_add_co', 'v_sub_co', 'v_addc_co', 'v_subb_co')):
                self.dst = R[0] + R[1]
                self.src = flat(R[2:])
            elif op == 'v_nop':
                pass
            else:
                self.dst = R[0]
                self.src = flat(R[1:])
                if op.startswith(('v_fmac', 'v_dot2c', 'v_pk_fmac', 'v_writelane')) or self.dpp or 'sdwa' in op:
                    self.src = self.src + R[0]
                if op.startswith('v_cndmask') and len(R) == 3:
                    self.src = self.src + [('s', 'vcc')]
        elif op.startswith('ds_'):
            self.kind = 'ds'
            self.cost = 4
            if op.startswith(('ds_read', 'ds_bpermute', 'ds_permute', 'ds_swizzle')):
                self.dst = R[0]
                self.src = flat(R[1:])
            else:
                self.src = flat(R)
        elif op.startswith(('buffer_', 'global_')):
            self.kind = 'vmem'
            self.cost = 4
            islds = bool(re.search(r'\blds\b', t)) or '_lds_' in op
            if op.startswith(('buffer_wbl2', 'buffer_inv')):
                pass
            elif 'load' in op and not islds:
                self.dst = R[0]
                self.src = flat(R[1:])
            elif 'atomic' in op and re.search(r'\bsc0\b', t):
                self.dst = R[0]
                self.src = flat(R)
            else:
                self.src = flat(R)
                if islds:
                    self.src = self.src + [('s', 'm0')]
                    self.meta = 'dma'
                if 'store' in op and ('x4' in op or 'x3' in op):
                    self.wide_store = True
                    self.meta = R[0] if op.startswith('buffer_') else R[1]
        elif op.startswith(('s_load', 's_memtime', 's_memrealtime', 's_buffer_load')):
            self.kind = 'smem'
            self.cost = 4
            self.dst = R[0]
            self.src = flat(R[1:])
        elif op.startswith('s_'):
            self.kind = 'salu'
            self.cost = 4
            if op.startswith(('s_cmp', 's_waitcnt', 's_barrier', 's_nop', 's_branch', 's_cbranch', 's_endpgm',
                              's_setprio', 's_sleep', 's_bitcmp')):
                self.src = flat(R)
            else:
                self.dst = R[0] if R else []
                self.src = flat(R[1:])
                if 'saveexec' in op:
                    self.dst = self.dst + [('s', 'exec')]
        else:
            raise ValueError("unknown instr: " + text)


class Marker:
    def __init__(self, kind, arg=None):
        self.kind = kind
        self.arg = arg
        self.cost = 0


class Prog:
    def __init__(self):
        self.items = []

    def __call__(self, text, tag=None):
        for l in text.split('\n'):
            l = l.strip()
            if not l:
                continue
            if l.endswith(':'):
                self.items.append(Marker('label', l))
            elif l.startswith(';') or l.startswith('.'):
                self.items.append(Marker('raw', l))
            else:
                self.items.append(I(l, tag))
        return self

    def wait_vm(self, tag):
        self.items.append(Marker('wait_vm', tag))

    def wait_all_vm(self):
        self.items.append(Marker('wait_vm', None))

    def wait_lgkm(self):
        self.items.append(Marker('wait_lgkm', None))

    def add(self, items):
        self.items += items.items if isinstance(items, Prog) else items

    def sync_point(self):
        self.items.append(Marker('sync'))


def finalize(items, verbose=False):
    out = []
    vmq = []
    lgq = []
    hist = []
    pos = 0

    def emit_raw(t, states=1):
        nonlocal pos
        out.append('    ' + t)
        pos += states

    def do_wait(vm=None, lg=None):
        parts = []
        if vm is not None and vm < len(vmq):
            n = vm
            if n <= 63:
                parts.append(f"vmcnt({n})")
            del vmq[:len(vmq) - n]
        if lg is not None and lg < len(lgq):
            n = lg
            if any(k == 'smem' for k, _ in lgq):
                n = 0
            if n <= 15:
                parts.append(f"lgkmcnt({n})")
            del lgq[:len(lgq) - n]
        if parts:
            emit_raw("s_waitcnt " + " ".join(parts))

    def need(ins):
        req = 0
        S, D = set(ins.src), set(ins.dst)
        isvalu = ins.kind in ('valu', 'trans')
        for p, ppos in hist:
            dist = pos - ppos - 1
            pd = set(p.dst)
            w = 0
            if p.kind in ('valu', 'trans'):
                pv = {r for r in pd if r[0] in 'va'}
                ps = {r for r in pd if r[0] == 's'}
                if ins.kind == 'mfma' and pv & S:
                    w = max(w, 2)
                if ins.kind == 'mfma' and ('s', 'exec') in ps:
                    w = max(w, 4)
                if p.kind == 'trans' and ins.kind == 'valu' and pv & S:
                    w = max(w, 1)
                if ins.kind == 'vmem' and ps & S:
                    w = max(w, 5)
                if isvalu and ps & S:
                    w = max(w, 4 if ins.op.startswith(('v_readlane', 'v_writelane')) else 2)
                if ins.kind == 'salu' and ps & S:
                    w = max(w, 1)
                if ins.op.startswith(('v_readfirstlane', 'v_readlane')) and pv & S:
                    w = max(w, 1)
                if 'permlane' in ins.op and pv & S:
                    w = max(w, 2)
                if isvalu and ins.dpp and pv & S:
                    w = max(w, 2)
                if isvalu and ('sdwa' in p.op or 'op_sel' in p.text) and pv & (S | D) and not p.op.startswith('v_pk'):
                    w = max(w, 1)
            elif p.kind == 'mfma':
                big = p.passes == 8
                if ins.kind == 'mfma':
                    C = set(ins.srcc)
                    AB = S - C if not (set(ins.src[:len(ins.src) - len(ins.srcc)]) & C) else S
                    AB = set(ins.src[:len(ins.src) - len(ins.srcc)])
                    if pd & AB:
                        w = max(w, 12 if big else 8)
                    if pd & C and not (list(ins.srcc) == list(p.dst) and ins.passes == p.passes):
                        w = max(w, 10 if big else 6)
                    if pd & D and not (pd & C):
                        w = max(w, 10 if big else 6)
                elif ins.kind in ('valu', 'trans', 'vmem', 'ds'):
                    if pd & (S | D):
                        w = max(w, 12 if big else 8)
                    if isvalu and set(p.srcc) & D:
                        w = max(w, 7 if big else 3)
            elif p.kind == 'salu':
                if ('s', 'm0') in pd and ('s', 'm0') in S and ins.kind in ('vmem', 'ds'):
                    w = max(w, 1)
            elif p.kind == 'vmem' and p.wide_store:
                if set(p.meta) & D:
                    w = max(w, 2)
            req = max(req, w - dist)
        return req

    for it in items:
        if isinstance(it, Marker):
            if it.kind == 'label':
                out.append(it.arg)
            elif it.kind == 'raw':
                out.append(it.arg)
            elif it.kind == 'wait_vm':
                if it.arg is None:
                    do_wait(vm=0)
                else:
                    idx = [i for i, (t, _) in enumerate(vmq) if t == it.arg]
                    if idx:
                        do_wait(vm=len(vmq) - 1 - idx[-1])
            elif it.kind == 'wait_lgkm':
                do_wait(lg=0)
            elif it.kind == 'sync':
                do_wait(vm=0, lg=0)
                pend = 0
                for p, ppos in hist:
                    w = 12 if p.kind == 'mfma' else (5 if p.kind in ('valu', 'trans') else 2)
                    pend = max(pend, w - (pos - ppos - 1))
                while pend > 0:
                    n = min(pend, 16)
                    emit_raw(f"s_nop {n-1}", n)
                    pend -= n
                hist.clear()
            continue
        ins = it
        touched = set(ins.src) | set(ins.dst)
        vm = lg = None
        for i, (t, d) in enumerate(vmq):
            if d & touched:
                vm = len(vmq) - 1 - i
        for i, (k, d) in enumerate(lgq):
            if d & touched:
                lg = len(lgq) - 1 - i
        if vm is not None or lg is not None:
            do_wait(vm, lg)
        n = need(ins)
        while n > 0:
            k = min(n, 16)
            emit_raw(f"s_nop {k-1}", k)
            n -= k
        if ins.op == 's_waitcnt':
            m = re.search(r'vmcnt\((\d+)\)', ins.text)
            if m and int(m.group(1)) < len(vmq):
                del vmq[:len(vmq) - int(m.group(1))]
            m = re.search(r'lgkmcnt\((\d+)\)', ins.text)
            if m and int(m.group(1)) < len(lgq):
                del lgq[:len(lgq) - int(m.group(1))]
        out.append('    ' + ins.text)
        hist.append((ins, pos))
        if ins.op == 's_nop':
            pos += int(ins.text.split()[1]) + 1
        else:
            pos += 1
        hist[:] = [(p, q) for p, q in hist if pos - q <= 20]
        if ins.kind == 'vmem':
            vmq.append((ins.tag, set(ins.dst)))
        elif ins.kind == 'ds':
            lgq.append(('ds', set(ins.dst)))
        elif ins.kind == 'smem':
            lgq.append(('smem', set(ins.dst)))
    return out


def interleave(main, fill, budget=24, start=0):
    out = []
    fi = 0
    gap = None
    nm = 0
    for it in main:
        if isinstance(it, I) and it.kind == 'mfma':
            if gap is not None and nm > start:
                while fi < len(fill) and gap + fill[fi].cost <= budget:
                    gap += fill[fi].cost
                    out.append(fill[fi])
                    fi += 1
            gap = 0
            nm += 1
            out.append(it)
        else:
            out.append(it)
            if gap is not None:
                gap += it.cost
    if gap is not None:
        while fi < len(fill) and gap + fill[fi].cost <= budget:
            gap += fill[fi].cost
            out.append(fill[fi])
            fi += 1
    return out, fill[fi:]
```

```python
import sys, math, struct
import numpy as np
sys.path.insert(0, 'tools')
from emit import *

XN_OFF = 0x000000
Y1_OFF = 0x200000
WT_OFF = 0x400000
H_OFF = 0x600000
V_OFF = 0xD00000
ST_OFF = 0x1000000
WS_USED = 0x1100000

OPT = dict(stamps=False, st1='', st2h='', st2v='', st3='', passes=((0, 1, 2, 3), (4, 5), (6, 7)),
           fft_interleave=True, epi_interleave=True, prefetch=True)


def fbits(x):
    return struct.unpack('<I', struct.pack('<f', x))[0]


def hexf(x):
    return f"0x{fbits(x):08x}"


def srd(p, d, base, nbytes):
    p(f"s_mov_b32 s{d}, s{base}")
    p(f"s_mov_b32 s{d+1}, s{base+1}")
    p(f"s_mov_b32 s{d+2}, {nbytes}")
    p(f"s_mov_b32 s{d+3}, 0x00020000")


def stamp_begin(p):
    if OPT['stamps']:
        p("s_memrealtime s[90:91]")
        p.wait_lgkm()


def stamp_end(p, kidx, ws_srd, vtmp):
    if OPT['stamps']:
        p.wait_all_vm()
        p("s_memrealtime s[92:93]")
        p.wait_lgkm()
        p(f"v_mov_b32 v{vtmp}, s90")
        p(f"v_mov_b32 v{vtmp+1}, s92")
        p(f"v_lshrrev_b32 v{vtmp+2}, 6, v0")
        p(f"v_lshlrev_b32 v{vtmp+2}, 3, v{vtmp+2}")
        p(f"s_lshl_b32 s94, s2, 6")
        p(f"s_add_u32 s94, s94, {ST_OFF + kidx * 0x8000}")
        p(f"v_and_b32 v{vtmp+3}, 63, v0")
        p(f"v_cmp_eq_u32 vcc, 0, v{vtmp+3}")
        p("s_and_saveexec_b64 s[96:97], vcc")
        p(f"buffer_store_dwordx2 v[{vtmp}:{vtmp+1}], v{vtmp+2}, s[{ws_srd}:{ws_srd+3}], s94 offen")
        p("s_mov_b64 exec, s[96:97]")


def gen_k1():
    p = Prog()
    p("s_cmp_ge_u32 s2, 256")
    p("s_cbranch_scc1 K1_END")
    stamp_begin(p)
    p("s_load_dwordx2 s[4:5], s[0:1], 0")
    p("s_load_dwordx4 s[8:11], s[0:1], 8")
    p("s_load_dwordx4 s[12:15], s[0:1], 32")
    p("s_load_dwordx2 s[6:7], s[0:1], 72")
    p("s_and_b32 s16, s2, 7")
    p("s_lshr_b32 s17, s2, 3")
    p("v_lshrrev_b32 v1, 6, v0")
    p("v_readfirstlane_b32 s18, v1")
    p.wait_lgkm()
    srd(p, 24, 6, WS_USED)
    p("s_cmp_ge_u32 s18, 4")
    p("s_cbranch_scc1 K1_AUX")
    srd(p, 20, 4, 2097152)
    p("s_lshr_b32 s19, s17, 2")
    p("s_lshl_b32 s28, s16, 3")
    p("s_add_u32 s28, s28, s19")
    p("s_and_b32 s29, s17, 3")
    p("s_lshl_b32 s30, s28, 10")
    p("v_lshrrev_b32 v2, 3, v0")
    p("v_and_b32 v3, 7, v0")
    p("v_lshlrev_b32 v4, 16, v2")
    p("v_lshl_add_u32 v4, v3, 4, v4")
    X = 16
    for i in range(8):
        p(f"buffer_load_dwordx4 {v(X+4*i,4)}, v4, s[20:23], s30 offen offset:{i*128}")
    F = 48
    S0, S1 = 176, 184
    p("v_and_b32 v5, 31, v0")
    p("v_bfe_u32 v6, v0, 5, 1")
    p("v_and_b32 v7, 1, v0")
    p("v_and_b32 v8, 30, v5")
    p("s_lshr_b32 s31, s29, 1")
    p("s_lshl_b32 s31, s31, 2")
    p("s_add_u32 s31, s31, s18")
    p("s_lshl_b32 s31, s31, 5")
    p("s_and_b32 s32, s29, 1")
    p("s_add_u32 s31, s31, s32")
    p("v_add_u32 v8, s31, v8")
    p("v_or_b32 v9, v8, v7")
    p("v_cmp_eq_u32 vcc, 0, v9")
    p("v_mov_b32 v10, 0x100")
    p("v_cndmask_b32 v10, v8, v10, vcc")
    p("v_cvt_f32_u32 v10, v10")
    p(f"v_mul_f32 v10, {hexf(1/512)}, v10")
    p("v_cvt_f32_u32 v11, v7")
    p(f"v_mul_f32 v11, {hexf(-0.25)}, v11")
    p(f"v_add_f32 v11, {hexf(0.25)}, v11")
    p("v_cvt_f32_u32 v12, v6")
    p(f"v_mul_f32 v12, {hexf(8.0)}, v12")
    p("v_fma_f32 v11, -v12, v10, v11")
    p(f"v_mul_f32 v13, {hexf(16.0)}, v10")
    p(f"v_sub_f32 v14, {hexf(0.25)}, v13")
    p("v_sin_f32 v14, v14")
    for i in range(8):
        if i == 0:
            p(f"v_mov_b32 v{S0}, v11")
        else:
            p(f"v_sub_f32 v{S0+i}, v{S0+i-1}, v10")
    for i in range(8):
        p(f"v_sub_f32 v{S1+i}, v{S0+i}, v13")
    p("v_add_f32 v14, v14, v14")
    for i in range(8):
        p(f"v_sin_f32 v{S0+i}, v{S0+i}")
    for i in range(8):
        p(f"v_sin_f32 v{S1+i}, v{S1+i}")
    for t in range(16):
        cur = S0 if t % 2 == 0 else S1
        oth = S1 if t % 2 == 0 else S0
        if t >= 2:
            for i in range(8):
                p(f"v_fma_f32 v{cur+i}, v14, v{oth+i}, -v{cur+i}")
        for i in range(4):
            p(f"v_cvt_pk_bf16_f32 v{F+4*t+i}, v{cur+2*i}, v{cur+2*i+1}")
    p("v_lshrrev_b32 v9, 1, v3")
    p("v_lshlrev_b32 v9, 10, v9")
    p("v_and_b32 v12, 1, v3")
    p("v_lshl_add_u32 v9, v12, 9, v9")
    p("v_xor_b32 v12, v2, v3")
    p("v_lshl_add_u32 v12, v12, 4, v9")
    p("v_lshl_add_u32 v9, v2, 4, v9")
    RA = 192
    for tt in range(4):
        p(f"v_or_b32 v{RA+tt}, {2*tt}, v6")
        p(f"v_xor_b32 v{RA+tt}, v{RA+tt}, v5")
        p(f"v_lshlrev_b32 v{RA+tt}, 4, v{RA+tt}")
        p(f"v_lshl_add_u32 v{RA+tt}, v6, 9, v{RA+tt}")
    p("v_lshl_add_u32 v8, v8, 1, v7")
    p("v_lshlrev_b32 v8, 12, v8")
    p("v_lshl_add_u32 v8, v6, 5, v8")
    p("s_lshl_b32 s33, s28, 6")
    p(f"s_add_u32 s33, s33, {Y1_OFF}")
    p("s_lshl_b32 s34, s28, 15")
    p("s_lshl_b32 s35, s29, 13")
    p("s_add_u32 s34, s34, s35")
    if XN_OFF:
        p(f"s_add_u32 s34, s34, {XN_OFF}")
    p("s_add_u32 s35, s34, 4096")
    p("s_cmp_eq_u32 s32, 0")
    p(f"s_cselect_b32 s36, {hexf(1.0)}, {hexf(-1.0)}")
    p("s_mov_b32 s37, s36")
    p(f"s_cselect_b32 s38, {hexf(2.0)}, 0")
    U = 112
    A4 = 176
    for k in range(32):
        p(f"v_lshlrev_b32 v{U+2*k}, 16, v{X+k}")
        p(f"v_and_b32 v{U+2*k+1}, 0xffff0000, v{X+k}")
        if k >= 4 and k < 8:
            p(f"v_pk_add_f32 {v(A4+2*(k-4),2)}, {v(U+2*(k-4),2)}, {v(U+2*k,2)}")
        elif k >= 8:
            p(f"v_pk_add_f32 {v(A4+2*(k%4),2)}, {v(A4+2*(k%4),2)}, {v(U+2*k,2)}")

    def reduce_(dst):
        p(f"v_pk_add_f32 {v(A4,2)}, {v(A4,2)}, {v(A4+2,2)}")
        p(f"v_pk_add_f32 {v(A4+4,2)}, {v(A4+4,2)}, {v(A4+6,2)}")
        p(f"v_pk_add_f32 {v(A4,2)}, {v(A4,2)}, {v(A4+4,2)}")
        p(f"v_add_f32 v{A4}, v{A4}, v{A4+1}")
        p(f"v_add_f32_dpp v{A4}, v{A4}, v{A4} quad_perm:[1,0,3,2] row_mask:0xf bank_mask:0xf")
        p(f"v_add_f32_dpp v{A4}, v{A4}, v{A4} quad_perm:[2,3,0,1] row_mask:0xf bank_mask:0xf")
        p(f"v_add_f32_dpp v{A4}, v{A4}, v{A4} row_half_mirror row_mask:0xf bank_mask:0xf")
        p(f"v_mul_f32 v{dst}, {hexf(1/512)}, v{A4}")
    MEAN, NM, VAR, RS, OFF, OFF2 = 184, 186, 188, 190, 196, 198
    reduce_(MEAN)
    p(f"v_sub_f32 v{NM}, 0, v{MEAN}")
    for k in range(32):
        p(f"v_pk_add_f32 {v(U+2*k,2)}, {v(U+2*k,2)}, {v(NM,2)} op_sel_hi:[1,0]")
        if k < 4:
            p(f"v_pk_mul_f32 {v(A4+2*k,2)}, {v(U+2*k,2)}, {v(U+2*k,2)}")
        else:
            p(f"v_pk_fma_f32 {v(A4+2*(k%4),2)}, {v(U+2*k,2)}, {v(U+2*k,2)}, {v(A4+2*(k%4),2)}")
    reduce_(VAR)
    p(f"v_cvt_pk_bf16_f32 v{NM}, v{MEAN}, v{VAR}")
    p(f"v_and_b32 v{VAR}, 0xffff0000, v{NM}")
    p(f"v_lshlrev_b32 v{NM}, 16, v{NM}")
    p(f"v_add_f32 v{VAR}, {hexf(1e-5)}, v{VAR}")
    p(f"v_cvt_pk_bf16_f32 v{VAR}, v{VAR}, v{VAR}")
    p(f"v_and_b32 v{VAR}, 0xffff0000, v{VAR}")
    p(f"v_sqrt_f32 v{VAR}, v{VAR}")
    p(f"v_sub_f32 v{OFF}, v{MEAN}, v{NM}")
    p(f"v_cvt_pk_bf16_f32 v{VAR}, v{VAR}, v{VAR}")
    p(f"v_and_b32 v{VAR}, 0xffff0000, v{VAR}")
    p(f"v_rcp_f32 v{RS}, v{VAR}")
    p(f"v_mul_f32 v{OFF}, v{OFF}, v{RS}")
    p(f"v_mul_f32 v{OFF2}, s38, v{OFF}")
    PKD = 200
    for k in range(16):
        p(f"v_pk_fma_f32 {v(X+2*k,2)}, {v(U+32+2*k,2)}, s[36:37], {v(U+2*k,2)}")
    for k in range(16):
        p(f"v_pk_fma_f32 {v(X+2*k,2)}, {v(X+2*k,2)}, {v(RS,2)}, {v(OFF2,2)} op_sel_hi:[1,0,0]")
        p(f"v_cvt_pk_bf16_f32 v{PKD+k}, v{X+2*k}, v{X+2*k+1}")
        if k % 4 == 3:
            p(f"ds_write_b128 v12, {v(PKD+k-3,4)} offset:{(k//4)*4096}")
    for qq in range(4):
        p(f"s_cmp_lg_u32 s29, {qq}")
        p(f"s_cbranch_scc1 K1_Q{qq}")
        for k in range(8):
            r = U + 16*qq + 2*k
            p(f"v_pk_fma_f32 {v(r,2)}, {v(r,2)}, {v(RS,2)}, {v(OFF,2)} op_sel_hi:[1,0,0]")
            p(f"v_cvt_pk_bf16_f32 v{X+k}, v{r}, v{r+1}")
        p(f"buffer_store_dwordx4 {v(X,4)}, v9, s[24:27], s34 offen {OPT['st1']}")
        p(f"buffer_store_dwordx4 {v(X+4,4)}, v9, s[24:27], s35 offen {OPT['st1']}")
        p(f"K1_Q{qq}:")
    p.wait_lgkm()
    p("s_barrier")
    AF = 112
    for t in range(16):
        p(f"ds_read_b128 {v(AF+4*t,4)}, v{RA+(t&3)} offset:{t*1024}")
    ACC = 216
    for t in range(16):
        c = "0" if t == 0 else v(ACC, 16)
        p(f"v_mfma_f32_32x32x16_bf16 {v(ACC,16)}, {v(AF+4*t,4)}, {v(F+4*t,4)}, {c}")
    for k in range(8):
        p(f"v_cvt_pk_bf16_f32 v{PKD+k}, v{ACC+2*k}, v{ACC+2*k+1}")
    p(f"buffer_store_dwordx4 {v(PKD,4)}, v8, s[24:27], s33 offen {OPT['st1']}")
    p(f"buffer_store_dwordx4 {v(PKD+4,4)}, v8, s[24:27], s33 offen offset:16 {OPT['st1']}")
    stamp_end(p, 0, 24, 16)
    p("s_endpgm")
    p.sync_point()
    p("K1_AUX:")
    srd(p, 20, 8, 2048*257*2)
    srd(p, 28, 10, 2048*257*2)
    p("v_and_b32 v1, 255, v0")
    p("v_and_b32 v2, 3, v1")
    p("v_lshrrev_b32 v3, 2, v1")
    p("s_and_b32 s32, s17, 7")
    p("s_bfe_u32 s33, s17, 0x10003")
    p("s_lshl_b32 s34, s16, 1")
    p("s_add_u32 s33, s33, s34")
    p("s_lshr_b32 s34, s17, 4")
    p("s_lshl_b32 s34, s34, 7")
    p("v_add_u32 v3, s34, v3")
    p("v_cmp_eq_u32 vcc, 0, v3")
    p("v_mov_b32 v4, 0x100")
    p("v_mul_u32_u24 v5, 514, v2")
    p("v_cndmask_b32 v4, v3, v4, vcc")
    p("v_lshl_add_u32 v4, v4, 1, v5")
    p("v_lshl_add_u32 v5, v3, 1, v5")
    p("s_lshl_b32 s35, s33, 5")
    p("s_add_u32 s35, s35, s32")
    p("s_mul_i32 s35, s35, 2056")
    for e in range(1, 4):
        p(f"s_add_u32 s{35+e}, s35, {e*16448}")
    for z in range(2):
        for e in range(4):
            vo = "v4" if z == 0 else "v5"
            off = "" if z == 0 else " offset:128"
            p(f"buffer_load_ushort v{16+z*8+e}, {vo}, s[20:23], s{35+e} offen{off}")
            p(f"buffer_load_ushort v{20+z*8+e}, {vo}, s[28:31], s{35+e} offen{off}")
    if OPT['prefetch']:
        srd(p, 40, 12, 512*1792*2)
        srd(p, 44, 14, 512*1792*2)
        p("v_mul_u32_u24 v6, 4682, v1")
        p("v_lshrrev_b32 v6, 16, v6")
        p("v_mul_u32_u24 v7, 14, v6")
        p("v_sub_u32 v7, v1, v7")
        p("v_mul_u32_u24 v6, 3584, v6")
        p("v_lshl_add_u32 v6, v7, 7, v6")
        p("v_cmp_gt_u32 vcc, 224, v1")
        p("v_mov_b32 v7, 0x7fffffff")
        p("v_cndmask_b32 v6, v7, v6, vcc")
        p(f"s_mul_i32 s48, s17, {16*3584}")
        p("s_lshr_b32 s49, s16, 2")
        p("s_mul_i32 s49, s49, 1792")
        p("s_add_u32 s48, s48, s49")
        p("buffer_load_dword v40, v6, s[40:43], s48 offen")
        p("buffer_load_dword v41, v6, s[44:47], s48 offen")
    p("v_lshlrev_b32 v3, 13, v3")
    p("v_lshl_add_u32 v3, v2, 4, v3")
    p("s_lshl_b32 s33, s33, 9")
    p("s_lshl_b32 s32, s32, 6")
    p("s_add_u32 s33, s33, s32")
    p(f"s_add_u32 s33, s33, {WT_OFF}")
    p(f"s_add_u32 s32, s33, {64*8192}")
    for z in range(2):
        for e in range(4):
            p(f"v_lshl_or_b32 v{32+z*4+e}, v{20+z*8+e}, 16, v{16+z*8+e}")
        p(f"buffer_store_dwordx4 {v(32+z*4,4)}, v3, s[24:27], s{33-z} offen {OPT['st1']}")
    p("s_barrier")
    stamp_end(p, 0, 24, 16)
    p("K1_END:")
    p("s_endpgm")
    return p


C1 = -2.0 * math.log2(math.e) * math.sqrt(2.0 / math.pi)
C2 = C1 * 0.044715


def gen_k2_gemm(p):
    srd(p, 28, 12, 512*1792*2)
    srd(p, 32, 14, 512*1792*2)
    p("s_and_b32 s19, s16, 3")
    p("s_lshl_b32 s19, s19, 2")
    p("s_and_b32 s20, s17, 3")
    p("s_add_u32 s19, s19, s20")
    p("s_lshr_b32 s20, s16, 2")
    p("s_mul_i32 s20, s20, 7")
    p("s_lshr_b32 s21, s17, 2")
    p("s_add_u32 s20, s20, s21")
    p("s_lshl_b32 s19, s19, 2")
    p("s_add_u32 s19, s19, s18")
    p("v_and_b32 v1, 63, v0")
    p("v_lshlrev_b32 v2, 4, v1")
    p("v_lshrrev_b32 v3, 3, v1")
    p("v_and_b32 v4, 7, v1")
    p("v_and_b32 v5, 2, v3")
    p("v_xor_b32 v4, v4, v5")
    p("v_mul_u32_u24 v3, 3584, v3")
    p("v_lshl_add_u32 v5, v4, 4, v3")
    p("v_xor_b32 v4, 4, v4")
    p("v_lshl_add_u32 v6, v4, 4, v3")
    p(f"s_mul_i32 s36, s18, {16*3584}")
    p("s_lshl_b32 s37, s20, 8")
    p("s_add_u32 s36, s36, s37")
    p("s_lshl_b32 s37, s18, 11")
    p("s_lshl_b32 s38, s19, 15")
    if XN_OFF:
        p(f"s_add_u32 s38, s38, {XN_OFF}")

    def slot_of(chunk, ks):
        return ks if chunk == 0 else (8 + ks if ks < 2 else ks - 2)

    def dma(chunk, ks):
        L = []
        q = Prog()
        for z in range(2):
            q(f"s_add_u32 s39, s36, {(ks*64 + 8*z)*3584 + chunk*128}")
            for mat in range(2):
                q(f"s_add_u32 m0, s37, {slot_of(chunk, ks)*16384 + mat*8192 + z*1024}")
                q(f"buffer_load_dwordx4 v{5+mat}, s[{28+4*mat}:{31+4*mat}], s39 offen lds", tag=('W', chunk, ks))
        return q.items

    for ks in range(8):
        p.add(dma(0, ks))
        if ks % 1 == 0:
            p(f"s_add_u32 s40, s38, {ks*4096}")
            for t in range(4):
                p(f"buffer_load_dwordx4 {a((ks*4+t)*4,4)}, v2, s[24:27], s40 offen offset:{t*1024}")
        if ks == 0:
            AD = 8
            p("v_bfe_u32 v20, v1, 2, 2")
            p("v_and_b32 v21, 3, v1")
            p("v_bfe_u32 v22, v1, 4, 1")
            p("v_lshrrev_b32 v23, 5, v1")
            p("v_lshl_add_u32 v23, v23, 3, v20")
            p("v_lshlrev_b32 v23, 7, v23")
            p("v_lshl_add_u32 v23, v22, 13, v23")
            p("v_and_b32 v24, 1, v21")
            p("v_and_b32 v20, 2, v20")
            p("v_xor_b32 v24, v24, v20")
            p("v_lshlrev_b32 v22, 2, v22")
            p("v_xor_b32 v24, v24, v22")
            p("v_lshl_add_u32 v23, v24, 4, v23")
            p("v_lshrrev_b32 v21, 1, v21")
            p("v_lshl_add_u32 v23, v21, 3, v23")
            for T in range(4):
                p(f"v_xor_b32 v{AD+T}, {T*32}, v23")
                p(f"v_add_u32 v{AD+4+T}, 0x10000, v{AD+T}")
                p(f"v_add_u32 v{AD+8+T}, 0x20000, v{AD+T}")
            p(f"v_mov_b32 v7, {hexf(C2)}")
            p("s_mul_i32 s41, s19, 112")
            p("s_lshl_b32 s42, s20, 3")
            p("s_add_u32 s41, s41, s42")
            p("s_lshl_b32 s41, s41, 10")
            p(f"s_add_u32 s41, s41, {H_OFF}")
            p("s_add_u32 s42, s41, 4096")
    p.add(dma(1, 0))
    p.add(dma(1, 1))
    AD = 8
    WF = 24
    ET = 56
    ACC = 96

    def reads(T, step, buf):
        chunk, ks, tp = T >> 2, step >> 2, step & 3
        off = slot_of(chunk, ks) * 16384 + tp * 2048
        ad = AD + (T & 3) + 4 * (off >> 16)
        off &= 0xffff
        r = WF + buf * 16 + (T & 3) * 4
        q = Prog()
        q(f"ds_read_b64_tr_b16 {v(r,2)}, v{ad} offset:{off}")
        q(f"ds_read_b64_tr_b16 {v(r+2,2)}, v{ad} offset:{off+512}")
        return q.items

    def epilogue(T):
        q = Prog()
        G, Uu = ACC + 16*T, ACC + 16*T + 8
        Z = ET + (T & 1) * 8
        PK = ET + 16 + (T & 1) * 4
        for i in range(8):
            q(f"v_mul_f32 v{Z+i}, v{G+i}, v{G+i}")
        for i in range(8):
            q(f"v_fmaak_f32 v{Z+i}, v{Z+i}, v7, {hexf(C1)}")
        for i in range(8):
            q(f"v_mul_f32 v{Z+i}, v{Z+i}, v{G+i}")
        for i in range(8):
            q(f"v_exp_f32 v{Z+i}, v{Z+i}")
            q(f"v_mul_f32 v{G+i}, v{G+i}, v{Uu+i}")
        for i in range(8):
            q(f"v_add_f32 v{Z+i}, 1.0, v{Z+i}")
        for i in range(8):
            q(f"v_rcp_f32 v{Z+i}, v{Z+i}")
        for i in range(8):
            q(f"v_mul_f32 v{G+i}, v{G+i}, v{Z+i}")
        for i in range(4):
            q(f"v_cvt_pk_bf16_f32 v{PK+i}, v{G+2*i}, v{G+2*i+1}")
        q(f"buffer_store_dwordx4 {v(PK,4)}, v2, s[24:27], s{41 + (T >> 2)} offen offset:{(T & 3)*1024} {OPT['st2h']}")
        return q.items

    passes = OPT['passes']
    seq = [(pi, step) for pi in range(len(passes)) for step in range(32)]
    seen = set()
    main = []

    def pre_reads(n):
        pi, step = seq[n]
        q = Prog()
        chunk, ks = passes[pi][0] >> 2, step >> 2
        if (chunk, ks) not in seen:
            seen.add((chunk, ks))
            q.wait_vm(('W', chunk, ks))
            q("s_barrier")
            if chunk == 0 and ks >= 2:
                q.add(dma(1, ks))
        rd = [reads(T, step, n & 1) for T in passes[pi]]
        return q.items, rd

    pre, rd = pre_reads(0)
    main += pre
    for r_ in rd:
        main += r_
    segs = []
    for n, (pi, step) in enumerate(seq):
        if step == 0:
            segs.append([])
        cur = segs[-1]
        if n + 1 < len(seq):
            pre, rd = pre_reads(n + 1)
        else:
            pre, rd = [], []
        tiles = passes[pi]
        for k, T in enumerate(tiles):
            c = "0" if step == 0 else v(ACC + 16*T, 16)
            r = WF + (n & 1) * 16 + (T & 3) * 4
            cur.append(I(f"v_mfma_f32_32x32x16_bf16 {v(ACC+16*T,16)}, {v(r,4)}, {a(step*4,4)}, {c}"))
            if k == 0:
                cur += pre
            lo = k * len(rd) // len(tiles)
            hi = (k + 1) * len(rd) // len(tiles)
            for r_ in rd[lo:hi]:
                cur += r_
    p.add(main)
    fill = []
    for pi, seg in enumerate(segs):
        if OPT['epi_interleave'] and fill:
            seg, fill = interleave(seg, fill, budget=24, start=1)
        p.add(seg)
        for T in passes[pi]:
            fill = fill + epilogue(T)
        if not OPT['epi_interleave']:
            p.add(fill)
            fill = []
    p.add(fill)


def fft_tables():
    def bf(x):
        u = np.asarray(x, dtype=np.float32).view(np.uint32)
        return ((u + 0x7fff + ((u >> 16) & 1)) >> 16).astype(np.uint16)
    lane = np.arange(64)
    m, h = lane & 31, lane >> 5
    i = np.arange(8)
    blob = []
    for N, ntile in ((32, 1), (64, 2)):
        fr = {0: [], 1: [], 2: []}
        for tile in range(ntile):
            for st in range(2 * ntile):
                tau, t = st >> 1, st & 1
                k = 32*tau + 16*t + 8*(i[None, :] >> 2) + 4*h[:, None] + (i[None, :] & 3)
                ang = 2*np.pi*(((32*tile + m[:, None]) * k) % N)/N
                fr[0].append(bf(np.cos(ang)))
                fr[1].append(bf(np.sin(ang)))
                fr[2].append(bf(-np.sin(ang)))
        for kind in range(3):
            blob.append(np.concatenate([x.ravel() for x in fr[kind]]).tobytes())
    e = np.arange(4)
    t1, t2 = [], []
    for tau in range(2):
        for rq in range(4):
            row = 8*rq + 4*h[:, None] + e[None, :]
            ang1 = 2*np.pi*((32*tau + row) * m[:, None])/2048
            ang2 = 2*np.pi*(row * (32*tau + m[:, None]))/2048
            t1 += [np.cos(ang1), np.sin(ang1)]
            t2 += [np.cos(ang2), np.sin(ang2)]
    blob.append(np.concatenate([x.ravel() for x in t1]).astype(np.float32).tobytes())
    blob.append(np.concatenate([x.ravel() for x in t2]).astype(np.float32).tobytes())
    return b"".join(blob)


TBL_BYTES = 30*1024 + 32*1024
L_F, L_T1, L_T2, L_WT = 0, 30*1024, 46*1024, 64*1024


def gen_k2_fft(p):
    p("s_getpc_b64 s[28:29]")
    p("K2_PC:")
    p("s_add_u32 s28, s28, FFT_TBL-K2_PC")
    p("s_addc_u32 s29, s29, 0")
    p(f"s_mov_b32 s30, {TBL_BYTES}")
    p("s_mov_b32 s31, 0x00020000")
    p("s_lshl_b32 s19, s16, 2")
    p("s_add_u32 s19, s19, s17")
    p("s_sub_u32 s19, s19, 28")
    p("v_and_b32 v1, 63, v0")
    p("v_lshlrev_b32 v2, 4, v1")
    p("v_and_b32 v3, 31, v1")
    p("v_lshrrev_b32 v4, 5, v1")
    p("v_lshlrev_b32 v5, 6, v3")
    p("v_lshl_add_u32 v5, v4, 5, v5")
    p("s_lshl_b32 s20, s19, 3")
    p("s_lshl_b32 s21, s18, 1")
    p("s_add_u32 s20, s20, s21")
    p("s_lshl_b32 s21, s20, 13")
    p(f"s_add_u32 s22, s21, {Y1_OFF}")
    p(f"s_add_u32 s23, s21, {WT_OFF}")
    p("s_lshl_b32 s36, s18, 10")

    def dma_tbl(k0, k1, tag):
        for k in range(k0, k1, 4):
            p(f"s_add_u32 m0, s36, {k*1024}")
            p(f"s_add_u32 s37, s36, {k*1024}")
            p("buffer_load_dwordx4 v2, s[28:31], s37 offen lds", tag=tag)
    AF32, AF64, AIN = 0, 24, 120

    def load_in(col):
        for c in range(2):
            p(f"s_add_u32 s37, s22, {col*8192 + c*4096}")
            for tau in range(2):
                for t in range(2):
                    r = AIN + col*32 + c*16 + tau*8 + t*4
                    p(f"buffer_load_dwordx4 {a(r,4)}, v5, s[24:27], s37 offen offset:{tau*2048 + t*16}")
    dma_tbl(0, 8, 'T0')
    load_in(0)
    dma_tbl(8, 48, 'T1')
    load_in(1)
    p("s_lshl_b32 s38, s18, 14")
    p(f"s_add_u32 s38, s38, {L_WT}")
    for k in range(16):
        p(f"s_add_u32 m0, s38, {k*1024}")
        p(f"s_add_u32 s37, s23, {k*1024}")
        p("buffer_load_dwordx4 v2, s[24:27], s37 offen lds", tag='WT')
    dma_tbl(48, 64, 'T2')
    p("v_add_u32 v6, s38, v2")
    p.wait_vm('T0')
    p("s_barrier")
    for k in range(6):
        p(f"ds_read_b128 {a(AF32+4*k,4)}, v2 offset:{L_F + k*1024}")

    ACC = [16, 112]
    PK = [80, 176]
    TB, RT, WU = 208, 224, 240

    def acc(col, c, tile):
        return ACC[col] + c*32 + tile*16

    def pk(col, c, st):
        return PK[col] + c*16 + st*4

    def mm(d, A, B, first):
        return I(f"v_mfma_f32_32x32x16_bf16 {v(d,16)}, {A}, {B}, {'0' if first else v(d,16)}")

    def f32(kind, t):
        return a(AF32 + kind*8 + t*4, 4)

    def f64(kind, tile, st):
        return a(AF64 + kind*32 + tile*16 + st*4, 4)

    def stage(col, n):
        L = []
        inv = n >= 3
        kre, kim = (2, 1) if inv else (1, 2)
        for tile in range(2):
            nst = 2 if n in (1, 4) else 4
            for st in range(nst):
                if n == 1:
                    X = lambda c: a(AIN + col*32 + c*16 + tile*8 + st*4, 4)
                    pr = lambda kind, c: (X(c), f32(kind, st))
                elif n == 2:
                    pr = lambda kind, c: (f64(kind, tile, st), v(pk(col, c, st), 4))
                elif n == 3:
                    pr = lambda kind, c: (v(pk(col, c, st), 4), f64(kind, tile, st))
                else:
                    pr = lambda kind, c: (v(pk(col, c, tile*2 + st), 4), f32(kind, st))
                L.append(mm(acc(col, 0, tile), *pr(0, 0), st == 0))
                L.append(mm(acc(col, 1, tile), *pr(0, 1), st == 0))
                L.append(mm(acc(col, 0, tile), *pr(kre, 1), False))
                L.append(mm(acc(col, 1, tile), *pr(kim, 0), False))
        return L

    def vphase(col, n):
        q = Prog()
        if n == 4:
            for tile in range(2):
                for r in range(16):
                    q(f"v_cvt_pk_bf16_f32 v{PK[col]+tile*16+r}, v{acc(col,0,tile)+r}, v{acc(col,1,tile)+r}")
            return q.items

        def rd(k):
            b = TB + (k & 1) * 8
            if n == 2:
                q(f"ds_read_b128 {v(b,4)}, v6 offset:{col*8192 + k*1024}")
            else:
                base = L_T1 if n == 1 else L_T2
                q(f"ds_read_b128 {v(b,4)}, v2 offset:{base + k*2048}")
                q(f"ds_read_b128 {v(b+4,4)}, v2 offset:{base + k*2048 + 1024}")
        rd(0)
        for k in range(8):
            tile, rq = k >> 2, k & 3
            if k + 1 < 8:
                rd(k + 1)
            b = TB + (k & 1) * 8
            xr, xi = acc(col, 0, tile) + 4*rq, acc(col, 1, tile) + 4*rq
            R = RT + (k & 1) * 8
            if n == 2:
                for e in range(4):
                    q(f"v_lshlrev_b32 v{WU+e}, 16, v{b+e}")
                    q(f"v_and_b32 v{WU+4+e}, 0xffff0000, v{b+e}")
                cc, ss = WU, WU + 4
            else:
                cc, ss = b, b + 4
            sre, sim = ("", "-") if n == 1 else ("-", "")
            for e in range(4):
                q(f"v_mul_f32 v{R+e}, v{xr+e}, v{cc+e}")
                q(f"v_mul_f32 v{R+4+e}, v{xi+e}, v{cc+e}")
            for e in range(4):
                q(f"v_fma_f32 v{R+e}, {sre}v{xi+e}, v{ss+e}, v{R+e}")
                q(f"v_fma_f32 v{R+4+e}, {sim}v{xr+e}, v{ss+e}, v{R+4+e}")
            st, half = tile*2 + (rq >> 1), (rq & 1) * 2
            for c in range(2):
                for e in range(2):
                    q(f"v_cvt_pk_bf16_f32 v{pk(col,c,st)+half+e}, v{R+4*c+2*e}, v{R+4*c+2*e+1}")
        return q.items

    def gate(tag):
        q = Prog()
        q.wait_vm(tag)
        q("s_barrier")
        return q.items

    rdF64 = Prog()
    for k in range(24):
        rdF64(f"ds_read_b128 {a(AF64+4*k,4)}, v2 offset:{L_F + 6144 + k*1024}")
    if not OPT['fft_interleave']:
        for col in range(2):
            p.add(stage(col, 1))
            if col == 0:
                p.add(gate('T1'))
                p.add(rdF64)
            p.add(vphase(col, 1))
            p.add(stage(col, 2))
            if col == 0:
                p.wait_vm('WT')
            p.add(vphase(col, 2))
            p.add(stage(col, 3))
            if col == 0:
                p.add(gate('T2'))
            p.add(vphase(col, 3))
            p.add(stage(col, 4))
            p.add(vphase(col, 4))
    else:
        p.add(stage(0, 1))
        p.add(gate('T1'))
        p.add(rdF64)
        order = [((1, 1), (0, 1)), ((0, 2), (1, 1)), ((1, 2), (0, 2)), ((0, 3), (1, 2)),
                 ((1, 3), (0, 3)), ((0, 4), (1, 3)), ((1, 4), (0, 4))]
        for (sc, sn), (vc, vn) in order:
            if (vc, vn) == (0, 2):
                p.wait_vm('WT')
            if (vc, vn) == (0, 3):
                p.add(gate('T2'))
            S, Vv = stage(sc, sn), vphase(vc, vn)
            tot = sum(x.cost for x in Vv)
            bud = max(24, -(-tot // len(S) // 4) * 4)
            mer, left = interleave(S, Vv, budget=bud)
            p.add(mer)
            p.add(left)
        p.add(vphase(1, 4))
    p("s_barrier")
    p("v_lshlrev_b32 v7, 3, v3")
    p("v_lshl_add_u32 v7, v4, 12, v7")
    p("s_lshl_b32 s37, s18, 8")
    p(f"s_add_u32 s37, s37, {L_WT}")
    p("v_add_u32 v7, s37, v7")
    E = 16
    for tile in range(2):
        for r in range(16):
            k = tile*16 + r
            p(f"v_mov_b32 v{E+2*k}, v{PK[0]+k}")
            p(f"v_mov_b32 v{E+2*k+1}, v{PK[1]+k}")
            g = 32*tile + 8*(r >> 2) + (r & 3)
            p(f"ds_write_b64 v7, {v(E+2*k,2)} offset:{g*1024}")
    p("v_lshlrev_b32 v8, 3, v3")
    p("v_lshl_add_u32 v8, v4, 9, v8")
    p("s_lshl_b32 s37, s18, 14")
    p(f"s_add_u32 s37, s37, {L_WT}")
    p("v_add_u32 v8, s37, v8")
    p("s_lshl_b32 s38, s18, 19")
    p("s_lshl_b32 s39, s19, 10")
    p("s_add_u32 s38, s38, s39")
    p(f"s_add_u32 s38, s38, {V_OFF}")
    p.wait_lgkm()
    p("s_barrier")
    O = 112
    for k in range(16):
        p(f"ds_read_b64 {v(O+4*k,2)}, v8 offset:{k*1024}")
        p(f"ds_read_b64 {v(O+4*k+2,2)}, v8 offset:{k*1024+256}")
    for k in range(16):
        p(f"buffer_store_dwordx4 {v(O+4*k,4)}, v2, s[24:27], s38 offen {OPT['st2v']}")
        if k < 15:
            p("s_add_u32 s38, s38, 32768")


def gen_k2():
    p = Prog()
    p("s_cmp_ge_u32 s2, 256")
    p("s_cbranch_scc1 K2_END")
    stamp_begin(p)
    p("s_load_dwordx4 s[12:15], s[0:1], 32")
    p("s_load_dwordx2 s[6:7], s[0:1], 72")
    p("s_and_b32 s16, s2, 7")
    p("s_lshr_b32 s17, s2, 3")
    p("v_lshrrev_b32 v1, 6, v0")
    p("v_readfirstlane_b32 s18, v1")
    p.wait_lgkm()
    srd(p, 24, 6, WS_USED)
    p("s_cmp_ge_u32 s17, 28")
    p("s_cbranch_scc1 K2_FFT")
    gen_k2_gemm(p)
    stamp_end(p, 1, 24, 8)
    p("s_endpgm")
    p.sync_point()
    p("K2_FFT:")
    gen_k2_fft(p)
    stamp_end(p, 1, 24, 8)
    p("K2_END:")
    p("s_endpgm")
    return p


RING = 12
L_SX = 4 * RING * 2048


def gen_k3():
    p = Prog()
    p("s_cmp_ge_u32 s2, 256")
    p("s_cbranch_scc1 K3_END")
    stamp_begin(p)
    p("s_load_dwordx2 s[4:5], s[0:1], 0")
    p("s_load_dwordx4 s[8:11], s[0:1], 48")
    p("s_load_dwordx2 s[6:7], s[0:1], 72")
    p("s_and_b32 s16, s2, 7")
    p("s_lshr_b32 s17, s2, 3")
    p("v_lshrrev_b32 v1, 6, v0")
    p("v_readfirstlane_b32 s18, v1")
    p("s_and_b32 s19, s17, 3")
    p("s_lshl_b32 s20, s16, 3")
    p("s_lshl_b32 s19, s19, 1")
    p("s_add_u32 s19, s19, s20")
    p("s_lshr_b32 s46, s17, 2")
    p("v_and_b32 v1, 63, v0")
    p("v_lshlrev_b32 v2, 4, v1")
    p("v_lshrrev_b32 v3, 3, v1")
    p("v_and_b32 v4, 7, v1")
    p("v_and_b32 v5, 2, v3")
    p("v_lshlrev_b32 v5, 1, v5")
    p("v_xor_b32 v4, v4, v5")
    p("v_lshlrev_b32 v3, 10, v3")
    p("v_lshl_add_u32 v3, v4, 4, v3")
    p(f"s_mul_i32 s36, s18, {28*16*1024}")
    p("s_lshl_b32 s37, s46, 7")
    p("s_add_u32 s36, s36, s37")
    p(f"s_mul_i32 s37, s18, {RING*2048}")
    p("s_mul_i32 s38, s19, 112")
    p("s_mul_i32 s39, s18, 28")
    p("s_add_u32 s38, s38, s39")
    p("s_lshl_b32 s38, s38, 10")
    p(f"s_add_u32 s38, s38, {H_OFF}")
    p("s_lshl_b32 s39, s19, 15")
    p("s_lshl_b32 s40, s18, 13")
    p("s_add_u32 s39, s39, s40")
    p(f"s_add_u32 s39, s39, {V_OFF}")
    p.wait_lgkm()
    srd(p, 24, 6, WS_USED)
    srd(p, 28, 8, 1792*512*2)
    AV, AH = 0, 64

    def hreg(step, rg):
        return (AH + step*8 + rg*4) if step < 24 else (AV + (step-24)*8 + rg*4)

    def loads(step):
        q = Prog()
        for z in range(2):
            q(f"s_add_u32 s41, s36, {(step*16 + 8*z)*1024}")
            q(f"s_add_u32 m0, s37, {(step % RING)*2048 + z*1024}")
            q(f"buffer_load_dwordx4 v3, s[28:31], s41 offen lds", tag=('W', step))
        for rg in range(2):
            q(f"s_add_u32 s41, s38, {rg*112*1024 + step*1024}")
            q(f"buffer_load_dwordx4 {a(hreg(step, rg),4)}, v2, s[24:27], s41 offen")
        return q.items
    for rg in range(2):
        for hf in range(2):
            p(f"s_add_u32 s41, s39, {rg*32768 + hf*4096}")
            for k in range(4):
                p(f"buffer_load_dwordx4 {a(AV + (hf*4+k)*8 + rg*4, 4)}, v2, s[24:27], s41 offen offset:{k*1024}")
    PRE = 11
    for step in range(PRE):
        p.add(loads(step))
    srd(p, 20, 4, 2097152)
    srd(p, 32, 10, 2097152)
    p("v_lshrrev_b32 v6, 3, v0")
    p("v_and_b32 v7, 7, v0")
    p("v_lshlrev_b32 v8, 16, v6")
    p("v_lshl_add_u32 v8, v7, 4, v8")
    p("s_lshl_b32 s42, s19, 10")
    p("s_lshl_b32 s43, s46, 7")
    p("s_add_u32 s42, s42, s43")
    XR = 240
    p(f"buffer_load_dwordx4 {v(XR,4)}, v8, s[20:23], s42 offen")
    p(f"buffer_load_dwordx4 {v(XR+4,4)}, v8, s[20:23], s42 offen offset:1024")
    CF = 16
    S0, S1 = 80, 88
    SC = 2.0 ** -19
    p("v_and_b32 v9, 31, v1")
    p("v_lshrrev_b32 v10, 5, v1")
    p("s_lshl_b32 s43, s46, 6")
    p("v_add_u32 v9, s43, v9")
    p("s_lshl_b32 s43, s18, 6")
    p("v_lshl_add_u32 v11, v10, 2, s43")
    p("v_cmp_eq_u32 s[44:45], 0, v11")
    p("v_cvt_f32_u32 v11, v11")
    for Dt in range(2):
        p("v_cvt_f32_u32 v12, v9")
        p(f"v_mul_f32 v12, {hexf(1/512)}, v12")
        p(f"v_mul_f32 v13, {hexf(8.0)}, v12")
        p(f"v_sub_f32 v14, {hexf(0.25)}, v13")
        p("v_sin_f32 v14, v14")
        p(f"v_fma_f32 v{S0+1}, -v11, v12, 0")
        for ci in range(1, 4):
            p(f"v_sub_f32 v{S0+2*ci+1}, v{S0+2*ci-1}, v12")
        for ci in range(4):
            p(f"v_add_f32 v{S0+2*ci}, {hexf(0.25)}, v{S0+2*ci+1}")
        for i in range(8):
            p(f"v_sub_f32 v{S1+i}, v{S0+i}, v13")
        p("v_add_f32 v14, v14, v14")
        for i in range(8):
            p(f"v_sin_f32 v{S0+i}, v{S0+i}")
        for i in range(8):
            p(f"v_sin_f32 v{S1+i}, v{S1+i}")
        for i in range(8):
            p(f"v_mul_f32 v{S0+i}, {hexf(SC)}, v{S0+i}")
        for i in range(8):
            p(f"v_mul_f32 v{S1+i}, {hexf(SC)}, v{S1+i}")
        for t in range(8):
            cur = S0 if t % 2 == 0 else S1
            oth = S1 if t % 2 == 0 else S0
            if t >= 2:
                for i in range(8):
                    p(f"v_fma_f32 v{cur+i}, v14, v{oth+i}, -v{cur+i}")
            for i in range(4):
                p(f"v_cvt_pk_bf16_f32 v{CF+Dt*32+4*t+i}, v{cur+2*i}, v{cur+2*i+1}")
        half = fbits(SC / 2) >> 16
        p("v_and_b32 v15, 1, v9")
        p("v_lshlrev_b32 v15, 15, v15")
        p(f"v_or_b32 v15, {half}, v15")
        p(f"v_cndmask_b32 v{CF+Dt*32}, v{CF+Dt*32}, v15, s[44:45]")
        if Dt == 0:
            p("v_add_u32 v9, 32, v9")
    p("v_bfe_u32 v11, v1, 2, 2")
    p("v_and_b32 v12, 3, v1")
    p("v_bfe_u32 v13, v1, 4, 1")
    p("v_lshl_add_u32 v14, v10, 3, v11")
    p("v_lshlrev_b32 v14, 7, v14")
    p("v_lshrrev_b32 v15, 1, v12")
    p("v_lshl_add_u32 v15, v13, 1, v15")
    p("v_and_b32 v11, 2, v11")
    p("v_lshlrev_b32 v11, 1, v11")
    p("v_xor_b32 v15, v15, v11")
    p("v_lshl_add_u32 v14, v15, 4, v14")
    p("v_and_b32 v12, 1, v12")
    p("v_lshl_add_u32 v14, v12, 3, v14")
    p("v_add_u32 v4, s37, v14")
    p("v_xor_b32 v14, 64, v14")
    p("v_add_u32 v5, s37, v14")
    p("v_and_b32 v11, 31, v1")
    p("v_and_b32 v12, 7, v1")
    p("v_xor_b32 v12, v12, v10")
    EW = 96
    for rq in range(4):
        p(f"v_xor_b32 v{EW+rq}, {2*rq}, v12")
        p(f"v_lshlrev_b32 v{EW+rq}, 4, v{EW+rq}")
        p(f"v_lshl_add_u32 v{EW+rq}, v11, 8, v{EW+rq}")
    p("s_lshl_b32 s43, s18, 14")
    p(f"s_add_u32 s43, s43, {L_SX}")
    for rq in range(4):
        p(f"v_add_u32 v{EW+4+rq}, s43, v{EW+rq}")
        p(f"v_add_u32 v{EW+rq}, s37, v{EW+rq}")
    ER = 104
    p("v_and_b32 v11, 7, v6")
    for b in range(2):
        p(f"v_lshl_add_u32 v12, v7, 1, {b}")
        p("v_xor_b32 v12, v12, v11")
        p("v_lshlrev_b32 v12, 4, v12")
        p(f"v_lshl_add_u32 v{ER+b}, v6, 8, v12")
        p(f"v_add_u32 v{ER+2+b}, {L_SX}, v{ER+b}")
        p(f"v_add_u32 v{ER+4+b}, {2*RING*2048}, v{ER+b}")
    AS = 112
    AG = 176

    def xwrite(accb, ew):
        q = Prog()
        for rg in range(2):
            for Dt in range(2):
                for rq in range(4):
                    q(f"ds_write_b128 v{ew+rq}, {v(accb + (rg*2+Dt)*16 + 4*rq, 4)} offset:{rg*8192 + Dt*128}")
        return q.items

    def xread(er, wstride, T):
        q = Prog()
        for w in range(4):
            for rg in range(2):
                for b in range(2):
                    off = w*wstride + rg*8192
                    ad = er + b
                    if wstride != 16384 and w >= 2:
                        off -= 2*wstride
                        ad += 4
                    q(f"ds_read_b128 {v(T + w*16 + rg*8 + b*4, 4)}, v{ad} offset:{off}")
        s_ = Prog()
        for k in range(8):
            s_(f"v_pk_add_f32 {v(T+2*k,2)}, {v(T+2*k,2)}, {v(T+16+2*k,2)}")
        for k in range(8):
            s_(f"v_pk_add_f32 {v(T+32+2*k,2)}, {v(T+32+2*k,2)}, {v(T+48+2*k,2)}")
        for k in range(8):
            s_(f"v_pk_add_f32 {v(T+2*k,2)}, {v(T+2*k,2)}, {v(T+32+2*k,2)}")
        return q.items, s_.items
    for t in range(8):
        for rg in range(2):
            for Dt in range(2):
                d = AS + (rg*2+Dt)*16
                p(f"v_mfma_f32_32x32x16_bf16 {v(d,16)}, {v(CF+Dt*32+4*t,4)}, {a(AV+t*8+rg*4,4)}, {'0' if t == 0 else v(d,16)}")
    p.add(xwrite(AS, EW + 4))
    WF = 80

    def wreads(step):
        q = Prog()
        q.wait_vm(('W', step))
        for Dt in range(2):
            r = WF + (step & 1)*8 + Dt*4
            off = (step % RING) * 2048
            q(f"ds_read_b64_tr_b16 {v(r,2)}, v{4+Dt} offset:{off}")
            q(f"ds_read_b64_tr_b16 {v(r+2,2)}, v{4+Dt} offset:{off+512}")
        return q.items
    p.add(wreads(0))
    SV = 16
    for step in range(28):
        if step + 1 < 28:
            p.add(wreads(step + 1))
        for rg in range(2):
            for Dt in range(2):
                d = AG + (rg*2+Dt)*16
                r = WF + (step & 1)*8 + Dt*4
                p(f"v_mfma_f32_32x32x16_bf16 {v(d,16)}, {v(r,4)}, {a(hreg(step,rg),4)}, {'0' if step == 0 else v(d,16)}")
        if step + PRE < 28:
            p.add(loads(step + PRE))
        if step == 2:
            p.wait_lgkm()
            p("s_barrier")
            rd, sm = xread(ER + 2, 16384, SV)
            p.add(rd)
            p.add(sm)
    p.add(xwrite(AG, EW))
    p.wait_lgkm()
    p("s_barrier")
    GT = 112
    rd, sm = xread(ER, RING*2048, GT)
    p.add(rd)
    XU = 32
    for k in range(8):
        p(f"v_lshlrev_b32 v{XU+2*k}, 16, v{XR+k}")
        p(f"v_and_b32 v{XU+2*k+1}, 0xffff0000, v{XR+k}")
    p.add(sm)
    Z = 48
    for k in range(16):
        p(f"v_mul_f32 v{Z+k}, {hexf(-math.log2(math.e))}, v{GT+k}")
    for k in range(16):
        p(f"v_exp_f32 v{Z+k}, v{Z+k}")
        p(f"v_mul_f32 v{GT+k}, v{GT+k}, v{SV+k}")
    for k in range(16):
        p(f"v_add_f32 v{Z+k}, 1.0, v{Z+k}")
    for k in range(16):
        p(f"v_rcp_f32 v{Z+k}, v{Z+k}")
    for k in range(16):
        p(f"v_fma_f32 v{XU+k}, v{GT+k}, v{Z+k}, v{XU+k}")
    for k in range(8):
        p(f"v_cvt_pk_bf16_f32 v{64+k}, v{XU+2*k}, v{XU+2*k+1}")
    p(f"buffer_store_dwordx4 {v(64,4)}, v8, s[32:35], s42 offen {OPT['st3']}")
    p(f"buffer_store_dwordx4 {v(68,4)}, v8, s[32:35], s42 offen offset:1024 {OPT['st3']}")
    stamp_end(p, 2, 24, 8)
    p("K3_END:")
    p("s_endpgm")
    return p


HEADER = """; Kernarg layout (80 bytes, ptrs only, base s[0:1]): A_x 0, A_w_r 8, A_w_i 16, B_x 24, w_gate 32, w_up 40,
"""


def desc(label, vgpr, accum):
    return f""".p2align 6
.amdhsa_kernel {label}
  .amdhsa_next_free_vgpr {vgpr}
  .amdhsa_next_free_sgpr 102
  .amdhsa_accum_offset {accum}
  .amdhsa_group_segment_fixed_size 0
  .amdhsa_kernarg_size 80
  .amdhsa_user_sgpr_count 2
  .amdhsa_user_sgpr_kernarg_segment_ptr 1
  .amdhsa_system_sgpr_workgroup_id_x 1
.end_amdhsa_kernel"""


def build():
    out = [HEADER.rstrip()]
    out.append("; @launch kernel=k1_kernel grid=(256,1,1) block=(512,1,1) lds=16384")
    out.append("; @launch kernel=k2_kernel grid=(256,1,1) block=(256,1,1) lds=163840")
    out.append("; @launch kernel=k3_kernel grid=(256,1,1) block=(256,1,1) lds=163840")
    out.append('.amdgcn_target "amdgcn-amd-amdhsa--gfx950"')
    out.append(".text")
    for name, g in (("k1_kernel", gen_k1), ("k3_kernel", gen_k3), ("k2_kernel", gen_k2)):
        out.append(f".globl {name}\n.p2align 8\n.type {name},@function\n{name}:")
        out += finalize(g().items)
    blob = fft_tables()
    assert len(blob) == TBL_BYTES
    out.append(".p2align 8\n.type FFT_TBL,@object\nFFT_TBL:")
    w = np.frombuffer(blob, dtype=np.uint32)
    for i in range(0, len(w), 8):
        out.append(".long " + ",".join(f"0x{x:x}" for x in w[i:i+8]))
    out.append(f".size FFT_TBL, {TBL_BYTES}")
    out.append('.section .rodata,"a"')
    out.append(desc("k1_kernel", 232, 232))
    out.append(desc("k2_kernel", 512, 256))
    out.append(desc("k3_kernel", 512, 256))
    return "\n".join(out) + "\n"


if __name__ == "__main__":
    path = sys.argv[1]
    for kv in sys.argv[2:]:
        k, val = kv.split("=", 1)
        OPT[k] = eval(val)
    open(path, "w").write(build())
```

```python
import re

REG_RE = re.compile(r'(?<![\w.])([vas])(?:(\d+)|\[(\d+):(\d+)\])(?![\w])')
TRANS = ('v_exp_f32', 'v_log_f32', 'v_rcp_f32', 'v_rsq_f32', 'v_sqrt_f32', 'v_sin_f32', 'v_cos_f32')


def v(i, n=1):
    return f"v{i}" if n == 1 else f"v[{i}:{i+n-1}]"


def a(i, n=1):
    return f"a{i}" if n == 1 else f"a[{i}:{i+n-1}]"


def s(i, n=1):
    return f"s{i}" if n == 1 else f"s[{i}:{i+n-1}]"


def regs_of(op):
    op = op.strip()
    out = []
    if op in ('vcc', 'vcc_lo', 'vcc_hi'):
        return [('s', 'vcc')]
    if op in ('exec', 'exec_lo', 'exec_hi'):
        return [('s', 'exec')]
    if op == 'm0':
        return [('s', 'm0')]
    for m in REG_RE.finditer(op):
        k = m.group(1)
        if m.group(2) is not None:
            out.append((k, int(m.group(2))))
        else:
            out += [(k, i) for i in range(int(m.group(3)), int(m.group(4)) + 1)]
    return out


class I:
    __slots__ = ('text', 'op', 'kind', 'dst', 'src', 'srcc', 'tag', 'passes', 'cost', 'wide_store', 'dpp', 'meta')

    def __init__(self, text, tag=None):
        self.text = text.strip()
        self.tag = tag
        self.meta = None
        t = self.text.split(';')[0].strip()
        parts = t.split(None, 1)
        self.op = op = parts[0]
        rest = parts[1] if len(parts) > 1 else ''
        ops, depth, cur = [], 0, ''
        for ch in rest:
            if ch in '[(':
                depth += 1
            if ch in '])':
                depth -= 1
            if ch == ',' and depth == 0:
                ops.append(cur)
                cur = ''
            else:
                cur += ch
        if cur.strip():
            ops.append(cur)
        R = []
        for o in ops:
            o = o.strip()
            first = o.split()[0] if o else ''
            R.append(regs_of(first))
        self.dst, self.src, self.srcc = [], [], []
        self.passes = 0
        self.wide_store = False
        self.dpp = ('dpp' in op) or (' row_' in t) or (' quad_perm' in t)
        flat = lambda L: [x for l in L for x in l]
        if op.startswith('v_mfma'):
            self.kind = 'mfma'
            self.dst = R[0]
            self.src = R[1] + R[2] + R[3]
            self.srcc = R[3]
            self.passes = 8 if '32x32' in op else 4
            self.cost = 8
        elif op.startswith('v_'):
            self.kind = 'trans' if any(op.startswith(x) for x in TRANS) else 'valu'
            self.cost = 8 if self.kind == 'trans' else 4
            if op.startswith('v_cmp'):
                self.dst = R[0]
                self.src = flat(R[1:])
            elif 'permlane' in op and 'swap' in op:
                self.dst = R[0] + R[1]
                self.src = R[0] + R[1]
            elif op.startswith(('v_add_co', 'v_sub_co', 'v_addc_co', 'v_subb_co')):
                self.dst = R[0] + R[1]
                self.src = flat(R[2:])
            elif op == 'v_nop':
                pass
            else:
                self.dst = R[0]
                self.src = flat(R[1:])
                if op.startswith(('v_fmac', 'v_dot2c', 'v_pk_fmac', 'v_writelane')) or self.dpp or 'sdwa' in op:
                    self.src = self.src + R[0]
                if op.startswith('v_cndmask') and len(R) == 3:
                    self.src = self.src + [('s', 'vcc')]
        elif op.startswith('ds_'):
            self.kind = 'ds'
            self.cost = 4
            if op.startswith(('ds_read', 'ds_bpermute', 'ds_permute', 'ds_swizzle')):
                self.dst = R[0]
                self.src = flat(R[1:])
            else:
                self.src = flat(R)
        elif op.startswith(('buffer_', 'global_')):
            self.kind = 'vmem'
            self.cost = 4
            islds = bool(re.search(r'\blds\b', t)) or '_lds_' in op
            if op.startswith(('buffer_wbl2', 'buffer_inv')):
                pass
            elif 'load' in op and not islds:
                self.dst = R[0]
                self.src = flat(R[1:])
            elif 'atomic' in op and re.search(r'\bsc0\b', t):
                self.dst = R[0]
                self.src = flat(R)
            else:
                self.src = flat(R)
                if islds:
                    self.src = self.src + [('s', 'm0')]
                    self.meta = 'dma'
                if 'store' in op and ('x4' in op or 'x3' in op):
                    self.wide_store = True
                    self.meta = R[0] if op.startswith('buffer_') else R[1]
        elif op.startswith(('s_load', 's_memtime', 's_memrealtime', 's_buffer_load')):
            self.kind = 'smem'
            self.cost = 4
            self.dst = R[0]
            self.src = flat(R[1:])
        elif op.startswith('s_'):
            self.kind = 'salu'
            self.cost = 4
            if op.startswith(('s_cmp', 's_waitcnt', 's_barrier', 's_nop', 's_branch', 's_cbranch', 's_endpgm',
                              's_setprio', 's_sleep', 's_bitcmp')):
                self.src = flat(R)
            else:
                self.dst = R[0] if R else []
                self.src = flat(R[1:])
                if 'saveexec' in op:
                    self.dst = self.dst + [('s', 'exec')]
        else:
            raise ValueError("unknown instr: " + text)


class Marker:
    def __init__(self, kind, arg=None):
        self.kind = kind
        self.arg = arg
        self.cost = 0


class Prog:
    def __init__(self):
        self.items = []

    def __call__(self, text, tag=None):
        for l in text.split('\n'):
            l = l.strip()
            if not l:
                continue
            if l.endswith(':'):
                self.items.append(Marker('label', l))
            elif l.startswith(';') or l.startswith('.'):
                self.items.append(Marker('raw', l))
            else:
                self.items.append(I(l, tag))
        return self

    def wait_vm(self, tag):
        self.items.append(Marker('wait_vm', tag))

    def wait_all_vm(self):
        self.items.append(Marker('wait_vm', None))

    def wait_lgkm(self):
        self.items.append(Marker('wait_lgkm', None))

    def touch(self, text):
        self.items.append(Marker('touch', set(regs_of(text))))

    def add(self, items):
        self.items += items.items if isinstance(items, Prog) else items

    def sync_point(self):
        self.items.append(Marker('sync'))


def finalize(items, verbose=False):
    out = []
    vmq = []
    lgq = []
    hist = []
    pos = 0
    tags_seen = set()
    tags_waited = set()

    def emit_raw(t, states=1):
        nonlocal pos
        out.append('    ' + t)
        pos += states

    def do_wait(vm=None, lg=None):
        parts = []
        if vm is not None and vm < len(vmq):
            n = vm
            if n <= 63:
                parts.append(f"vmcnt({n})")
            del vmq[:len(vmq) - n]
        if lg is not None and lg < len(lgq):
            n = lg
            if any(k == 'smem' for k, _ in lgq):
                n = 0
            if n <= 15:
                parts.append(f"lgkmcnt({n})")
            del lgq[:len(lgq) - n]
        if parts:
            emit_raw("s_waitcnt " + " ".join(parts))

    def need(ins):
        req = 0
        S, D = set(ins.src), set(ins.dst)
        isvalu = ins.kind in ('valu', 'trans')
        for p, ppos in hist:
            dist = pos - ppos - 1
            pd = set(p.dst)
            w = 0
            if p.kind in ('valu', 'trans'):
                pv = {r for r in pd if r[0] in 'va'}
                ps = {r for r in pd if r[0] == 's'}
                if ins.kind == 'mfma' and pv & S:
                    w = max(w, 2)
                if ins.kind == 'mfma' and ('s', 'exec') in ps:
                    w = max(w, 4)
                if p.kind == 'trans' and ins.kind == 'valu' and pv & S:
                    w = max(w, 1)
                if ins.kind == 'vmem' and ps & S:
                    w = max(w, 5)
                if isvalu and ps & S:
                    w = max(w, 4 if ins.op.startswith(('v_readlane', 'v_writelane')) else 2)
                if ins.kind == 'salu' and ps & S:
                    w = max(w, 1)
                if ins.op.startswith(('v_readfirstlane', 'v_readlane')) and pv & S:
                    w = max(w, 1)
                if 'permlane' in ins.op and pv & S:
                    w = max(w, 2)
                if isvalu and ins.dpp and pv & S:
                    w = max(w, 2)
                if isvalu and ('sdwa' in p.op or 'op_sel' in p.text) and pv & (S | D) and not p.op.startswith('v_pk'):
                    w = max(w, 1)
            elif p.kind == 'mfma':
                big = p.passes == 8
                if ins.kind == 'mfma':
                    C = set(ins.srcc)
                    AB = S - C if not (set(ins.src[:len(ins.src) - len(ins.srcc)]) & C) else S
                    AB = set(ins.src[:len(ins.src) - len(ins.srcc)])
                    if pd & AB:
                        w = max(w, 12 if big else 8)
                    if pd & C and not (list(ins.srcc) == list(p.dst) and ins.passes == p.passes):
                        w = max(w, 10 if big else 6)
                    if pd & D and not (pd & C):
                        w = max(w, 10 if big else 6)
                elif ins.kind in ('valu', 'trans', 'vmem', 'ds'):
                    if pd & (S | D):
                        w = max(w, 12 if big else 8)
                    if isvalu and set(p.srcc) & D:
                        w = max(w, 7 if big else 3)
            elif p.kind == 'salu':
                if ('s', 'm0') in pd and ('s', 'm0') in S and ins.kind in ('vmem', 'ds'):
                    w = max(w, 1)
            elif p.kind == 'vmem' and p.wide_store:
                if set(p.meta) & D:
                    w = max(w, 2)
            req = max(req, w - dist)
        return req

    for it in items:
        if isinstance(it, Marker):
            if it.kind == 'label':
                out.append(it.arg)
            elif it.kind == 'raw':
                out.append(it.arg)
            elif it.kind == 'wait_vm':
                if it.arg is None:
                    do_wait(vm=0)
                else:
                    assert it.arg in tags_seen, f"wait on tag never issued: {it.arg}"
                    tags_waited.add(it.arg)
                    idx = [i for i, (t, _) in enumerate(vmq) if t == it.arg]
                    if idx:
                        do_wait(vm=len(vmq) - 1 - idx[-1])
            elif it.kind == 'wait_lgkm':
                do_wait(lg=0)
            elif it.kind == 'touch':
                vm = lg = None
                for i, (t, d) in enumerate(vmq):
                    if d & it.arg:
                        vm = len(vmq) - 1 - i
                for i, (k, d) in enumerate(lgq):
                    if d & it.arg:
                        lg = len(lgq) - 1 - i
                do_wait(vm, lg)
            elif it.kind == 'sync':
                do_wait(vm=0, lg=0)
                pend = 0
                for p, ppos in hist:
                    w = 12 if p.kind == 'mfma' else (5 if p.kind in ('valu', 'trans') else 2)
                    pend = max(pend, w - (pos - ppos - 1))
                while pend > 0:
                    n = min(pend, 16)
                    emit_raw(f"s_nop {n-1}", n)
                    pend -= n
                hist.clear()
            continue
        ins = it
        touched = set(ins.src) | set(ins.dst)
        vm = lg = None
        for i, (t, d) in enumerate(vmq):
            if d & touched:
                vm = len(vmq) - 1 - i
        for i, (k, d) in enumerate(lgq):
            if d & touched:
                lg = len(lgq) - 1 - i
        if vm is not None or lg is not None:
            do_wait(vm, lg)
        if ins.kind == 'vmem' and len(vmq) >= 63:
            do_wait(vm=62)
        if ins.kind in ('ds', 'smem') and len(lgq) >= 15:
            do_wait(lg=14)
        n = need(ins)
        while n > 0:
            k = min(n, 16)
            emit_raw(f"s_nop {k-1}", k)
            n -= k
        if ins.op == 's_waitcnt':
            m = re.search(r'vmcnt\((\d+)\)', ins.text)
            if m and int(m.group(1)) < len(vmq):
                del vmq[:len(vmq) - int(m.group(1))]
            m = re.search(r'lgkmcnt\((\d+)\)', ins.text)
            if m and int(m.group(1)) < len(lgq):
                del lgq[:len(lgq) - int(m.group(1))]
        out.append('    ' + ins.text)
        hist.append((ins, pos))
        if ins.op == 's_nop':
            pos += int(ins.text.split()[1]) + 1
        else:
            pos += 1
        hist[:] = [(p, q) for p, q in hist if pos - q <= 20]
        if ins.kind == 'vmem':
            vmq.append((ins.tag, set(ins.dst)))
            assert ins.tag is None or ins.tag not in tags_waited, f"tag issued after its wait: {ins.tag}"
            tags_seen.add(ins.tag)
        elif ins.kind == 'ds':
            lgq.append(('ds', set(ins.dst)))
        elif ins.kind == 'smem':
            lgq.append(('smem', set(ins.dst)))
    return out


def interleave(main, fill, budget=24, start=0):
    out = []
    fi = 0
    gap = None
    nm = 0
    for it in main:
        if isinstance(it, I) and it.kind == 'mfma':
            if gap is not None and nm > start:
                while fi < len(fill) and gap + fill[fi].cost <= budget:
                    gap += fill[fi].cost
                    out.append(fill[fi])
                    fi += 1
            gap = 0
            nm += 1
            out.append(it)
        else:
            out.append(it)
            if gap is not None:
                gap += it.cost
    if gap is not None:
        while fi < len(fill) and gap + fill[fi].cost <= budget:
            gap += fill[fi].cost
            out.append(fill[fi])
            fi += 1
    return out, fill[fi:]


def spread(main, units, period, phase=0):
    out = []
    t = 0
    nxt = phase
    ui = 0
    for k, it in enumerate(main):
        out.append(it)
        t += 32 if (isinstance(it, I) and it.kind == 'mfma') else it.cost
        nx = main[k + 1] if k + 1 < len(main) else None
        if isinstance(nx, I) and nx.op.startswith(('s_cselect', 's_subb', 's_addc', 's_cbranch_scc')):
            continue
        while ui < len(units) and t >= nxt:
            out += units[ui]
            ui += 1
            nxt += period
    return out, units[ui:]
```

```python
import sys, math, struct
import numpy as np
sys.path.insert(0, 'tools')
from emit import *

NAME = "recurrent_scan__spectral_gfnet__glu_gated_geglu__prompt_kernel"
FL_OFF = 0x000000
CS_OFF = 0x010000
Y1_OFF = 0x200000
WT_OFF = 0x400000
H_OFF = 0x600000
V_OFF = 0xD00000
ST_OFF = 0x1000000
PR_OFF = ST_OFF + 0x40000
WS_USED = 0x1100000
NPROBE = 12

OPT = dict(stamps=False, gap_budget=24, spin_limit=1 << 18, poll_cs=72, k3_period=64, codepf=True)

C1 = -2.0 * math.log2(math.e) * math.sqrt(2.0 / math.pi)
C2 = C1 * 0.044715
MISC = 9 * 16384
M_YX, M_ST, M_CS = MISC, MISC + 8192, MISC + 9216
TBL_BYTES = 48 * 1024
L_F32, L_F64, L_T2, L_WT = 0, 8*1024, 32*1024, 64*1024
RING = 12
L_SX = 4 * RING * 2048

S_X, S_IDX, S_W, S_G, S_NT, S_MT, S_NONCE = 16, 17, 18, 19, 20, 21, 22
R_WS, R_WG, R_WU, R_XX, R_WR, R_WI, R_DBG = 24, 28, 32, 36, 40, 44, 48


def fbits(x):
    return struct.unpack('<I', struct.pack('<f', x))[0]


def hexf(x):
    return f"0x{fbits(x):08x}"


def srd(p, d, base, nbytes):
    p(f"s_mov_b32 s{d}, s{base}")
    p(f"s_mov_b32 s{d+1}, s{base+1}")
    p(f"s_mov_b32 s{d+2}, {nbytes}")
    p(f"s_mov_b32 s{d+3}, 0x00020000")


def R(n):
    return f"s[{n}:{n+3}]"


def probe(p, i):
    if OPT['stamps']:
        p(f"s_memtime s[{64+2*i}:{65+2*i}]")


def stamp_begin(p):
    if OPT['stamps']:
        p("s_memrealtime s[90:91]")
        for i in range(NPROBE):
            p(f"s_mov_b32 s{64+2*i}, 0")
        p("s_memtime s[88:89]")


def stamp_end(p, vtmp):
    if OPT['stamps']:
        p.wait_all_vm()
        p("s_memrealtime s[92:93]")
        p("s_memtime s[86:87]")
        p.wait_lgkm()
        p(f"v_mov_b32 v{vtmp}, s90")
        p(f"v_mov_b32 v{vtmp+1}, s92")
        p(f"v_lshrrev_b32 v{vtmp+2}, 6, v0")
        p(f"v_lshlrev_b32 v{vtmp+2}, 3, v{vtmp+2}")
        p(f"s_lshl_b32 s94, s2, 6")
        p(f"s_add_u32 s94, s94, {ST_OFF}")
        p(f"v_and_b32 v{vtmp+3}, 63, v0")
        p(f"v_cmp_eq_u32 vcc, 0, v{vtmp+3}")
        p("s_and_saveexec_b64 s[96:97], vcc")
        p(f"buffer_store_dwordx2 v[{vtmp}:{vtmp+1}], v{vtmp+2}, {R(R_WS)}, s94 offen")
        p(f"v_lshlrev_b32 v{vtmp+2}, 3, v{vtmp+2}")
        p(f"s_lshl_b32 s94, s2, 9")
        p(f"s_add_u32 s94, s94, {PR_OFF}")
        for i in range(NPROBE):
            p(f"s_sub_u32 s95, s{64+2*i}, s88")
            p(f"v_mov_b32 v{vtmp}, s95")
            p(f"buffer_store_dword v{vtmp}, v{vtmp+2}, {R(R_WS)}, s94 offen offset:{4*i}")
        p("s_mov_b64 exec, s[96:97]")


class Ctx:
    def __init__(self, role):
        self.role = role
        self.tail = []
        self.n = 0

    def await_flags(self, vflag, vaddr, delta, srdn=R_WS, soff=None, nonce=False):
        self.n += 1
        lab = f"{self.role}_AW{self.n}"
        so = "0" if soff is None else f"s{soff}"
        ld = f"buffer_load_dword v{vflag}, v{vaddr}, {R(srdn)}, {so} offen sc1"
        a_ = Prog()
        a_(ld)
        c = Prog()

        def cmp_(q):
            if nonce:
                q(f"v_cmp_eq_u32 vcc, 0, v{vflag}")
            else:
                q(f"v_subrev_u32 v{vflag}, s{S_NONCE}, v{vflag}")
                if delta:
                    q(f"v_subrev_u32 v{vflag}, {delta}, v{vflag}")
                q(f"v_cmp_lt_u32 vcc, {2 - delta}, v{vflag}")
        cmp_(c)
        c("s_nop 1")
        c(f"s_cbranch_vccnz {lab}_SPIN")
        c(f"{lab}_OK:")
        if nonce:
            c(f"v_readfirstlane_b32 s{S_NONCE}, v{vflag}")
        t = Prog()
        t(f"s_mov_b32 s63, {OPT['spin_limit']}")
        t(f"{lab}_L:")
        t("s_sleep 1")
        t(ld)
        t("s_sub_u32 s63, s63, 1")
        t("s_waitcnt vmcnt(0)")
        cmp_(t)
        t("s_cmp_eq_u32 s63, 0")
        t(f"s_cbranch_scc1 {lab}_OK")
        t("s_nop 1")
        t(f"s_cbranch_vccnz {lab}_L")
        t(f"s_branch {lab}_OK")
        self.tail += [f"{lab}_SPIN:"] + finalize(t.items)
        return a_.items, c.items

    def set_flag(self, delta, vt):
        q = Prog()
        q(f"s_add_u32 s62, s{S_NONCE}, {delta}")
        q(f"v_mov_b32 v{vt}, s62")
        q(f"s_cmp_eq_u32 s{S_W}, 0")
        q(f"s_cselect_b32 s62, 0, 0x7ffffff0")
        q(f"v_mov_b32 v{vt+1}, s62")
        q(f"s_lshl_b32 s62, s2, 7")
        q("s_mov_b64 exec, 1")
        q(f"buffer_store_dword v{vt}, v{vt+1}, {R(R_WS)}, s62 offen sc1")
        q("s_mov_b64 exec, -1")
        return q.items


V_C, V_RS = 4, 6
AD, DV, XV, XR = 8, 20, 24, 28
ST4, CSF = 36, 40
WTL, CSL, DD, XT, FF = 48, 64, 80, 96, 128
A_X, A_WF, A_M = 0, 128, 160


def slot(idx):
    return (idx % 9) * 16384


def w_dma(chunk, ks):
    U = []
    for k in range(4):
        q = Prog()
        if k == 0:
            q(f"s_add_u32 m0, s53, {slot(8 + chunk*8 + ks)}")
            q(f"s_add_u32 s55, s52, {ks*64*3584 + chunk*128}")
        q(f"buffer_load_dwordx4 v{DV+k}, {R(R_WG if k < 2 else R_WU)}, s55 offen offset:{k*1024} lds", tag=('W', chunk, ks))
        U.append(q.items)
    return U


def phase1(cx, p):
    gemm = cx.role == 'G'
    p(f"s_and_b32 s{S_MT}, s{S_X}, 3")
    p(f"s_lshl_b32 s{S_MT}, s{S_MT}, 2")
    p(f"s_and_b32 s52, s{S_IDX}, 3")
    p(f"s_add_u32 s{S_MT}, s{S_MT}, s52")
    p(f"s_lshr_b32 s{S_NT}, s{S_X}, 2")
    if gemm:
        p(f"s_mul_i32 s{S_NT}, s{S_NT}, 7")
        p(f"s_lshr_b32 s52, s{S_IDX}, 2")
        p(f"s_add_u32 s{S_NT}, s{S_NT}, s52")
    else:
        p(f"s_add_u32 s{S_NT}, s{S_NT}, 14")
    p(f"s_lshl_b32 s{S_G}, s{S_MT}, 2")
    p(f"s_add_u32 s{S_G}, s{S_G}, s{S_W}")
    p("v_and_b32 v1, 63, v0")
    p("v_lshlrev_b32 v2, 4, v1")
    p("v_lshrrev_b32 v41, 3, v1")
    p("v_and_b32 v42, 7, v1")
    p("v_lshrrev_b32 v43, 4, v1")
    p("v_xor_b32 v42, v42, v43")
    p("v_lshlrev_b32 v44, 16, v41")
    p(f"v_lshl_add_u32 v{XV}, v42, 4, v44")
    p("v_xor_b32 v42, 4, v42")
    p(f"v_lshl_add_u32 v{XV+1}, v42, 4, v44")
    p(f"v_add_u32 v{XV+1}, {8*65536-1024}, v{XV+1}")
    p(f"v_add_u32 v{XV+2}, {16*65536-2048}, v{XV}")
    p(f"v_add_u32 v{XV+3}, {16*65536-2048}, v{XV+1}")
    p(f"s_lshl_b32 s53, s{S_W}, 12")
    p(f"s_lshl_b32 s54, s{S_G}, 10")
    p("s_waitcnt lgkmcnt(0)")
    srd(p, R_XX, 4, 2097152)
    units = []
    for ks in range(8):
        for z in range(4):
            q = Prog()
            if z == 0:
                q(f"s_add_u32 m0, s53, {slot(ks)}")
                q(f"s_add_u32 s55, s54, {ks*128}")
            q(f"buffer_load_dwordx4 v{XV+z}, {R(R_XX)}, s55 offen offset:{z*1024} lds", tag=('X', ks))
            units.append(q.items)
    for u in units[:12]:
        p.add(u)
    units = units[12:]
    probe(p, 0)
    srd(p, R_WS, 6, WS_USED)
    srd(p, R_DBG, 14, 256)
    lab = cx.role + "_NONCE"
    if gemm:
        p("s_or_b32 s56, s2, s18")
        p("s_cmp_lg_u32 s56, 0")
        p(f"s_cbranch_scc1 {lab}_SKIP")
        t = Prog()
        t("v_lshlrev_b32 v44, 7, v1")
        for k in range(4):
            t(f"s_mov_b32 s56, {FL_OFF + k*8192}")
            t(f"buffer_load_dword v{WTL+k}, v44, {R(R_WS)}, s56 offen sc1")
        t("s_waitcnt vmcnt(0)")
        t("s_mov_b32 s56, -3")
        t(f"{lab}_L:")
        t("s_add_u32 s56, s56, 4")
        for k in range(4):
            t(f"v_subrev_u32 v{WTL+4+k}, s56, v{WTL+k}")
        t(f"v_min_u32 v{WTL+4}, v{WTL+4}, v{WTL+5}")
        t(f"v_min3_u32 v{WTL+4}, v{WTL+4}, v{WTL+6}, v{WTL+7}")
        t(f"v_cmp_ge_u32 vcc, 3, v{WTL+4}")
        t("s_nop 1")
        t(f"s_cbranch_vccnz {lab}_L")
        t("v_mov_b32 v44, s56")
        t("v_mov_b32 v45, 0")
        t("s_mov_b64 exec, 1")
        t(f"buffer_store_dword v44, v45, {R(R_DBG)}, 0 offen sc1")
        t("s_mov_b64 exec, -1")
        t("s_waitcnt vmcnt(0)")
        for l in finalize(t.items):
            p.items.append(Marker('raw', l))
        p(f"{lab}_SKIP:")
    svc = Prog()
    srd(svc, R_WR, 8, 2048*257*2)
    srd(svc, R_WI, 10, 2048*257*2)
    if gemm:
        srd(svc, R_WG, 12, 512*1792*2)
        svc(f"s_sub_u32 s{R_WU}, s58, 2048")
        svc(f"s_subb_u32 s{R_WU+1}, s59, 0")
        svc(f"s_mov_b32 s{R_WU+2}, {512*1792*2 + 2048}")
        svc(f"s_mov_b32 s{R_WU+3}, 0x00020000")
        svc("v_and_b32 v42, 7, v1")
        svc("v_mul_u32_u24 v44, 3584, v41")
        svc("v_lshl_add_u32 v47, v42, 4, v44")
        svc("v_and_b32 v43, 2, v41")
        svc("v_xor_b32 v42, v42, v43")
        svc(f"v_lshl_add_u32 v{DV}, v42, 4, v44")
        svc("v_xor_b32 v42, 4, v42")
        svc(f"v_lshl_add_u32 v{DV+2}, v42, 4, v44")
        svc(f"v_add_u32 v{DV+1}, {8*3584-1024}, v{DV}")
        svc(f"v_add_u32 v{DV+3}, {8*3584-1024}, v{DV+2}")
        svc(f"s_mul_i32 s52, s{S_W}, {16*3584}")
        svc(f"s_lshl_b32 s56, s{S_NT}, 8")
        svc("s_add_u32 s52, s52, s56")
        svc(f"s_mul_i32 s60, s{S_MT}, {32*3584}")
        svc("s_add_u32 s60, s60, s56")
        svc(f"s_and_b32 s61, s{S_W}, 1")
        svc("s_lshl_b32 s61, s61, 7")
        svc("s_add_u32 s60, s60, s61")
        svc(f"s_cmp_ge_u32 s{S_W}, 2")
        svc("s_cselect_b32 s56, s58, s12")
        svc("s_cselect_b32 s57, s59, s13")
        svc(f"s_mov_b32 s58, {512*1792*2}")
        svc("s_mov_b32 s59, 0x00020000")
    svc("v_and_b32 v42, 3, v0")
    svc("v_lshrrev_b32 v43, 2, v0")
    svc(f"s_lshr_b32 s61, s{S_IDX}, 4")
    svc("s_lshl_b32 s61, s61, 7")
    svc("v_add_u32 v43, s61, v43")
    svc("v_cmp_eq_u32 vcc, 0, v43")
    svc("v_mov_b32 v44, 0x100")
    svc("v_mul_u32_u24 v45, 514, v42")
    svc("v_cndmask_b32 v44, v43, v44, vcc")
    svc("v_lshl_add_u32 v44, v44, 1, v45")
    svc("v_lshl_add_u32 v45, v43, 1, v45")
    svc("v_lshlrev_b32 v43, 13, v43")
    svc("v_lshl_add_u32 v46, v42, 4, v43")
    svc(f"s_bfe_u32 s61, s{S_IDX}, 0x10003")
    svc(f"s_lshl_b32 s62, s{S_X}, 1")
    svc("s_add_u32 s61, s61, s62")
    svc(f"s_and_b32 s62, s{S_IDX}, 7")
    svc("s_lshl_b32 s23, s61, 9")
    svc("s_lshl_b32 s63, s62, 6")
    svc("s_add_u32 s23, s23, s63")
    svc(f"s_add_u32 s23, s23, {WT_OFF}")
    svc("s_lshl_b32 s61, s61, 5")
    svc("s_add_u32 s61, s61, s62")
    svc("s_mul_i32 s61, s61, 2056")
    nsetup = len(svc.items)
    small = []
    if gemm:
        for k in range(4):
            q = Prog()
            if k:
                q(f"s_add_u32 s60, s60, {8*3584}")
            q(f"buffer_load_dwordx4 {v(CSL+4*k,4)}, v47, s[56:59], s60 offen")
            small.append(q.items)
    for e in range(4):
        for z in range(2):
            for c in range(2):
                q = Prog()
                if e and z == 0 and c == 0:
                    q("s_add_u32 s61, s61, 16448")
                q(f"buffer_load_ushort v{WTL+z*8+c*4+e}, v{44+z}, {R(R_WR if c == 0 else R_WI)}, s61 offen{' offset:128' if z else ''}")
                small.append(q.items)
    q = Prog()
    q("v_mov_b32 v3, 0")
    iss, chk_nonce = cx.await_flags(47, 3, 0, srdn=R_DBG, nonce=True)
    S0, S1 = DD, DD + 8
    svc("v_and_b32 v41, 31, v1")
    svc("v_lshrrev_b32 v42, 5, v1")
    svc("v_and_b32 v43, 1, v1")
    svc("v_lshrrev_b32 v36, 1, v41")
    svc(f"s_lshl_b32 s62, s{S_NT}, 4")
    svc("v_add_u32 v36, s62, v36")
    svc("v_or_b32 v37, v36, v43")
    svc("v_cmp_eq_u32 vcc, 0, v37")
    svc(f"v_and_b32 v{CSF}, 1, v36")
    svc(f"v_mul_u32_u24 v{CSF}, 0x8000, v{CSF}")
    svc(f"v_lshl_or_b32 v{CSF}, v{CSF}, 16, v{CSF}")
    svc("v_mov_b32 v37, 0x100")
    svc("v_cvt_f32_u32 v38, v43")
    svc("v_cndmask_b32 v36, v36, v37, vcc")
    svc("v_cvt_f32_u32 v36, v36")
    svc(f"v_mul_f32 v36, {hexf(1/512)}, v36")
    svc(f"v_mul_f32 v38, {hexf(-0.25)}, v38")
    svc(f"v_add_f32 v38, {hexf(0.25)}, v38")
    svc("v_cvt_f32_u32 v39, v42")
    svc(f"v_mul_f32 v37, {hexf(8.0)}, v39")
    svc(f"v_fma_f32 v{S0}, -v37, v36, v38")
    svc(f"v_mul_f32 v37, {hexf(16.0)}, v36")
    svc(f"v_sub_f32 v38, {hexf(0.25)}, v37")
    svc("v_sin_f32 v38, v38")
    for i in range(1, 8):
        svc(f"v_sub_f32 v{S0+i}, v{S0+i-1}, v36")
    for i in range(8):
        svc(f"v_sub_f32 v{S1+i}, v{S0+i}, v37")
    svc("v_add_f32 v38, v38, v38")
    for i in range(16):
        svc(f"v_sin_f32 v{S0+i}, v{S0+i}")
    svc("s_mov_b32 s62, 0x3f803f80")
    for t in range(16):
        cur = S0 if t % 2 == 0 else S1
        oth = S1 if t % 2 == 0 else S0
        if t >= 2:
            for i in range(8):
                svc(f"v_fma_f32 v{cur+i}, v38, v{oth+i}, -v{cur+i}")
        for i in range(4):
            svc(f"v_cvt_pk_bf16_f32 v{FF+4*t+i}, v{cur+2*i}, v{cur+2*i+1}")
    for k in range(64):
        svc(f"v_xor_b32 v{FF+64+k}, v{CSF}, v{FF+k}")
    svc("v_cvt_f32_u32 v36, v41")
    svc(f"v_mul_f32 v36, {hexf(1/2048)}, v36")
    svc(f"v_cvt_f32_u32 v37, s{S_G}")
    svc(f"v_mul_f32 v39, {hexf(256.0)}, v39")
    svc("v_add_f32 v37, v37, v39")
    svc("v_mul_f32 v37, v37, v36")
    svc(f"v_mul_f32 v36, {hexf(64.0)}, v36")
    for t in range(2):
        for i in range(8):
            n1 = 16*t + 8*(i >> 2) + (i & 3)
            svc(f"v_mov_b32 v39, {hexf(float(n1))}")
            svc(f"v_fma_f32 v{S1+i}, v39, v36, v37")
        for i in range(8):
            svc(f"v_cos_f32 v{S0+i}, v{S1+i}")
        for i in range(8):
            svc(f"v_sin_f32 v{S1+i}, v{S1+i}")
        for i in range(4):
            svc(f"v_cvt_pk_bf16_f32 v{S0+i}, v{S0+2*i}, v{S0+2*i+1}")
        for i in range(4):
            svc(f"v_cvt_pk_bf16_f32 v{S1+i}, v{S1+2*i}, v{S1+2*i+1}")
        for i in range(4):
            svc(f"v_accvgpr_write_b32 a{A_M+4*t+i}, v{S0+i}")
        for i in range(4):
            svc(f"v_accvgpr_write_b32 a{A_M+8+4*t+i}, v{S1+i}")
    svc("v_bfe_u32 v36, v1, 1, 3")
    svc("v_xor_b32 v36, v36, v42")
    svc("v_lshlrev_b32 v37, 7, v41")
    svc("v_add_u32 v37, s53, v37")
    for tp in range(4):
        svc(f"v_xor_b32 v38, {2*tp}, v36")
        svc(f"v_lshl_add_u32 v{XR+tp}, v38, 4, v37")
        svc(f"v_add_u32 v{XR+4+tp}, 0x10000, v{XR+tp}")
    if gemm:
        svc("v_bfe_u32 v36, v1, 2, 2")
        svc("v_and_b32 v37, 3, v1")
        svc("v_bfe_u32 v38, v1, 4, 1")
        svc("v_lshl_add_u32 v39, v42, 3, v36")
        svc("v_lshlrev_b32 v39, 7, v39")
        svc("v_lshl_add_u32 v39, v38, 11, v39")
        svc("v_and_b32 v43, 1, v37")
        svc("v_and_b32 v36, 2, v36")
        svc("v_xor_b32 v43, v43, v36")
        svc("v_lshlrev_b32 v38, 2, v38")
        svc("v_xor_b32 v43, v43, v38")
        svc("v_lshl_add_u32 v39, v43, 4, v39")
        svc("v_lshrrev_b32 v37, 1, v37")
        svc("v_lshl_add_u32 v39, v37, 3, v39")
        for T in range(4):
            svc(f"v_xor_b32 v{AD+T}, {T*32}, v39")
            svc(f"v_add_u32 v{AD+4+T}, 0x10000, v{AD+T}")
            svc(f"v_add_u32 v{AD+8+T}, 0x20000, v{AD+T}")
        svc(f"v_mov_b32 v{V_C}, {hexf(C1)}")
        svc(f"v_mov_b32 v{V_C+1}, {hexf(C2)}")
    for k in range(4):
        svc(f"v_mov_b32 v{ST4+k}, 0")
    extra = []
    if OPT['codepf']:
        q2 = Prog()
        q2("s_getpc_b64 s[98:99]")
        q2(f"{cx.role}_PC:")
        q2(f"s_sub_u32 s98, s98, {cx.role}_PC-{NAME}")
        q2("s_subb_u32 s99, s99, 0")
        q2(f"s_mov_b32 s100, CODE_END-{NAME}")
        q2("s_mov_b32 s101, 0x00020000")
        q2("s_mov_b32 s96, s98")
        q2("s_mov_b32 s97, s99")
        q2("s_mov_b32 s98, s100")
        q2("s_mov_b32 s99, s101")
        q2(f"s_lshl_b32 s100, s{S_IDX}, 12")
        q2("v_lshlrev_b32 v3, 4, v0")
        q2("buffer_load_dwordx4 a[176:179], v3, s[96:99], s100 offen")
        extra = [q2.items]
    wun = (w_dma(0, 0) if gemm else [])
    mer, left = spread(svc.items[:nsetup], units, 72)
    p.add(mer)
    mer, left = spread(svc.items[nsetup:], left + small + extra + [q.items + iss] + wun, 72)
    p.add(mer)
    for u in left:
        p.add(u)
    probe(p, 1)
    units = []
    if gemm:
        for ks in range(1, 8):
            units += w_dma(0, ks)
        for ks in range(8):
            units += w_dma(1, ks)

    def xreads(ks):
        q = Prog()
        q.wait_vm(('X', ks))
        off = slot(ks)
        for tp in range(4):
            ad = XR + tp + 4 * (off >> 16)
            q(f"ds_read_b128 {v(XT + (ks & 1)*16 + 4*tp, 4)}, v{ad} offset:{off & 0xffff}")
            q(f"ds_read_b128 {a(A_X + ks*16 + 4*tp, 4)}, v{ad} offset:{off & 0xffff}")
        return q.items
    p.add(xreads(0))
    for ks in range(8):
        if ks + 1 < 8:
            p.add(xreads(ks + 1))
        p.touch(a(A_X + ks*16, 16))
        for tp in range(4):
            t = ks*4 + tp
            p(f"v_mfma_f32_32x32x16_bf16 {v(DD,16)}, {a(A_X+4*t,4)}, {v(FF+4*t,4)}, {'0' if t == 0 else v(DD,16)}")
            if units and ks < 7:
                p.add(units.pop(0))
            for i in range(4):
                r = XT + (ks & 1)*16 + 4*tp + i
                p(f"v_dot2c_f32_bf16 v{ST4+(i&1)}, s62, v{r}")
                p(f"v_dot2c_f32_bf16 v{ST4+2+(i&1)}, v{r}, v{r}")
    probe(p, 2)
    a0 = Prog()
    if gemm:
        E = XT + 16
        a0("s_mov_b32 s60, 0x3f80")
        a0("s_mov_b32 s61, 0x3f800000")
        for k in range(4):
            for d in range(4):
                r = CSL + 4*k + d
                if k == 0:
                    a0(f"v_lshlrev_b32 v{E+2*d}, 16, v{r}")
                    a0(f"v_and_b32 v{E+2*d+1}, 0xffff0000, v{r}")
                else:
                    a0(f"v_lshlrev_b32 v{E+8+(d&1)}, 16, v{r}")
                    a0(f"v_and_b32 v{r}, 0xffff0000, v{r}")
                    a0(f"v_add_f32 v{E+2*d}, v{E+2*d}, v{E+8+(d&1)}")
                    a0(f"v_add_f32 v{E+2*d+1}, v{E+2*d+1}, v{r}")
        for e in range(8):
            a0(f"v_add_f32_dpp v{E+e}, v{E+e}, v{E+e} row_ror:8 row_mask:0xf bank_mask:0xf")
        a0(f"v_bfe_u32 v{E+12}, v1, 1, 2")
        a0(f"v_lshlrev_b32 v{E+12}, 5, v{E+12}")
        for k in range(4):
            a0(f"v_permlane16_swap_b32 v{E+2*k}, v{E+2*k+1}")
        for k in range(4):
            a0(f"v_add_f32 v{E+8+k}, v{E+2*k}, v{E+2*k+1}")
        a0(f"v_and_b32 v{E+13}, 1, v1")
        a0(f"v_lshl_add_u32 v{E+12}, v{E+13}, 2, v{E+12}")
        a0(f"v_permlane32_swap_b32 v{E+8}, v{E+9}")
        a0(f"v_permlane32_swap_b32 v{E+10}, v{E+11}")
        a0(f"v_add_f32 v{E}, v{E+8}, v{E+9}")
        a0(f"v_add_f32 v{E+1}, v{E+10}, v{E+11}")
        a0(f"v_lshrrev_b32 v{E+13}, 4, v1")
        a0(f"v_add_lshl_u32 v{E+12}, v{E+12}, v{E+13}, 2")
        a0(f"s_lshl_b32 s60, s{S_NT}, 4")
        a0(f"s_add_u32 s60, s60, s{S_MT}")
        a0("s_lshl_b32 s60, s60, 10")
        a0(f"s_and_b32 s61, s{S_W}, 1")
        a0("s_lshl_b32 s61, s61, 9")
        a0("s_add_u32 s60, s60, s61")
        a0(f"s_lshr_b32 s61, s{S_W}, 1")
        a0("s_lshl_b32 s61, s61, 6")
        a0("s_add_u32 s60, s60, s61")
        a0(f"s_add_u32 s60, s60, {CS_OFF}")
        a0(f"buffer_store_dword v{E}, v{E+12}, {R(R_WS)}, s60 offen sc1", tag='P0st')
        a0(f"buffer_store_dword v{E+1}, v{E+12}, {R(R_WS)}, s60 offen offset:32 sc1", tag='P0st')
        a0.items = a0.items[2:]
    a1 = Prog()
    a1(f"v_add_f32 v{ST4}, v{ST4}, v{ST4+1}")
    a1(f"v_add_f32 v{ST4+2}, v{ST4+2}, v{ST4+3}")
    a1(f"s_lshl_b32 s60, s{S_W}, 7")
    a1(f"v_mov_b32 v{ST4+1}, v{ST4}")
    a1(f"v_mov_b32 v{ST4+3}, v{ST4+2}")
    a1(f"s_add_u32 s60, s60, {M_ST}")
    a1(f"v_lshl_add_u32 v{CSF}, v41, 2, s60")
    a1(f"v_permlane32_swap_b32 v{ST4}, v{ST4+1}")
    a1(f"v_permlane32_swap_b32 v{ST4+2}, v{ST4+3}")
    a1(f"v_add_f32 v{ST4}, v{ST4}, v{ST4+1}")
    a1(f"v_add_f32 v{ST4+2}, v{ST4+2}, v{ST4+3}")
    a1(f"v_mul_f32 v{ST4}, {hexf(1/512)}, v{ST4}")
    a1(f"v_mul_f32 v{ST4+2}, {hexf(1/512)}, v{ST4+2}")
    a1(f"v_fma_f32 v{ST4+2}, -v{ST4}, v{ST4}, v{ST4+2}")
    a1(f"v_max_f32 v{ST4+2}, 0, v{ST4+2}")
    a1(f"v_cvt_pk_bf16_f32 v{ST4}, v{ST4}, v{ST4+2}")
    a1(f"v_and_b32 v{ST4+2}, 0xffff0000, v{ST4}")
    a1(f"v_add_f32 v{ST4+2}, {hexf(1e-5)}, v{ST4+2}")
    a1(f"v_cvt_pk_bf16_f32 v{ST4+2}, v{ST4+2}, v{ST4+2}")
    a1(f"v_and_b32 v{ST4+2}, 0xffff0000, v{ST4+2}")
    a1(f"v_sqrt_f32 v{ST4+2}, v{ST4+2}")
    a1(f"v_lshl_add_u32 v{ST4+3}, v42, 4, s60")
    a1(f"v_cvt_pk_bf16_f32 v{ST4+2}, v{ST4+2}, v{ST4+2}")
    a1(f"v_and_b32 v{V_RS+1}, 0xffff0000, v{ST4+2}")
    a1(f"v_rcp_f32 v{V_RS}, v{V_RS+1}")
    a1.add(chk_nonce)
    a1(f"ds_write_b32 v{CSF}, v{V_RS}")
    for rq in range(4):
        a1(f"ds_read_b128 {v(XT+4*rq,4)}, v{ST4+3} offset:{rq*32}")
    for z in range(2):
        for e in range(4):
            a1(f"v_lshl_or_b32 v{WTL+z*8+e}, v{WTL+z*8+4+e}, 16, v{WTL+z*8+e}")
        if z:
            a1(f"s_add_u32 s23, s23, {64*8192}")
        a1(f"buffer_store_dwordx4 {v(WTL+z*8,4)}, v46, {R(R_WS)}, s23 offen sc1", tag='P1st')
    for r in range(16):
        a1(f"v_mul_f32 v{DD+r}, v{DD+r}, v{XT+r}")
    YB = WTL + 4
    for k in range(8):
        a1(f"v_cvt_pk_bf16_f32 v{YB + k + (4 if k >= 4 else 0)}, v{DD+2*k}, v{DD+2*k+1}")
    PP, QQ = DD, XT
    m1 = Prog()
    for t in range(2):
        m1(f"v_mfma_f32_32x32x16_bf16 {v(PP,16)}, {v(YB+8*t,4)}, {a(A_M+4*t,4)}, {'0' if t == 0 else v(PP,16)}")
        m1(f"v_mfma_f32_32x32x16_bf16 {v(QQ,16)}, {v(YB+8*t,4)}, {a(A_M+8+4*t,4)}, {'0' if t == 0 else v(QQ,16)}")
    a2 = Prog()
    a2(f"s_lshl_b32 s60, s{S_W}, 1")
    a2(f"s_add_u32 s60, s60, {M_YX}")
    a2(f"v_lshl_add_u32 v{ST4+2}, v41, 3, s60")
    a2(f"v_lshl_add_u32 v{ST4+2}, v42, 10, v{ST4+2}")
    a2(f"s_lshl_b32 s60, s{S_W}, 11")
    a2(f"s_add_u32 s60, s60, {M_YX}")
    a2(f"v_add_u32 v{ST4+1}, s60, v2")
    a2(f"v_lshrrev_b32 v{CSF}, 4, v1")
    a2(f"v_lshlrev_b32 v{CSF}, 12, v{CSF}")
    a2(f"v_and_b32 v{ST4+3}, 15, v1")
    a2(f"v_lshl_add_u32 v{CSF}, v{ST4+3}, 4, v{CSF}")
    for r in range(0, 16, 2):
        a2(f"v_add_f32 v{PP+r}, v{PP+r}, v{QQ+r+1}")
        a2(f"v_sub_f32 v{PP+r+1}, v{PP+r+1}, v{QQ+r}")
    for k in range(8):
        a2(f"v_cvt_pk_bf16_f32 v{QQ+k}, v{PP+2*k}, v{PP+2*k+1}")
    for k in range(8):
        jc = 8*(k >> 1) + 2*(k & 1)
        a2(f"ds_write_b16 v{ST4+2}, v{QQ+k} offset:{jc*256}")
        a2(f"ds_write_b16_d16_hi v{ST4+2}, v{QQ+k} offset:{(jc+1)*256}")
    a3 = Prog()
    a3(f"ds_read_b128 {v(QQ+8,4)}, v{ST4+1}")
    a3(f"ds_read_b128 {v(QQ+12,4)}, v{ST4+1} offset:1024")
    a3(f"s_lshl_b32 s60, s{S_NT}, 2")
    a3(f"s_add_u32 s60, s60, s{S_W}")
    a3("s_lshl_b32 s60, s60, 15")
    a3(f"s_lshl_b32 s61, s{S_MT}, 8")
    a3("s_add_u32 s60, s60, s61")
    a3(f"s_add_u32 s60, s60, {Y1_OFF}")
    a3("s_add_u32 s61, s60, 16384")
    a3(f"buffer_store_dwordx4 {v(QQ+8,4)}, v{CSF}, {R(R_WS)}, s60 offen sc1", tag='P1st')
    a3(f"buffer_store_dwordx4 {v(QQ+12,4)}, v{CSF}, {R(R_WS)}, s61 offen sc1", tag='P1st')
    return units, a0.items, a1.items, m1.items, a2.items, a3.items


def gemm_phase(cx, p, units, a0, a1, m1, a2, a3, p3_units):
    ACC = 128
    ET = 64
    LA = 6
    RB, RA, CV, CP = 88, 92, 100, 108

    def reads(T, step, buf):
        chunk, ks, tp = T >> 2, step >> 2, step & 3
        off = slot(8 + chunk*8 + ks) + tp * 4096
        ad = AD + (T & 3) + 4 * (off >> 16)
        off &= 0xffff
        r = A_WF + buf * 4
        q = Prog()
        q(f"ds_read_b64_tr_b16 {a(r,2)}, v{ad} offset:{off}")
        q(f"ds_read_b64_tr_b16 {a(r+2,2)}, v{ad} offset:{off+512}")
        return q.items

    def epilogue(T, packed):
        q = Prog()
        G, Uu = ACC + 16*T, ACC + 16*T + 8
        Z = ET + (T & 1) * 8
        PK = ET + 16 + (T & 1) * 4
        if not packed:
            for i in range(8):
                q(f"v_mul_f32 v{G+i}, v{G+i}, v{V_RS}")
            for i in range(8):
                q(f"v_mul_f32 v{Z+i}, v{G+i}, v{G+i}")
            for i in range(8):
                q(f"v_fma_f32 v{Z+i}, v{Z+i}, v{V_C+1}, v{V_C}")
            for i in range(8):
                q(f"v_mul_f32 v{Z+i}, v{Z+i}, v{G+i}")
            for i in range(8):
                q(f"v_exp_f32 v{Z+i}, v{Z+i}")
                q(f"v_mul_f32 v{G+i}, v{G+i}, v{Uu+i}")
            for i in range(8):
                q(f"v_fma_f32 v{Z+i}, v{Z+i}, v{V_RS+1}, v{V_RS+1}")
            for i in range(8):
                q(f"v_rcp_f32 v{Z+i}, v{Z+i}")
            for i in range(8):
                q(f"v_mul_f32 v{G+i}, v{G+i}, v{Z+i}")
        else:
            rs = v(V_RS, 2)
            for i in range(0, 8, 2):
                q(f"v_pk_mul_f32 {v(G+i,2)}, {v(G+i,2)}, {rs} op_sel_hi:[1,0]")
            for i in range(0, 8, 2):
                q(f"v_pk_mul_f32 {v(Z+i,2)}, {v(G+i,2)}, {v(G+i,2)}")
            for i in range(0, 8, 2):
                q(f"v_pk_fma_f32 {v(Z+i,2)}, {v(Z+i,2)}, {v(V_C,2)}, {v(V_C,2)} op_sel:[0,1,0] op_sel_hi:[1,1,0]")
            for i in range(0, 8, 2):
                q(f"v_pk_mul_f32 {v(Z+i,2)}, {v(Z+i,2)}, {v(G+i,2)}")
            for i in range(8):
                q(f"v_exp_f32 v{Z+i}, v{Z+i}")
                if i % 2 == 0:
                    q(f"v_pk_mul_f32 {v(G+i,2)}, {v(G+i,2)}, {v(Uu+i,2)}")
            for i in range(0, 8, 2):
                q(f"v_pk_fma_f32 {v(Z+i,2)}, {v(Z+i,2)}, {rs}, {rs} op_sel:[0,1,1] op_sel_hi:[1,1,1]")
            for i in range(8):
                q(f"v_rcp_f32 v{Z+i}, v{Z+i}")
            for i in range(0, 8, 2):
                q(f"v_pk_mul_f32 {v(G+i,2)}, {v(G+i,2)}, {v(Z+i,2)}")
        for i in range(4):
            q(f"v_cvt_pk_bf16_f32 v{PK+i}, v{G+2*i}, v{G+2*i+1}")
        q(f"buffer_store_dwordx4 {v(PK,4)}, v2, {R(R_WS)}, s{56 + (T >> 2)} offen offset:{(T & 3)*1024} sc1", tag='Hst')
        return q.items

    b0 = Prog()
    b0(f"v_and_b32 v{RB}, 0xffff, v{ST4}")
    b0(f"v_xor_b32 v{RB}, 0x8000, v{RB}")
    b0("v_cmp_gt_u32 vcc, 32, v1")
    b0(f"v_mov_b32 v{RB+2}, 0")
    b0(f"v_mov_b32 v{RB+3}, 0")
    b0(f"v_cndmask_b32 v{RB+1}, 0, v{RB}, vcc")
    b0(f"v_lshl_or_b32 v{RB}, v{RB+1}, 16, v{RB+1}")
    b0(f"s_mul_i32 s56, s{S_G}, 112")
    b0(f"s_lshl_b32 s57, s{S_NT}, 3")
    b0("s_add_u32 s56, s56, s57")
    b0("s_lshl_b32 s56, s56, 10")
    b0(f"s_add_u32 s56, s56, {H_OFF}")
    b0("s_add_u32 s57, s56, 4096")
    b0("v_and_b32 v43, 15, v1")
    b0("v_lshrrev_b32 v44, 2, v43")
    b0("v_and_b32 v43, 3, v43")
    b0("v_lshl_add_u32 v43, v43, 3, v44")
    b0(f"s_and_b32 s58, s{S_X}, 4")
    b0(f"s_and_b32 s59, s{S_IDX}, 0x1c")
    b0("s_lshl_b32 s59, s59, 3")
    b0("s_add_u32 s58, s58, s59")
    b0("v_add_lshl_u32 v43, v43, s58, 7")
    b0("v_lshlrev_b32 v44, 2, v0")
    b0(f"s_lshl_b32 s58, s{S_NT}, 14")
    b0(f"s_add_u32 s58, s58, {CS_OFF}")
    iss_cs, chk_cs = cx.await_flags(45, 43, 0)
    ld_cs = []
    for k in range(16):
        q = Prog()
        if k and k % 4 == 0:
            q("s_add_u32 s58, s58, 4096")
        q(f"buffer_load_dword v{CP+k}, v44, {R(R_WS)}, s58 offen offset:{(k % 4)*1024} sc1")
        ld_cs.append(q.items)
    c1 = Prog()
    for st in (8, 4, 2, 1):
        for k in range(st):
            c1(f"v_add_f32 v{CP+k}, v{CP+k}, v{CP+k+st}")
    c1(f"v_add_u32 v44, {M_CS}, v44")
    c1(f"ds_write_b32 v44, v{CP}")
    c2 = Prog()
    c2(f"v_lshlrev_b32 v44, 2, v41")
    c2(f"v_add_u32 v44, {M_CS}, v44")
    for T in range(8):
        c2(f"ds_read_b32 v{CV+T}, v44 offset:{T*128}")
    for k in range(2):
        c2(f"v_mov_b32 v{RA+4*k+2}, 0")
        c2(f"v_mov_b32 v{RA+4*k+3}, 0")

    def rank1_prep(T):
        q = Prog()
        r = RA + 4 * (T & 1)
        c = CV + T
        q(f"v_and_b32 v{r}, 0xffff0000, v{c}")
        q(f"v_sub_f32 v{c}, v{c}, v{r}")
        q(f"v_and_b32 v{r+1}, 0xffff0000, v{c}")
        q(f"v_sub_f32 v{c}, v{c}, v{r+1}")
        q(f"v_lshrrev_b32 v{r}, 16, v{r}")
        q(f"v_or_b32 v{r}, v{r}, v{r+1}")
        q(f"v_lshrrev_b32 v{r+1}, 16, v{c}")
        return q.items

    def rank1(T):
        r = RA + 4 * (T & 1)
        return I(f"v_mfma_f32_32x32x16_bf16 {v(ACC+16*T,16)}, {v(r,4)}, {v(RB,4)}, {v(ACC+16*T,16)}")

    seq = [(T, step) for tiles in ((0, 1, 2, 3), (4, 5, 6, 7)) for step in range(32) for T in tiles]
    seen = set()

    def rd_for(i):
        T, step = seq[i]
        q = Prog()
        key = (T >> 2, step >> 2)
        if key not in seen:
            seen.add(key)
            q.wait_vm(('W',) + key)
            q("s_barrier")
        q.add(reads(T, step, i % 8))
        return q.items

    def group(f):
        q = Prog()
        f(q)
        return [q.items]

    def publish(tag, delta):
        def f(q):
            q.wait_vm(tag)
            q("s_barrier")
            q.add(cx.set_flag(delta, 46 if delta else 44))
        return group(f)
    fill = []
    for i in range(LA):
        p.add(rd_for(i))
    BUD = OPT['gap_budget']
    bar = group(lambda q: q("s_barrier"))
    script = [('fill', a0), ('fill', a1), ('mfma', m1), ('gap', 1), ('fill', a2), ('unit', publish('P0st', 0)),
              ('fill', b0.items), ('since', 8), ('unit', bar), ('fill', a3),
              ('at', OPT['poll_cs']), ('unit', [iss_cs]), ('gap', 12), ('unit', publish('P1st', 1)), ('gap', 4),
              ('fill', chk_cs), ('unit', ld_cs), ('gap', 8),
              ('fill', c1.items), ('gap', 8), ('unit', bar), ('fill', c2.items), ('at', 128)]
    for T in range(4):
        script += [('fill', rank1_prep(T)), ('mfma', [rank1(T)])]
    for T in range(4):
        script += [('fill', epilogue(T, False))]
    prio_units = []
    last_dsw = -100
    log = []
    for i, (T, step) in enumerate(seq):
        gap = Prog()
        if i % 2 == 0:
            p.touch(a(A_WF + ((i + 1) % 8) * 4, 4))
        c = "0" if step == 0 else v(ACC + 16*T, 16)
        p(f"v_mfma_f32_32x32x16_bf16 {v(ACC+16*T,16)}, {a(A_WF + (i % 8)*4, 4)}, {a(A_X+step*4,4)}, {c}")
        if i + LA < len(seq):
            gap.add(rd_for(i + LA))
        if prio_units:
            gap.add(prio_units.pop(0))
        elif units and i % 3 == 1:
            kB = (32 - len(units)) // 4
            if kB == 0 or (0, kB + 1) in seen or (kB == 7 and (1, 0) in seen):
                gap.add(units.pop(0))
        cost = sum(x.cost for x in gap.items) + (4 if i % 2 == 1 else 0)
        extra_m = []
        while True:
            while fill and cost + fill[0].cost <= BUD:
                cost += fill[0].cost
                if isinstance(fill[0], I) and fill[0].op.startswith('ds_write'):
                    last_dsw = i
                gap.add([fill.pop(0)])
            if fill or not script or prio_units:
                break
            kind, pay = script[0]
            if kind == 'at' and i + 1 < pay:
                break
            if kind == 'since' and i < last_dsw + pay:
                break
            script.pop(0)
            log.append((i, kind))
            if kind == 'fill':
                fill = list(pay)
            elif kind == 'mfma':
                extra_m = pay
                break
            elif kind == 'unit':
                prio_units = list(pay)
            elif kind == 'gap':
                script.insert(0, ('at', i + 1 + pay))
        p.add(gap)
        p.add(extra_m)
        if i in (127,):
            probe(p, 3)
    if OPT.get('log'):
        print(log, len(fill), [k for k, _ in script])
    assert not units and not prio_units
    probe(p, 4)
    rest = list(fill)
    for kind, pay in script:
        assert kind in ('fill', 'mfma'), kind
        rest += pay
    p("s_barrier")
    for T in range(4, 8):
        rest += rank1_prep(T) + [rank1(T)]
    for T in range(4, 8):
        rest += epilogue(T, True)
    mer, left = spread(rest, p3_units, 72)
    p.add(mer)
    probe(p, 5)
    p.wait_vm('Hst')
    p("s_barrier")
    p.add(cx.set_flag(2, 46))
    probe(p, 6)
    return left


def fft_tables():
    def bf(x):
        u = np.asarray(x, dtype=np.float32).view(np.uint32)
        return ((u + 0x7fff + ((u >> 16) & 1)) >> 16).astype(np.uint16)
    lane = np.arange(64)
    m, h = lane & 31, lane >> 5
    i = np.arange(8)
    blob = []
    for N, ntile in ((32, 1), (64, 2)):
        fr = {0: [], 1: [], 2: []}
        for tile in range(ntile):
            for st in range(2 * ntile):
                tau, t = st >> 1, st & 1
                k = 32*tau + 16*t + 8*(i[None, :] >> 2) + 4*h[:, None] + (i[None, :] & 3)
                ang = 2*np.pi*(((32*tile + m[:, None]) * k) % N)/N
                fr[0].append(bf(np.cos(ang)))
                fr[1].append(bf(np.sin(ang)))
                fr[2].append(bf(-np.sin(ang)))
        for kind in range(3):
            blob.append(np.concatenate([x.ravel() for x in fr[kind]]).tobytes())
    e = np.arange(4)
    t2 = []
    for tau in range(2):
        for rq in range(4):
            row = 8*rq + 4*h[:, None] + e[None, :]
            ang2 = 2*np.pi*(row * (32*tau + m[:, None]))/2048
            t2 += [np.cos(ang2), np.sin(ang2)]
    T2 = np.concatenate([x.ravel() for x in t2]).astype(np.float32).tobytes()
    return b"".join(blob[:3]) + bytes(2048) + b"".join(blob[3:]) + T2


def fft_phase(cx, p, a1, m1, a2, a3, p3_units):
    p.add(a1)
    p.add(m1)
    p.add(a2)
    p.wait_lgkm()
    p("s_barrier")
    p.add(a3)
    p("s_getpc_b64 s[28:29]")
    p("F_TPC:")
    p("s_add_u32 s28, s28, FFT_TBL-F_TPC")
    p("s_addc_u32 s29, s29, 0")
    p(f"s_mov_b32 s30, {TBL_BYTES}")
    p("s_mov_b32 s31, 0x00020000")
    p(f"s_mul_i32 s52, s{S_W}, {12*1024}")
    for k in range(12):
        if k % 4 == 0:
            p(f"s_add_u32 s55, s52, {k*1024}")
            p("s_mov_b32 m0, s55")
        p(f"buffer_load_dwordx4 v2, s[28:31], s55 offen offset:{(k % 4)*1024} lds", tag='TB')
    p.wait_vm('P1st')
    p("s_barrier")
    p.add(cx.set_flag(1, 46))
    probe(p, 3)
    p(f"s_lshl_b32 s56, s{S_X}, 2")
    p(f"s_add_u32 s56, s56, s{S_IDX}")
    p("s_sub_u32 s56, s56, 28")
    p("v_lshlrev_b32 v5, 3, v41")
    p("v_lshl_add_u32 v5, v42, 8, v5")
    p("s_lshl_b32 s57, s56, 3")
    p(f"s_lshl_b32 s58, s{S_W}, 1")
    p("s_add_u32 s57, s57, s58")
    p("s_lshl_b32 s57, s57, 13")
    p(f"s_add_u32 s58, s57, {Y1_OFF}")
    p(f"s_add_u32 s59, s57, {WT_OFF}")
    p(f"s_lshl_b32 s53, s{S_W}, 14")
    p(f"s_add_u32 s53, s53, {L_WT}")
    p("v_add_u32 v6, s53, v2")
    p("v_lshlrev_b32 v3, 7, v0")
    p.wait_vm('TB')
    p("s_barrier")
    AF32, AF64 = 0, 24
    for k in range(6):
        p(f"ds_read_b128 {a(AF32+4*k,4)}, v2 offset:{L_F32 + k*1024}")
    for k in range(24):
        p(f"ds_read_b128 {a(AF64+4*k,4)}, v2 offset:{L_F64 + k*1024}")
    iss, chk = cx.await_flags(7, 3, 1)
    p.add(iss)
    p.add(chk)
    p("s_barrier")
    probe(p, 4)
    ACC = [16, 112]
    PK = [80, 176]
    TB, RT, WU = 208, 224, 240

    def acc(col, c, tile):
        return ACC[col] + c*32 + tile*16

    def pk(col, c, st):
        return PK[col] + c*16 + st*4

    def load_in(col):
        U = []
        for st in range(4):
            for c in range(2):
                for hf in range(2):
                    q = Prog()
                    if st == 0 and c == 0 and hf == 0:
                        q(f"s_add_u32 s60, s58, {col*8192}")
                        q("s_add_u32 s61, s60, 4096")
                    q(f"buffer_load_dwordx2 {v(pk(col,c,st)+2*hf,2)}, v5, {R(R_WS)}, s{60+c} offen offset:{st*1024+hf*512} sc1")
                    U.append(q.items)
        return U

    def wt_dma():
        U = []
        for k in range(16):
            q = Prog()
            if k % 4 == 0:
                q(f"s_add_u32 m0, s53, {k*1024}")
                q(f"s_add_u32 s55, s59, {k*1024}")
            q(f"buffer_load_dwordx4 v2, {R(R_WS)}, s55 offen offset:{(k % 4)*1024} sc1 lds", tag=('WT', k // 8))
            U.append(q.items)
        return U
    w = wt_dma()
    for u in load_in(0) + load_in(1)[:8]:
        p.add(u)
    units = load_in(1)[8:] + w

    def mm(d, A, B, first):
        return I(f"v_mfma_f32_32x32x16_bf16 {v(d,16)}, {A}, {B}, {'0' if first else v(d,16)}")

    def f32(kind, t):
        return a(AF32 + kind*8 + t*4, 4)

    def f64(kind, tile, st):
        return a(AF64 + kind*32 + tile*16 + st*4, 4)

    def stage(col, n):
        L = []
        kre, kim = (2, 1) if n >= 3 else (1, 2)
        nst = 2 if n == 4 else 4
        for st in range(nst):
            for tile in range(2):
                if n == 2:
                    pr = lambda kind, c: (f64(kind, tile, st), v(pk(col, c, st), 4))
                elif n == 3:
                    pr = lambda kind, c: (v(pk(col, c, st), 4), f64(kind, tile, st))
                else:
                    pr = lambda kind, c: (v(pk(col, c, tile*2 + st), 4), f32(kind, st))
                L.append(mm(acc(col, 0, tile), *pr(0, 0), st == 0))
                L.append(mm(acc(col, 1, tile), *pr(0, 1), st == 0))
                L.append(mm(acc(col, 0, tile), *pr(kre, 1), False))
                L.append(mm(acc(col, 1, tile), *pr(kim, 0), False))
        return L

    def vphase(col, n):
        q = Prog()
        if n == 4:
            for tile in range(2):
                for r in range(16):
                    q(f"v_cvt_pk_bf16_f32 v{PK[col]+tile*16+r}, v{acc(col,0,tile)+r}, v{acc(col,1,tile)+r}")
            return q.items

        def rd(k):
            b = TB + (k & 1) * 8
            if n == 2:
                q(f"ds_read_b128 {v(b,4)}, v6 offset:{col*8192 + k*1024}")
            else:
                q(f"ds_read_b128 {v(b,4)}, v2 offset:{L_T2 + k*2048}")
                q(f"ds_read_b128 {v(b+4,4)}, v2 offset:{L_T2 + k*2048 + 1024}")
        rd(0)
        for k in range(8):
            tile, rq = k >> 2, k & 3
            if k + 1 < 8:
                rd(k + 1)
            b = TB + (k & 1) * 8
            xr, xi = acc(col, 0, tile) + 4*rq, acc(col, 1, tile) + 4*rq
            Rr = RT + (k & 1) * 8
            if n == 2:
                for e in range(4):
                    q(f"v_lshlrev_b32 v{WU+e}, 16, v{b+e}")
                    q(f"v_and_b32 v{WU+4+e}, 0xffff0000, v{b+e}")
                cc, ss = WU, WU + 4
            else:
                cc, ss = b, b + 4
            for e in range(4):
                q(f"v_mul_f32 v{Rr+e}, v{xr+e}, v{cc+e}")
                q(f"v_mul_f32 v{Rr+4+e}, v{xi+e}, v{cc+e}")
            for e in range(4):
                q(f"v_fma_f32 v{Rr+e}, -v{xi+e}, v{ss+e}, v{Rr+e}")
                q(f"v_fma_f32 v{Rr+4+e}, v{xr+e}, v{ss+e}, v{Rr+4+e}")
            st, half = tile*2 + (rq >> 1), (rq & 1) * 2
            for c in range(2):
                for e in range(2):
                    q(f"v_cvt_pk_bf16_f32 v{pk(col,c,st)+half+e}, v{Rr+4*c+2*e}, v{Rr+4*c+2*e+1}")
        return q.items
    mer, units = spread(stage(0, 2), units, 48)
    p.add(mer)
    order = [((1, 2), (0, 2)), ((0, 3), (1, 2)), ((1, 3), (0, 3)), ((0, 4), (1, 3)), ((1, 4), (0, 4))]
    for (sc, sn), (vc, vn) in order:
        if vn == 2:
            p.wait_vm(('WT', vc))
        S, Vv = stage(sc, sn), vphase(vc, vn)
        tot = sum(x.cost for x in Vv)
        bud = max(24, -(-tot // len(S) // 4) * 4)
        mer, left = interleave(S, Vv, budget=bud)
        mer, units = spread(mer + left, units, 48)
        p.add(mer)
    assert not units
    p.add(vphase(1, 4))
    probe(p, 5)
    p("s_barrier")
    p("v_and_b32 v7, 31, v1")
    p("v_lshrrev_b32 v9, 5, v1")
    p("v_lshlrev_b32 v7, 2, v7")
    p("v_lshl_add_u32 v8, v9, 8, v7")
    p("v_lshl_add_u32 v7, v9, 12, v7")
    p(f"s_lshl_b32 s55, s{S_W}, 7")
    p(f"s_add_u32 s55, s55, {L_WT}")
    p("v_add_u32 v7, s55, v7")
    for k in range(32):
        g = 32*(k >> 4) + 8*((k & 15) >> 2) + (k & 3)
        p(f"ds_write2st64_b32 v7, v{PK[0]+k}, v{PK[1]+k} offset0:{4*g} offset1:{4*g+2}")
    p("v_add_u32 v8, s53, v8")
    p("v_add_u32 v9, 128, v8")
    p(f"s_lshl_b32 s60, s{S_W}, 19")
    p("s_lshl_b32 s61, s56, 10")
    p("s_add_u32 s60, s60, s61")
    p(f"s_add_u32 s60, s60, {V_OFF}")
    p.wait_lgkm()
    p("s_barrier")
    O = 16
    for k in range(16):
        p(f"ds_read2st64_b32 {v(O+4*k,2)}, v8 offset0:{4*k} offset1:{4*k+2}")
        p(f"ds_read2st64_b32 {v(O+4*k+2,2)}, v9 offset0:{4*k} offset1:{4*k+2}")
    for k in range(16):
        p(f"buffer_store_dwordx4 {v(O+4*k,4)}, v2, {R(R_WS)}, s60 offen sc1", tag='Vst')
        if k < 15:
            p("s_add_u32 s60, s60, 32768")
    p("s_barrier")
    for u in p3_units[:12]:
        p.add(u)
    p.wait_vm('Vst')
    p("s_barrier")
    p.add(cx.set_flag(2, 10))
    probe(p, 6)
    return p3_units[12:]


P3_DV = 250


def p3_setup():
    q = Prog()
    q("s_load_dwordx4 s[8:11], s[0:1], 48")
    q(f"s_and_b32 s60, s{S_IDX}, 3")
    q(f"s_lshl_b32 s61, s{S_X}, 3")
    q("s_lshl_b32 s60, s60, 1")
    q("s_add_u32 s3, s60, s61")
    q(f"s_lshr_b32 s23, s{S_IDX}, 2")
    q("v_lshrrev_b32 v8, 3, v1")
    q("v_and_b32 v9, 7, v1")
    q("v_and_b32 v10, 2, v8")
    q("v_lshlrev_b32 v10, 1, v10")
    q("v_xor_b32 v9, v9, v10")
    q("v_lshlrev_b32 v8, 10, v8")
    q(f"v_lshl_add_u32 v12, v9, 4, v8")
    for k in range(1, 4):
        q(f"v_add_u32 v{12+k}, {k*(8192-1024)}, v12")
    q(f"s_mul_i32 s52, s{S_W}, {28*16*1024}")
    q("s_lshl_b32 s53, s23, 7")
    q("s_add_u32 s52, s52, s53")
    q(f"s_mul_i32 s53, s{S_W}, {RING*2048}")
    q.touch("s[8:11]")
    srd(q, R_WG, 8, 1792*512*2)
    srd(q, R_WU, 10, 2097152)
    return q.items


def wd_units(step):
    U = []
    for z in range(2):
        q = Prog()
        k = (step & 1) * 2 + z
        if k == 0:
            q(f"s_add_u32 m0, s53, {(step % RING)*2048}")
            q(f"s_add_u32 s55, s52, {step*16*1024}")
        q(f"buffer_load_dwordx4 v{12+k}, {R(R_WG)}, s55 offen offset:{k*1024} lds", tag=('D', step))
        U.append(q.items)
    return U


def phase3(cx, p, pre_left):
    AV, AH = 0, 64

    def hreg(step, rg):
        return (AH + step*8 + rg*4) if step < 24 else (AV + (step-24)*8 + rg*4)
    XRR = 240
    q = Prog()
    q("v_and_b32 v248, 31, v1")
    q("v_lshrrev_b32 v249, 5, v1")
    q("v_lshrrev_b32 v6, 3, v0")
    q("v_and_b32 v7, 7, v0")
    q("v_lshlrev_b32 v8, 16, v6")
    q("v_lshl_add_u32 v8, v7, 4, v8")
    q("s_lshl_b32 s54, s3, 10")
    q("s_lshl_b32 s56, s23, 7")
    q("s_add_u32 s54, s54, s56")
    q(f"buffer_load_dwordx4 {v(XRR,4)}, v8, {R(R_XX)}, s54 offen")
    q(f"buffer_load_dwordx4 {v(XRR+4,4)}, v8, {R(R_XX)}, s54 offen offset:1024")
    q(f"v_add_u32 v11, {112*1024}, v2")
    q("s_mul_i32 s56, s3, 112")
    q(f"s_mul_i32 s57, s{S_W}, 28")
    q("s_add_u32 s56, s56, s57")
    q("s_lshl_b32 s56, s56, 10")
    q(f"s_add_u32 s56, s56, {H_OFF}")
    q("s_lshl_b32 s57, s3, 15")
    q(f"s_lshl_b32 s58, s{S_W}, 13")
    q("s_add_u32 s57, s57, s58")
    q(f"s_add_u32 s57, s57, {V_OFF}")
    q("v_and_b32 v9, 31, v1")
    q("v_add_u32 v9, 224, v9")
    q("v_and_b32 v10, 15, v1")
    q("v_min_u32 v10, 13, v10")
    q("v_cmp_lt_u32 vcc, 6, v10")
    q("v_subrev_u32 v3, 7, v10")
    q("s_lshr_b32 s58, s3, 2")
    q("v_cndmask_b32 v10, v10, v3, vcc")
    q("v_cndmask_b32 v3, 0, 4, vcc")
    q("v_lshl_add_u32 v10, v10, 5, v3")
    q("s_and_b32 s59, s58, 3")
    q("s_lshl_b32 s59, s59, 3")
    q("s_lshr_b32 s58, s58, 2")
    q("s_add_u32 s58, s58, s59")
    q("v_add_u32 v10, s58, v10")
    q("v_lshlrev_b32 v9, 7, v9")
    q("v_lshlrev_b32 v10, 7, v10")
    CF = 16
    S0, S1 = 80, 88
    SC = 2.0 ** -19
    q("s_lshl_b32 s58, s23, 6")
    q("v_add_u32 v96, s58, v248")
    q(f"s_lshl_b32 s58, s{S_W}, 6")
    q("v_lshl_add_u32 v97, v249, 2, s58")
    q("v_cmp_eq_u32 s[60:61], 0, v97")
    q("v_cvt_f32_u32 v97, v97")
    for Dt in range(2):
        q("v_cvt_f32_u32 v98, v96")
        q(f"v_mul_f32 v98, {hexf(1/512)}, v98")
        q(f"v_mul_f32 v99, {hexf(8.0)}, v98")
        q(f"v_sub_f32 v100, {hexf(0.25)}, v99")
        q("v_sin_f32 v100, v100")
        q(f"v_fma_f32 v{S0+1}, -v97, v98, 0")
        for ci in range(1, 4):
            q(f"v_sub_f32 v{S0+2*ci+1}, v{S0+2*ci-1}, v98")
        for ci in range(4):
            q(f"v_add_f32 v{S0+2*ci}, {hexf(0.25)}, v{S0+2*ci+1}")
        for i in range(8):
            q(f"v_sub_f32 v{S1+i}, v{S0+i}, v99")
        q("v_add_f32 v100, v100, v100")
        for i in range(16):
            q(f"v_sin_f32 v{S0+i}, v{S0+i}")
        for i in range(16):
            q(f"v_mul_f32 v{S0+i}, {hexf(SC)}, v{S0+i}")
        for t in range(8):
            cur = S0 if t % 2 == 0 else S1
            oth = S1 if t % 2 == 0 else S0
            if t >= 2:
                for i in range(8):
                    q(f"v_fma_f32 v{cur+i}, v100, v{oth+i}, -v{cur+i}")
            for i in range(4):
                q(f"v_cvt_pk_bf16_f32 v{CF+Dt*32+4*t+i}, v{cur+2*i}, v{cur+2*i+1}")
        half = fbits(SC / 2) >> 16
        q("v_and_b32 v101, 1, v96")
        q("v_lshlrev_b32 v101, 15, v101")
        q(f"v_or_b32 v101, {half}, v101")
        q(f"v_cndmask_b32 v{CF+Dt*32}, v{CF+Dt*32}, v101, s[60:61]")
        if Dt == 0:
            q("v_add_u32 v96, 32, v96")
    q("v_bfe_u32 v96, v1, 2, 2")
    q("v_and_b32 v97, 3, v1")
    q("v_bfe_u32 v98, v1, 4, 1")
    q("v_lshl_add_u32 v99, v249, 3, v96")
    q("v_lshlrev_b32 v99, 7, v99")
    q("v_lshrrev_b32 v100, 1, v97")
    q("v_lshl_add_u32 v100, v98, 1, v100")
    q("v_and_b32 v96, 2, v96")
    q("v_lshlrev_b32 v96, 1, v96")
    q("v_xor_b32 v100, v100, v96")
    q("v_lshl_add_u32 v99, v100, 4, v99")
    q("v_and_b32 v97, 1, v97")
    q("v_lshl_add_u32 v99, v97, 3, v99")
    q("v_add_u32 v4, s53, v99")
    q("v_xor_b32 v99, 64, v99")
    q("v_add_u32 v5, s53, v99")
    q("v_and_b32 v110, 7, v1")
    q("v_xor_b32 v110, v110, v249")
    EW, ER = 96, 104
    q(f"s_lshl_b32 s58, s{S_W}, 14")
    q(f"s_add_u32 s58, s58, {L_SX}")
    for rq in range(4):
        q(f"v_xor_b32 v{EW+rq}, {2*rq}, v110")
        q(f"v_lshlrev_b32 v{EW+rq}, 4, v{EW+rq}")
        q(f"v_lshl_add_u32 v{EW+rq}, v248, 8, v{EW+rq}")
        q(f"v_add_u32 v{EW+4+rq}, s58, v{EW+rq}")
        q(f"v_add_u32 v{EW+rq}, s53, v{EW+rq}")
    q("v_and_b32 v110, 7, v6")
    for b in range(2):
        q(f"v_lshl_add_u32 v111, v7, 1, {b}")
        q("v_xor_b32 v111, v111, v110")
        q("v_lshlrev_b32 v111, 4, v111")
        q(f"v_lshl_add_u32 v{ER+b}, v6, 8, v111")
        q(f"v_add_u32 v{ER+2+b}, {L_SX}, v{ER+b}")
        q(f"v_add_u32 v{ER+4+b}, {2*RING*2048}, v{ER+b}")
    mer, left = spread(q.items, pre_left, 72)
    p.add(mer)
    for u in left:
        p.add(u)
    probe(p, 7)
    iss, chk = cx.await_flags(3, 10, 2)
    p.add(iss)
    iss2, chk2 = cx.await_flags(110, 9, 2)
    p.add(iss2)
    p.add(chk)
    probe(p, 8)

    def h_units(step):
        U = []
        for rg in range(2):
            q = Prog()
            if rg == 0 and step % 4 == 0:
                q(f"s_add_u32 s59, s56, {step*1024}")
            q(f"buffer_load_dwordx4 {a(hreg(step, rg),4)}, v{2 if rg == 0 else 11}, {R(R_WS)}, s59 offen offset:{(step % 4)*1024} sc1")
            U.append(q.items)
        return U
    v_units = []
    for hf in range(2):
        for rg in range(2):
            for k in range(4):
                q = Prog()
                if k == 0:
                    q(f"s_add_u32 s58, s57, {rg*32768 + hf*4096}")
                q(f"buffer_load_dwordx4 {a(AV + (hf*4+k)*8 + rg*4, 4)}, v2, {R(R_WS)}, s58 offen offset:{k*1024} sc1")
                v_units.append(q.items)
    VAT = OPT.get('v_at', 8)
    NPRE = RING - 2
    units = []
    for step in range(28):
        if step == VAT:
            units.append((0, chk2 + v_units[0]))
            units += [(0, u) for u in v_units[1:]]
        if step >= NPRE:
            units += [((step | 1) - RING + 1, u) for u in wd_units(step)]
        ms = 0 if step < 24 else VAT + 7
        units += [(ms, u) for u in h_units(step)]
    AS, AG, WF, SV = 112, 176, 80, 16

    def xwrite(accb, ew):
        q = Prog()
        for rg in range(2):
            for Dt in range(2):
                for rq in range(4):
                    q(f"ds_write_b128 v{ew+rq}, {v(accb + (rg*2+Dt)*16 + 4*rq, 4)} offset:{rg*8192 + Dt*128}")
        return q.items

    def xread(er, wstride, T):
        q = Prog()
        for w in range(4):
            for rg in range(2):
                for b in range(2):
                    off = w*wstride + rg*8192
                    ad = er + b
                    if wstride != 16384 and w >= 2:
                        off -= 2*wstride
                        ad += 4
                    q(f"ds_read_b128 {v(T + w*16 + rg*8 + b*4, 4)}, v{ad} offset:{off}")
        s_ = Prog()
        for k in range(8):
            s_(f"v_pk_add_f32 {v(T+2*k,2)}, {v(T+2*k,2)}, {v(T+16+2*k,2)}")
        for k in range(8):
            s_(f"v_pk_add_f32 {v(T+32+2*k,2)}, {v(T+32+2*k,2)}, {v(T+48+2*k,2)}")
        for k in range(8):
            s_(f"v_pk_add_f32 {v(T+2*k,2)}, {v(T+2*k,2)}, {v(T+32+2*k,2)}")
        return q.items, s_.items

    def wreads(step):
        q = Prog()
        q.wait_vm(('D', step))
        for Dt in range(2):
            r = WF + (step & 1)*8 + Dt*4
            off = (step % RING) * 2048
            q(f"ds_read_b64_tr_b16 {v(r,2)}, v{4+Dt} offset:{off}")
            q(f"ds_read_b64_tr_b16 {v(r+2,2)}, v{4+Dt} offset:{off+512}")
        return q.items

    def pop(step, n=1):
        for _ in range(n):
            if units and units[0][0] <= step:
                p.add(units.pop(0)[1])
    pop(0, OPT.get('p3_ahead', 14))
    p.add(wreads(0))
    AGX = {}
    for step in range(28):
        if step + 1 < 28:
            p.add(wreads(step + 1))
        for rg in range(2):
            for Dt in range(2):
                d = AG + (rg*2+Dt)*16
                r = WF + (step & 1)*8 + Dt*4
                p(f"v_mfma_f32_32x32x16_bf16 {v(d,16)}, {v(r,4)}, {a(hreg(step,rg),4)}, {'0' if step == 0 else v(d,16)}")
                pop(step)
        if step == VAT + 5:
            for t in range(8):
                for rg in range(2):
                    for Dt in range(2):
                        d = AS + (rg*2+Dt)*16
                        p(f"v_mfma_f32_32x32x16_bf16 {v(d,16)}, {v(CF+Dt*32+4*t,4)}, {a(AV+t*8+rg*4,4)}, {'0' if t == 0 else v(d,16)}")
                        if Dt:
                            pop(step)
            p.add(xwrite(AS, EW + 4))
        if step == VAT + 8:
            p.wait_lgkm()
            p("s_barrier")
            rd, sm = xread(ER + 2, 16384, SV)
            p.add(rd)
            p.add(sm)
            probe(p, 9)
    assert not units
    probe(p, 10)
    p.add(xwrite(AG, EW))
    p.wait_lgkm()
    p("s_barrier")
    GT = 112
    rd, sm = xread(ER, RING*2048, GT)
    p.add(rd)
    p("v_mov_b32 v72, " + hexf(-math.log2(math.e)))
    for k in range(8):
        p(f"v_lshlrev_b32 v{XUF+2*k}, 16, v{XRR+k}")
        p(f"v_and_b32 v{XUF+2*k+1}, 0xffff0000, v{XRR+k}")
    p.add(sm)
    Z = 48
    for k in range(0, 16, 2):
        p(f"v_pk_mul_f32 {v(Z+k,2)}, {v(GT+k,2)}, v[72:73] op_sel_hi:[1,0]")
    for k in range(16):
        p(f"v_exp_f32 v{Z+k}, v{Z+k}")
        if k % 2 == 0:
            p(f"v_pk_mul_f32 {v(GT+k,2)}, {v(GT+k,2)}, {v(SV+k,2)}")
    for k in range(0, 16, 2):
        p(f"v_pk_add_f32 {v(Z+k,2)}, {v(Z+k,2)}, 1.0 op_sel_hi:[1,0]")
    for k in range(16):
        p(f"v_rcp_f32 v{Z+k}, v{Z+k}")
    for k in range(0, 16, 2):
        p(f"v_pk_fma_f32 {v(Z+k,2)}, {v(GT+k,2)}, {v(Z+k,2)}, {v(XUF+k,2)}")
    for k in range(8):
        p(f"v_cvt_pk_bf16_f32 v{64+k}, v{Z+2*k}, v{Z+2*k+1}")
    p(f"buffer_store_dwordx4 {v(64,4)}, v8, {R(R_WU)}, s54 offen")
    p(f"buffer_store_dwordx4 {v(68,4)}, v8, {R(R_WU)}, s54 offen offset:1024")


XUF = 32


def program(role):
    cx = Ctx(role)
    p = Prog()
    units, a0, a1, m1, a2, a3 = phase1(cx, p)
    p3u = [p3_setup()]
    for step in range(RING - 2):
        p3u += wd_units(step)
    if role == 'G':
        left = gemm_phase(cx, p, units, a0, a1, m1, a2, a3, p3u)
    else:
        left = fft_phase(cx, p, a1, m1, a2, a3, p3u)
    phase3(cx, p, left)
    stamp_end(p, 8)
    p("s_endpgm")
    return finalize(p.items) + cx.tail


HEADER = """; Kernarg layout (80 bytes, ptrs only, base s[0:1]): A_x 0, A_w_r 8, A_w_i 16, B_x 24, w_gate 32, w_up 40,
; One launch, 256 resident workgroups.  Phase 1: row statistics, row DFT, first column-FFT stage, filter re-layout.
; Phase 2: gate/up GEMM + GELU (224 workgroups) or column FFT * filter * inverse FFT (32 workgroups).
; Phase 3: down GEMM + inverse row DFT + silu / combine.   Generated by tools/genf.py
"""


def build():
    out = [HEADER.rstrip()]
    out.append("; @launch grid=(256,1,1) block=(256,1,1) lds=163840")
    out.append('.amdgcn_target "amdgcn-amd-amdhsa--gfx950"')
    out.append(".text")
    out.append(f".globl {NAME}\n.p2align 8\n.type {NAME},@function\n{NAME}:")
    p = Prog()
    p("s_cmp_ge_u32 s2, 256")
    p("s_cbranch_scc1 K_END")
    p("s_load_dwordx2 s[4:5], s[0:1], 0")
    p("s_load_dwordx4 s[8:11], s[0:1], 8")
    p("s_load_dwordx2 s[12:13], s[0:1], 32")
    p("s_load_dwordx2 s[58:59], s[0:1], 40")
    p("s_load_dwordx2 s[14:15], s[0:1], 64")
    p("s_load_dwordx2 s[6:7], s[0:1], 72")
    stamp_begin(p)
    p(f"s_and_b32 s{S_X}, s2, 7")
    p(f"s_lshr_b32 s{S_IDX}, s2, 3")
    p("v_lshrrev_b32 v1, 6, v0")
    p(f"v_readfirstlane_b32 s{S_W}, v1")
    p(f"s_cmp_ge_u32 s{S_IDX}, 28")
    p("s_cbranch_scc0 ROLE_G")
    p("s_branch ROLE_F")
    p("K_END:")
    p("s_endpgm")
    out += finalize(p.items)
    pend = Prog()
    for role in ('G', 'F'):
        out.append(f"ROLE_{role}:")
        out.append("    s_nop 4")
        lines = program(role)
        out += lines
    blob = fft_tables()
    assert len(blob) == TBL_BYTES
    out.append(".p2align 8\n.type FFT_TBL,@object\nFFT_TBL:")
    w = np.frombuffer(blob, dtype=np.uint32)
    for i in range(0, len(w), 8):
        out.append(".long " + ",".join(f"0x{x:x}" for x in w[i:i+8]))
    out.append(f".size FFT_TBL, {TBL_BYTES}")
    out.append("CODE_END:")
    out.append('.section .rodata,"a"')
    out.append(f""".p2align 6
.amdhsa_kernel {NAME}
  .amdhsa_next_free_vgpr 512
  .amdhsa_next_free_sgpr 102
  .amdhsa_accum_offset 256
  .amdhsa_group_segment_fixed_size 0
  .amdhsa_kernarg_size 80
  .amdhsa_user_sgpr_count 2
  .amdhsa_user_sgpr_kernarg_segment_ptr 1
  .amdhsa_system_sgpr_workgroup_id_x 1
.end_amdhsa_kernel""")
    return "\n".join(out) + "\n"


if __name__ == "__main__":
    path = sys.argv[1]
    for kv in sys.argv[2:]:
        k, val = kv.split("=", 1)
        OPT[k] = eval(val)
    open(path, "w").write(build())
```

```python
import re

REG_RE = re.compile(r'(?<![\w.])([vas])(?:(\d+)|\[(\d+):(\d+)\])(?![\w])')
TRANS = ('v_exp_f32', 'v_log_f32', 'v_rcp_f32', 'v_rsq_f32', 'v_sqrt_f32', 'v_sin_f32', 'v_cos_f32')


def v(i, n=1):
    return f"v{i}" if n == 1 else f"v[{i}:{i+n-1}]"


def a(i, n=1):
    return f"a{i}" if n == 1 else f"a[{i}:{i+n-1}]"


def s(i, n=1):
    return f"s{i}" if n == 1 else f"s[{i}:{i+n-1}]"


def regs_of(op):
    op = op.strip()
    out = []
    if op in ('vcc', 'vcc_lo', 'vcc_hi'):
        return [('s', 'vcc')]
    if op in ('exec', 'exec_lo', 'exec_hi'):
        return [('s', 'exec')]
    if op == 'm0':
        return [('s', 'm0')]
    for m in REG_RE.finditer(op):
        k = m.group(1)
        if m.group(2) is not None:
            out.append((k, int(m.group(2))))
        else:
            out += [(k, i) for i in range(int(m.group(3)), int(m.group(4)) + 1)]
    return out


class I:
    __slots__ = ('text', 'op', 'kind', 'dst', 'src', 'srcc', 'tag', 'passes', 'cost', 'wide_store', 'dpp', 'meta')

    def __init__(self, text, tag=None):
        self.text = text.strip()
        self.tag = tag
        self.meta = None
        t = self.text.split(';')[0].strip()
        parts = t.split(None, 1)
        self.op = op = parts[0]
        rest = parts[1] if len(parts) > 1 else ''
        ops, depth, cur = [], 0, ''
        for ch in rest:
            if ch in '[(':
                depth += 1
            if ch in '])':
                depth -= 1
            if ch == ',' and depth == 0:
                ops.append(cur)
                cur = ''
            else:
                cur += ch
        if cur.strip():
            ops.append(cur)
        R = []
        for o in ops:
            o = o.strip()
            first = o.split()[0] if o else ''
            R.append(regs_of(first))
        self.dst, self.src, self.srcc = [], [], []
        self.passes = 0
        self.wide_store = False
        self.dpp = ('dpp' in op) or (' row_' in t) or (' quad_perm' in t)
        flat = lambda L: [x for l in L for x in l]
        if op.startswith('v_mfma'):
            self.kind = 'mfma'
            self.dst = R[0]
            self.src = R[1] + R[2] + R[3]
            self.srcc = R[3]
            self.passes = 8 if '32x32' in op else (2 if '4x4' in op else 4)
            self.cost = 8
        elif op.startswith('v_'):
            self.kind = 'trans' if any(op.startswith(x) for x in TRANS) else 'valu'
            self.cost = 8 if self.kind == 'trans' else 4
            if op.startswith('v_cmp'):
                self.dst = R[0]
                self.src = flat(R[1:])
            elif 'permlane' in op and 'swap' in op:
                self.dst = R[0] + R[1]
                self.src = R[0] + R[1]
            elif op.startswith(('v_add_co', 'v_sub_co', 'v_addc_co', 'v_subb_co')):
                self.dst = R[0] + R[1]
                self.src = flat(R[2:])
            elif op == 'v_nop':
                pass
            else:
                self.dst = R[0]
                self.src = flat(R[1:])
                if op.startswith(('v_fmac', 'v_dot2c', 'v_pk_fmac', 'v_writelane')) or self.dpp or 'sdwa' in op:
                    self.src = self.src + R[0]
                if op.startswith('v_cndmask') and len(R) == 3:
                    self.src = self.src + [('s', 'vcc')]
        elif op.startswith('ds_'):
            self.kind = 'ds'
            self.cost = 24 if op.startswith('ds_write_b128') else 4
            if op.startswith(('ds_read', 'ds_bpermute', 'ds_permute', 'ds_swizzle')):
                self.dst = R[0]
                self.src = flat(R[1:])
            else:
                self.src = flat(R)
        elif op.startswith(('buffer_', 'global_')):
            self.kind = 'vmem'
            self.cost = 20
            islds = bool(re.search(r'\blds\b', t)) or '_lds_' in op
            if op.startswith(('buffer_wbl2', 'buffer_inv')):
                pass
            elif 'load' in op and not islds:
                self.dst = R[0]
                self.src = flat(R[1:])
            elif 'atomic' in op and re.search(r'\bsc0\b', t):
                self.dst = R[0]
                self.src = flat(R)
            else:
                self.src = flat(R)
                if islds:
                    self.src = self.src + [('s', 'm0')]
                    self.meta = 'dma'
                if 'store' in op and ('x4' in op or 'x3' in op):
                    self.wide_store = True
                    self.meta = R[0] if op.startswith('buffer_') else R[1]
        elif op.startswith(('s_load', 's_memtime', 's_memrealtime', 's_buffer_load')):
            self.kind = 'smem'
            self.cost = 4
            self.dst = R[0]
            self.src = flat(R[1:])
        elif op.startswith('s_'):
            self.kind = 'salu'
            self.cost = 4
            if op.startswith(('s_cmp', 's_waitcnt', 's_barrier', 's_nop', 's_branch', 's_cbranch', 's_endpgm',
                              's_setprio', 's_sleep', 's_bitcmp')):
                self.src = flat(R)
            else:
                self.dst = R[0] if R else []
                self.src = flat(R[1:])
                if 'saveexec' in op:
                    self.dst = self.dst + [('s', 'exec')]
        else:
            raise ValueError("unknown instr: " + text)


class Marker:
    def __init__(self, kind, arg=None):
        self.kind = kind
        self.arg = arg
        self.cost = 0


class Prog:
    def __init__(self):
        self.items = []

    def __call__(self, text, tag=None):
        for l in text.split('\n'):
            l = l.strip()
            if not l:
                continue
            if l.endswith(':'):
                self.items.append(Marker('label', l))
            elif l.startswith(';') or l.startswith('.'):
                self.items.append(Marker('raw', l))
            else:
                self.items.append(I(l, tag))
        return self

    def wait_vm(self, tag):
        self.items.append(Marker('wait_vm', tag))

    def wait_all_vm(self):
        self.items.append(Marker('wait_vm', None))

    def wait_lgkm(self):
        self.items.append(Marker('wait_lgkm', None))

    def touch(self, text):
        self.items.append(Marker('touch', set(regs_of(text))))

    def gap(self, n):
        self.items.append(Marker('gap', n))

    def add(self, items):
        self.items += items.items if isinstance(items, Prog) else items

    def sync_point(self):
        self.items.append(Marker('sync'))


def finalize(items, verbose=False):
    out = []
    vmq = []
    lgq = []
    hist = []
    pos = 0
    tags_seen = set()
    tags_waited = set()

    def emit_raw(t, states=1):
        nonlocal pos
        out.append('    ' + t)
        pos += states

    def do_wait(vm=None, lg=None):
        parts = []
        if vm is not None and vm < len(vmq):
            n = vm
            if n <= 63:
                parts.append(f"vmcnt({n})")
            del vmq[:len(vmq) - n]
        if lg is not None and lg < len(lgq):
            n = lg
            if any(k == 'smem' for k, _ in lgq):
                n = 0
            if n <= 15:
                parts.append(f"lgkmcnt({n})")
            del lgq[:len(lgq) - n]
        if parts:
            emit_raw("s_waitcnt " + " ".join(parts))

    def need(ins):
        req = 0
        S, D = set(ins.src), set(ins.dst)
        isvalu = ins.kind in ('valu', 'trans')
        for p, ppos in hist:
            dist = pos - ppos - 1
            pd = set(p.dst)
            w = 0
            if p.kind in ('valu', 'trans'):
                pv = {r for r in pd if r[0] in 'va'}
                ps = {r for r in pd if r[0] == 's'}
                if ins.kind == 'mfma' and pv & S:
                    w = max(w, 2)
                if ins.kind == 'mfma' and ('s', 'exec') in ps:
                    w = max(w, 4)
                if p.kind == 'trans' and ins.kind == 'valu' and pv & S:
                    w = max(w, 1)
                if ins.kind == 'vmem' and ps & S:
                    w = max(w, 5)
                if isvalu and ps & S:
                    w = max(w, 4 if ins.op.startswith(('v_readlane', 'v_writelane')) else 2)
                if ins.kind == 'salu' and ps & S:
                    w = max(w, 1)
                if ins.op.startswith(('v_readfirstlane', 'v_readlane')) and pv & S:
                    w = max(w, 1)
                if 'permlane' in ins.op and pv & S:
                    w = max(w, 2)
                if isvalu and ins.dpp and pv & S:
                    w = max(w, 2)
                if isvalu and ('sdwa' in p.op or 'op_sel' in p.text) and pv & (S | D) and not p.op.startswith('v_pk'):
                    w = max(w, 1)
            elif p.kind == 'mfma':
                k = {2: 0, 4: 1, 8: 2}[p.passes]
                if ins.kind == 'mfma':
                    C = set(ins.srcc)
                    AB = set(ins.src[:len(ins.src) - len(ins.srcc)])
                    if pd & AB:
                        w = max(w, (5, 8, 12)[k])
                    if pd & C:
                        same = list(ins.srcc) == list(p.dst) and ins.passes == p.passes
                        w = max(w, (2, 0, 0)[k] if same else (4, 6, 10)[k])
                    if pd & D and not (pd & C):
                        w = max(w, (4, 6, 10)[k])
                elif ins.kind in ('valu', 'trans', 'vmem', 'ds'):
                    if pd & (S | D):
                        w = max(w, (5, 8, 12)[k])
                    if isvalu and set(p.srcc) & D:
                        w = max(w, (1, 3, 7)[k])
            elif p.kind == 'salu':
                if ('s', 'm0') in pd and ('s', 'm0') in S and ins.kind in ('vmem', 'ds'):
                    w = max(w, 1)
            elif p.kind == 'vmem' and p.wide_store:
                if set(p.meta) & D:
                    w = max(w, 2)
            req = max(req, w - dist)
        return req

    for it in items:
        if isinstance(it, Marker):
            if it.kind == 'label':
                out.append(it.arg)
            elif it.kind == 'raw':
                out.append(it.arg)
            elif it.kind == 'wait_vm':
                if it.arg is None:
                    do_wait(vm=0)
                else:
                    assert it.arg in tags_seen, f"wait on tag never issued: {it.arg}"
                    tags_waited.add(it.arg)
                    idx = [i for i, (t, _) in enumerate(vmq) if t == it.arg]
                    if idx:
                        do_wait(vm=len(vmq) - 1 - idx[-1])
            elif it.kind == 'wait_lgkm':
                do_wait(lg=0)
            elif it.kind == 'touch':
                vm = lg = None
                for i, (t, d) in enumerate(vmq):
                    if d & it.arg:
                        vm = len(vmq) - 1 - i
                for i, (k, d) in enumerate(lgq):
                    if d & it.arg:
                        lg = len(lgq) - 1 - i
                do_wait(vm, lg)
            elif it.kind == 'sync':
                do_wait(vm=0, lg=0)
                pend = 0
                for p, ppos in hist:
                    w = 12 if p.kind == 'mfma' else (5 if p.kind in ('valu', 'trans') else 2)
                    pend = max(pend, w - (pos - ppos - 1))
                while pend > 0:
                    n = min(pend, 16)
                    emit_raw(f"s_nop {n-1}", n)
                    pend -= n
                hist.clear()
            continue
        ins = it
        touched = set(ins.src) | (set(ins.dst) if ins.kind != 'vmem' else set())
        vm = lg = None
        for i, (t, d) in enumerate(vmq):
            if d & touched:
                vm = len(vmq) - 1 - i
        for i, (k, d) in enumerate(lgq):
            if d & touched:
                lg = len(lgq) - 1 - i
        if vm is not None or lg is not None:
            do_wait(vm, lg)
        if ins.kind == 'vmem' and len(vmq) >= 63:
            do_wait(vm=62)
        if ins.kind in ('ds', 'smem') and len(lgq) >= 15:
            do_wait(lg=14)
        n = need(ins)
        while n > 0:
            k = min(n, 16)
            emit_raw(f"s_nop {k-1}", k)
            n -= k
        if ins.op == 's_waitcnt':
            m = re.search(r'vmcnt\((\d+)\)', ins.text)
            if m and int(m.group(1)) < len(vmq):
                del vmq[:len(vmq) - int(m.group(1))]
            m = re.search(r'lgkmcnt\((\d+)\)', ins.text)
            if m and int(m.group(1)) < len(lgq):
                del lgq[:len(lgq) - int(m.group(1))]
        out.append('    ' + ins.text)
        hist.append((ins, pos))
        if ins.op == 's_nop':
            pos += int(ins.text.split()[1]) + 1
        else:
            pos += 1
        hist[:] = [(p, q) for p, q in hist if pos - q <= 20]
        if ins.kind == 'vmem':
            vmq.append((ins.tag, set(ins.dst)))
            assert ins.tag is None or ins.tag not in tags_waited, f"tag issued after its wait: {ins.tag}"
            tags_seen.add(ins.tag)
        elif ins.kind == 'ds':
            lgq.append(('ds', set(ins.dst)))
        elif ins.kind == 'smem':
            lgq.append(('smem', set(ins.dst)))
    return out


def interleave(main, fill, budget=24, start=0):
    out = []
    fi = 0
    gap = None
    nm = 0
    for it in main:
        if isinstance(it, I) and it.kind == 'mfma':
            if gap is not None and nm > start:
                while fi < len(fill) and gap + fill[fi].cost <= budget:
                    gap += fill[fi].cost
                    out.append(fill[fi])
                    fi += 1
            gap = 0
            nm += 1
            out.append(it)
        else:
            out.append(it)
            if gap is not None:
                gap += it.cost
    if gap is not None:
        while fi < len(fill) and gap + fill[fi].cost <= budget:
            gap += fill[fi].cost
            out.append(fill[fi])
            fi += 1
    return out, fill[fi:]


def spread(main, units, period, phase=0):
    out = []
    t = 0
    nxt = phase
    ui = 0
    for k, it in enumerate(main):
        out.append(it)
        t += 4 * it.passes if (isinstance(it, I) and it.kind == 'mfma') else it.cost
        nx = main[k + 1] if k + 1 < len(main) else None
        if isinstance(nx, I) and nx.op.startswith(('s_cselect', 's_subb', 's_addc', 's_cbranch_scc')):
            continue
        while ui < len(units) and t >= nxt:
            out += units[ui]
            ui += 1
            nxt += period
    return out, units[ui:]
```

```python
import sys, math, struct
import numpy as np
sys.path.insert(0, 'tools')
from emit import *

NAME = "recurrent_scan__spectral_gfnet__glu_gated_geglu__prompt_kernel"
FL_OFF = 0x000000
CS_OFF = 0x010000
Y1_OFF = 0x200000
WT_OFF = 0x400000
H_OFF = 0x600000
V_OFF = 0xD00000
ST_OFF = 0x1000000
PR_OFF = ST_OFF + 0x40000
WS_USED = 0x1100000
NPROBE = 12

OPT = dict(stamps=False, gap_budget=20, spin_limit=1 << 16, poll_cs=90, cs_wait=22, pub1_gap=24, nonce_at=1, codepf=True, rot=False, acq=False, ld3='sc1', ldf='sc1', v_s=17, serial_y=True, p3_n0=14, p3_per=2)

C1 = -2.0 * math.log2(math.e) * math.sqrt(2.0 / math.pi)
C2 = C1 * 0.044715
MISC = 9 * 16384
M_YX, M_ST = MISC, 7 * 16384
TBL_BYTES = 48 * 1024
L_T2, L_Y, L_WT = 0, 16*1024, 80*1024
L_F32, L_F64 = L_WT, L_WT + 8*1024
RING = 12
L_SX = 4 * RING * 2048

S_X, S_IDX, S_W, S_G, S_NT, S_MT, S_NONCE = 16, 17, 18, 19, 20, 21, 22
R_WS, R_WG, R_WU, R_XX, R_WR, R_WI, R_DBG = 24, 28, 32, 36, 40, 44, 48


def fbits(x):
    return struct.unpack('<I', struct.pack('<f', x))[0]


def hexf(x):
    return f"0x{fbits(x):08x}"


def srd(p, d, base, nbytes):
    p(f"s_mov_b32 s{d}, s{base}")
    p(f"s_mov_b32 s{d+1}, s{base+1}")
    p(f"s_mov_b32 s{d+2}, {nbytes}")
    p(f"s_mov_b32 s{d+3}, 0x00020000")


def R(n):
    return f"s[{n}:{n+3}]"


def probe(p, i, pset=0):
    if OPT['stamps'] and OPT.get('pset', 0) == pset:
        p(f"s_memtime s[{64+2*i}:{65+2*i}]")


def stamp_begin(p):
    if OPT['stamps']:
        p("s_memrealtime s[90:91]")
        for i in range(NPROBE):
            p(f"s_mov_b32 s{64+2*i}, 0")
        p("s_memtime s[88:89]")


def stamp_end(p, vtmp):
    if OPT['stamps']:
        p.wait_all_vm()
        p("s_memrealtime s[92:93]")
        p("s_memtime s[86:87]")
        p.wait_lgkm()
        p(f"v_mov_b32 v{vtmp}, s90")
        p(f"v_mov_b32 v{vtmp+1}, s92")
        p(f"v_lshrrev_b32 v{vtmp+2}, 6, v0")
        p(f"v_lshlrev_b32 v{vtmp+2}, 3, v{vtmp+2}")
        p(f"s_lshl_b32 s94, s2, 6")
        p(f"s_add_u32 s94, s94, {ST_OFF}")
        p(f"v_and_b32 v{vtmp+3}, 63, v0")
        p(f"v_cmp_eq_u32 vcc, 0, v{vtmp+3}")
        p("s_and_saveexec_b64 s[96:97], vcc")
        p(f"buffer_store_dwordx2 v[{vtmp}:{vtmp+1}], v{vtmp+2}, {R(R_WS)}, s94 offen")
        p(f"v_lshlrev_b32 v{vtmp+2}, 3, v{vtmp+2}")
        p(f"s_lshl_b32 s94, s2, 9")
        p(f"s_add_u32 s94, s94, {PR_OFF}")
        for i in range(NPROBE):
            p(f"s_sub_u32 s95, s{64+2*i}, s88")
            p(f"v_mov_b32 v{vtmp}, s95")
            p(f"buffer_store_dword v{vtmp}, v{vtmp+2}, {R(R_WS)}, s94 offen offset:{4*i}")
        p("s_mov_b64 exec, s[96:97]")


class Ctx:
    def __init__(self, role):
        self.role = role
        self.tail = []
        self.n = 0

    def await_flags(self, vflag, vaddr, delta, srdn=R_WS, soff=None, nonce=False):
        self.n += 1
        lab = f"{self.role}_AW{self.n}"
        so = "0" if soff is None else f"s{soff}"
        ld = f"buffer_load_dword v{vflag}, v{vaddr}, {R(srdn)}, {so} offen sc1"
        a_ = Prog()
        a_(ld)
        c = Prog()

        def cmp_(q):
            if nonce:
                q(f"v_cmp_eq_u32 vcc, 0, v{vflag}")
            else:
                q(f"v_subrev_u32 v{vflag}, s{S_NONCE}, v{vflag}")
                if delta:
                    q(f"v_subrev_u32 v{vflag}, {delta}, v{vflag}")
                q(f"v_cmp_lt_u32 vcc, {2 - delta}, v{vflag}")
        cmp_(c)
        c("s_nop 1")
        c(f"s_cbranch_vccnz {lab}_SPIN")
        c(f"{lab}_OK:")
        if nonce:
            c(f"v_readfirstlane_b32 s{S_NONCE}, v{vflag}")
        elif OPT['acq']:
            c("buffer_inv sc1")
        t = Prog()
        t(f"s_mov_b32 s101, {OPT['spin_limit']}")
        t(f"{lab}_L:")
        t(ld)
        t("s_sub_u32 s101, s101, 1")
        t("s_waitcnt vmcnt(0)")
        cmp_(t)
        t("s_cmp_eq_u32 s101, 0")
        t(f"s_cbranch_scc1 {lab}_OK")
        t("s_nop 1")
        t(f"s_cbranch_vccnz {lab}_L")
        t(f"s_branch {lab}_OK")
        self.tail += [f"{lab}_SPIN:"] + finalize(t.items)
        return a_.items, c.items

    def set_flag(self, delta, vt):
        q = Prog()
        q(f"s_add_u32 s100, s{S_NONCE}, {delta}")
        q(f"v_mov_b32 v{vt}, s100")
        q(f"s_cmp_eq_u32 s{S_W}, 0")
        q(f"s_cselect_b32 s100, 0, 0x7ffffff0")
        q(f"v_mov_b32 v{vt+1}, s100")
        q(f"s_lshl_b32 s100, s2, 7")
        q("s_mov_b64 exec, 1")
        q(f"buffer_store_dword v{vt}, v{vt+1}, {R(R_WS)}, s100 offen sc1")
        q("s_mov_b64 exec, -1")
        return q.items


V_C, V_RS = 4, 6
AD, VM, VH, DV, XV, XR, XP = 8, 14, 15, 16, 20, 24, 32
WF = 20
ST4, WTL, CSL, DD, XT, MM, FF = 44, 48, 64, 80, 96, 112, 128
STA, ONE, SGN, TMP = 192, 208, 210, 212
VWT = 3
S_ROT = 3
WX = 7 * 16384


def slot(idx):
    return (idx % 9) * 16384


def kblock(q, st, mul, base, extra=0):
    if not OPT['rot']:
        q(f"s_add_u32 s55, s{base}, {st*mul + extra}")
        return
    q(f"s_add_u32 s55, s{S_ROT}, {st}")
    q("s_and_b32 s55, s55, 7")
    q(f"s_mul_i32 s55, s55, {mul}")
    q(f"s_add_u32 s55, s55, s{base}")
    if extra:
        q(f"s_add_u32 s55, s55, {extra}")


def w_dma(chunk, ks):
    U = []
    for k in range(4):
        q = Prog()
        if k == 0:
            q(f"s_add_u32 m0, s53, {slot(8 + chunk*8 + ks)}")
            kblock(q, ks, 64*3584, 52, chunk*128)
        q(f"buffer_load_dwordx4 v{DV+k}, {R(R_WG if k < 2 else R_WU)}, s55 offen offset:{k*1024} lds", tag=('W', chunk, ks))
        U.append(q.items)
    return U


def phase1(cx, p):
    gemm = cx.role == 'G'
    t0, t1, t2, t3, t4, t5, t6, t7 = range(XT, XT + 8)
    p(f"s_and_b32 s{S_MT}, s{S_X}, 3")
    p(f"s_lshl_b32 s{S_MT}, s{S_MT}, 2")
    p(f"s_and_b32 s52, s{S_IDX}, 3")
    p(f"s_add_u32 s{S_MT}, s{S_MT}, s52")
    p(f"s_lshr_b32 s53, s{S_IDX}, 2")
    if OPT['rot']:
        p("s_lshl_b32 s52, s52, 1")
        p(f"s_add_u32 s{S_ROT}, s52, s53")
        p(f"s_and_b32 s{S_ROT}, s{S_ROT}, 7")
    p(f"s_lshr_b32 s{S_NT}, s{S_X}, 2")
    if gemm:
        p(f"s_mul_i32 s{S_NT}, s{S_NT}, 7")
        p(f"s_add_u32 s{S_NT}, s{S_NT}, s53")
    else:
        p(f"s_add_u32 s{S_NT}, s{S_NT}, 14")
    p(f"s_lshl_b32 s{S_G}, s{S_MT}, 2")
    p(f"s_add_u32 s{S_G}, s{S_G}, s{S_W}")
    p("v_and_b32 v1, 63, v0")
    p("v_lshlrev_b32 v2, 4, v1")
    p(f"v_lshrrev_b32 v{t0}, 3, v1")
    p(f"v_and_b32 v{t1}, 7, v1")
    p(f"v_lshrrev_b32 v{t2}, 4, v1")
    p(f"v_xor_b32 v{t1}, v{t1}, v{t2}")
    p(f"v_lshlrev_b32 v{t3}, 16, v{t0}")
    p(f"v_lshl_add_u32 v{XV}, v{t1}, 4, v{t3}")
    p(f"v_xor_b32 v{t1}, 4, v{t1}")
    p(f"v_lshl_add_u32 v{XV+1}, v{t1}, 4, v{t3}")
    p(f"v_add_u32 v{XV+1}, {8*65536-1024}, v{XV+1}")
    p(f"v_add_u32 v{XV+2}, {16*65536-2048}, v{XV}")
    p(f"v_add_u32 v{XV+3}, {16*65536-2048}, v{XV+1}")
    p(f"s_lshl_b32 s53, s{S_W}, 12")
    p(f"s_lshl_b32 s54, s{S_G}, 10")
    p("s_waitcnt lgkmcnt(0)")
    srd(p, R_XX, 4, 2097152)
    srd(p, R_WS, 6, WS_USED)
    srd(p, R_DBG, 14, 256)
    p("s_load_dwordx4 s[4:7], s[0:1], 48")
    lab = cx.role + "_NONCE"
    if not gemm:
        p("s_lshl_b32 s57, s2, 2")
        p("s_add_u32 s57, s57, s18")
        p("s_cmp_lg_u32 s57, 896")
        p(f"s_cbranch_scc1 {lab}_A")
        t = Prog()
        t(f"v_lshlrev_b32 v{t4}, 7, v1")
        for k in range(4):
            t(f"s_mov_b32 s56, {FL_OFF + k*8192}")
            t(f"buffer_load_dword v{TMP+k}, v{t4}, {R(R_WS)}, s56 offen sc1")
        for l in finalize(t.items):
            p.items.append(Marker('raw', l))
        p(f"{lab}_A:")
    units = []
    for ks in range(8):
        for z in range(4):
            q = Prog()
            if z == 0:
                q(f"s_add_u32 m0, s53, {slot(ks)}")
                kblock(q, ks, 128, 54)
            q(f"buffer_load_dwordx4 v{XV+z}, {R(R_XX)}, s55 offen offset:{z*1024} lds", tag=('X', ks))
            units.append(q.items)
    for u in units[:12]:
        p.add(u)
    units = units[12:]
    probe(p, 0)
    S0, S1 = DD, DD + 8
    fgen = Prog()
    fgen(f"v_and_b32 v{VM}, 31, v1")
    fgen(f"v_lshrrev_b32 v{VH}, 5, v1")
    fgen(f"v_and_b32 v{t2}, 1, v1")
    fgen(f"v_lshrrev_b32 v{t3}, 1, v{VM}")
    fgen(f"s_lshl_b32 s62, s{S_NT}, 4")
    fgen(f"v_add3_u32 v{t3}, s62, v{t3}, 1")
    fgen(f"v_lshlrev_b32 v{SGN}, 31, v{t3}")
    fgen(f"v_or_b32 v{SGN}, 1.0, v{SGN}")
    fgen(f"v_cvt_f32_u32 v{t5}, v{t2}")
    fgen(f"v_cvt_f32_u32 v{t3}, v{t3}")
    fgen(f"v_mul_f32 v{t3}, {hexf(1/512)}, v{t3}")
    fgen(f"v_mul_f32 v{t5}, {hexf(-0.25)}, v{t5}")
    fgen(f"v_add_f32 v{t5}, {hexf(0.25)}, v{t5}")
    if OPT['rot']:
        fgen(f"s_add_u32 s62, s{S_ROT}, s{S_W}")
        fgen("s_lshl_b32 s62, s62, 6")
    else:
        fgen(f"s_lshl_b32 s62, s{S_W}, 6")
    fgen(f"v_lshl_add_u32 v{t4}, v{VH}, 3, s62")
    fgen(f"v_cvt_f32_u32 v{t4}, v{t4}")
    fgen(f"v_fma_f32 v{S0}, -v{t4}, v{t3}, v{t5}")
    fgen(f"v_mul_f32 v{t4}, {hexf(16.0)}, v{t3}")
    fgen(f"v_sub_f32 v{t5}, {hexf(0.25)}, v{t4}")
    fgen(f"v_sin_f32 v{t5}, v{t5}")
    for i in range(1, 8):
        fgen(f"v_sub_f32 v{S0+i}, v{S0+i-1}, v{t3}")
    for i in range(8):
        fgen(f"v_sub_f32 v{S1+i}, v{S0+i}, v{t4}")
    fgen(f"v_add_f32 v{t5}, v{t5}, v{t5}")
    for i in range(16):
        fgen(f"v_sin_f32 v{S0+i}, v{S0+i}")
    fgen(f"v_add_u32 v{t6}, s53, v2")
    fgen(f"v_add_u32 v{t6}, {MISC}, v{t6}")
    for t in range(4):
        cur = S0 if t % 2 == 0 else S1
        oth = S1 if t % 2 == 0 else S0
        if t >= 2:
            for i in range(0, 8, 2):
                fgen(f"v_pk_fma_f32 {v(cur+i,2)}, {v(t5-1,2)}, {v(oth+i,2)}, {v(cur+i,2)} op_sel:[1,0,0] op_sel_hi:[1,1,1] neg_lo:[0,0,1] neg_hi:[0,0,1]")
        for i in range(4):
            fgen(f"v_cvt_pk_bf16_f32 v{FF+4*t+i}, v{cur+2*i}, v{cur+2*i+1}")
        fgen(f"ds_write_b128 v{t6}, {v(FF+4*t,4)} offset:{t*1024}")
    svc = Prog()
    srd(svc, R_WR, 8, 2048*257*2)
    srd(svc, R_WI, 10, 2048*257*2)
    u0, u2 = 40, 41
    if gemm:
        srd(svc, R_WG, 12, 512*1792*2)
        svc(f"s_sub_u32 s{R_WU}, s58, 2048")
        svc(f"s_subb_u32 s{R_WU+1}, s59, 0")
        svc(f"s_mov_b32 s{R_WU+2}, {512*1792*2 + 2048}")
        svc(f"s_mov_b32 s{R_WU+3}, 0x00020000")
        svc(f"v_and_b32 v{t1}, 7, v1")
        svc(f"v_mul_u32_u24 v{t3}, 3584, v{t0}")
        svc(f"v_and_b32 v{t2}, 2, v{t0}")
        svc(f"v_xor_b32 v{t1}, v{t1}, v{t2}")
        svc(f"v_lshl_add_u32 v{DV}, v{t1}, 4, v{t3}")
        svc(f"v_xor_b32 v{t1}, 4, v{t1}")
        svc(f"v_lshl_add_u32 v{DV+2}, v{t1}, 4, v{t3}")
        svc(f"v_add_u32 v{DV+1}, {8*3584-1024}, v{DV}")
        svc(f"v_add_u32 v{DV+3}, {8*3584-1024}, v{DV+2}")
        svc(f"s_mul_i32 s52, s{S_W}, {16*3584}")
        svc(f"s_lshl_b32 s56, s{S_NT}, 8")
        svc("s_add_u32 s52, s52, s56")
    svc(f"s_lshr_b32 s61, s{S_IDX}, 4")
    svc("s_lshl_b32 s61, s61, 2")
    svc(f"s_add_u32 s61, s61, s{S_W}")
    svc(f"v_lshrrev_b32 v{t2}, 4, v1")
    svc(f"v_mul_u32_u24 v{t2}, 514, v{t2}")
    svc(f"v_and_b32 v{t3}, 15, v1")
    svc(f"v_lshl_add_u32 v{u0}, v{t3}, 2, v{t2}")
    svc(f"v_lshrrev_b32 v{t2}, 2, v1")
    svc(f"v_lshlrev_b32 v{t2}, 13, v{t2}")
    svc(f"v_and_b32 v{t3}, 3, v1")
    svc(f"v_lshl_add_u32 v{VWT}, v{t3}, 4, v{t2}")
    svc(f"s_bfe_u32 s60, s{S_IDX}, 0x10003")
    svc(f"s_lshl_b32 s62, s{S_X}, 1")
    svc("s_add_u32 s60, s60, s62")
    svc(f"s_and_b32 s62, s{S_IDX}, 7")
    svc("s_lshl_b32 s60, s60, 3")
    svc("s_add_u32 s62, s62, s60")
    svc("s_lshl_b32 s23, s62, 6")
    svc("s_lshl_b32 s63, s61, 18")
    svc("s_add_u32 s23, s23, s63")
    svc(f"s_add_u32 s23, s23, {WT_OFF}")
    svc("s_mul_i32 s60, s60, 3")
    svc("s_add_u32 s62, s62, s60")
    svc("s_mul_i32 s62, s62, 2056")
    svc("s_lshl_b32 s61, s61, 6")
    svc("s_add_u32 s61, s61, s62")
    nsetup = len(svc.items)
    small = []
    for e in range(4):
        q = Prog()
        if e:
            q("s_add_u32 s61, s61, 16448")
        for c in range(2):
            q(f"buffer_load_dword v{WTL+4+c*8+e}, v{u0}, {R(R_WR if c == 0 else R_WI)}, s61 offen offset:2")
        small.append(q.items)
    if not gemm:
        svc(f"s_and_b32 s56, s{S_X}, 3")
        svc("s_lshl_b32 s56, s56, 2")
        svc(f"s_add_u32 s56, s56, s{S_IDX}")
        svc("s_sub_u32 s56, s56, 28")
        svc("s_bitcmp1_b32 s56, 0")
        svc(f"s_cselect_b32 s{R_WG}, s58, s12")
        svc(f"s_cselect_b32 s{R_WG+1}, s59, s13")
        svc(f"s_mov_b32 s{R_WG+2}, {512*1792*2}")
        svc(f"s_mov_b32 s{R_WG+3}, 0x00020000")
        svc(f"s_lshr_b32 s58, s{S_X}, 2")
        svc("s_mul_i32 s58, s58, 7")
        svc("s_lshr_b32 s59, s56, 1")
        svc("s_add_u32 s58, s58, s59")
        svc("s_lshl_b32 s52, s58, 8")
        svc(f"s_mul_i32 s59, s{S_W}, {128*3584}")
        svc("s_add_u32 s52, s52, s59")
        svc("s_lshl_b32 s58, s58, 11")
        svc("s_and_b32 s59, s56, 1")
        svc("s_lshl_b32 s59, s59, 7")
        svc("s_add_u32 s58, s58, s59")
        svc(f"s_add_u32 s58, s58, {CS_OFF}")
        svc("s_cmp_ge_u32 s56, 14")
        svc("s_cselect_b32 s52, 0x7f000000, s52")
        svc("s_cselect_b32 s58, 0x7f000000, s58")
        svc(f"v_lshrrev_b32 v{t2}, 4, v1")
        svc(f"v_mul_u32_u24 v{t2}, 3584, v{t2}")
        svc(f"v_and_b32 v{t3}, 15, v1")
        svc(f"v_lshl_add_u32 v{u2}, v{t3}, 4, v{t2}")
        nsetup = len(svc.items)
        for k in range(32):
            q = Prog()
            q(f"s_add_u32 s59, s52, {k*4*3584}")
            q(f"buffer_load_dwordx4 {a(128+4*k,4)}, v{u2}, {R(R_WG)}, s59 offen")
            small.append(q.items)
    S0, S1 = DD, DD + 8
    svc(f"v_bfe_u32 v{t3}, v1, 2, 1")
    svc(f"v_bfe_u32 v{t4}, v1, 3, 2")
    svc(f"v_lshlrev_b32 v{t4}, 2, v{t4}")
    svc(f"v_lshl_add_u32 v{t3}, v{t3}, 4, v{t4}")
    svc(f"v_and_or_b32 v{t3}, v1, 3, v{t3}")
    svc(f"v_cvt_f32_u32 v{t3}, v{t3}")
    svc(f"v_mul_f32 v{t3}, {hexf(1/2048)}, v{t3}")
    svc(f"v_lshl_add_u32 v{t4}, v{VH}, 8, s{S_G}")
    svc(f"v_cvt_f32_u32 v{t4}, v{t4}")
    svc(f"v_mul_f32 v{S1}, v{t4}, v{t3}")
    svc(f"v_mul_f32 v{t3}, {hexf(64.0)}, v{t3}")
    svc(f"v_mul_f32 v{t4}, {hexf(8.0)}, v{t3}")
    svc(f"v_add_f32 v{t5}, v{t4}, v{t4}")
    for t in range(2):
        if t == 0:
            for i in range(1, 4):
                svc(f"v_add_f32 v{S1+i}, v{S1+i-1}, v{t3}")
            for i in range(4):
                svc(f"v_add_f32 v{S1+4+i}, v{S1+i}, v{t4}")
        for i in range(8):
            svc(f"v_cos_f32 v{S0+i}, v{S1+i}")
        for i in range(4):
            svc(f"v_cvt_pk_bf16_f32 v{MM+4*t+i}, v{S0+2*i}, v{S0+2*i+1}")
        for i in range(8):
            svc(f"v_sin_f32 v{S0+i}, v{S1+i}")
        for i in range(4):
            svc(f"v_cvt_pk_bf16_f32 v{MM+8+4*t+i}, v{S0+2*i}, v{S0+2*i+1}")
        if t == 0:
            for i in range(8):
                svc(f"v_add_f32 v{S1+i}, v{S1+i}, v{t5}")
    svc(f"v_bfe_u32 v{t3}, v1, 1, 3")
    svc(f"v_xor_b32 v{t3}, v{t3}, v{VH}")
    svc(f"v_lshlrev_b32 v{t4}, 7, v{VM}")
    svc(f"v_add_u32 v{t4}, s53, v{t4}")
    for tp in range(4):
        svc(f"v_xor_b32 v{t5}, {2*tp}, v{t3}")
        svc(f"v_lshl_add_u32 v{XR+tp}, v{t5}, 4, v{t4}")
        svc(f"v_add_u32 v{XR+4+tp}, 0x10000, v{XR+tp}")
        if gemm:
            svc(f"v_xor_b32 v{XP+tp}, 0x1000, v{XR+tp}")
            svc(f"v_xor_b32 v{XP+4+tp}, 0x1000, v{XR+4+tp}")
    if gemm:
        svc(f"v_bfe_u32 v{t3}, v1, 2, 2")
        svc(f"v_and_b32 v{t4}, 3, v1")
        svc(f"v_bfe_u32 v{t5}, v1, 4, 1")
        svc(f"v_lshl_add_u32 v{t6}, v{VH}, 3, v{t3}")
        svc(f"v_lshlrev_b32 v{t6}, 7, v{t6}")
        svc(f"v_lshl_add_u32 v{t6}, v{t5}, 11, v{t6}")
        svc(f"v_and_b32 v{t2}, 1, v{t4}")
        svc(f"v_and_b32 v{t3}, 2, v{t3}")
        svc(f"v_xor_b32 v{t2}, v{t2}, v{t3}")
        svc(f"v_lshlrev_b32 v{t5}, 2, v{t5}")
        svc(f"v_xor_b32 v{t2}, v{t2}, v{t5}")
        svc(f"v_lshl_add_u32 v{t6}, v{t2}, 4, v{t6}")
        svc(f"v_lshrrev_b32 v{t4}, 1, v{t4}")
        svc(f"v_lshl_add_u32 v{t6}, v{t4}, 3, v{t6}")
        svc(f"s_and_b32 s63, s{S_W}, 1")
        svc("s_lshl_b32 s63, s63, 6")
        svc(f"v_xor_b32 v{AD}, s63, v{t6}")
        svc(f"v_xor_b32 v{AD+1}, 32, v{AD}")
        for k in range(2):
            svc(f"v_add_u32 v{AD+2+k}, 0x10000, v{AD+k}")
            svc(f"v_add_u32 v{AD+4+k}, 0x20000, v{AD+k}")
        svc(f"v_mov_b32 v{V_C}, {hexf(C1)}")
        svc(f"v_mov_b32 v{V_C+1}, {hexf(C2)}")
    svc(f"v_mov_b32 v{ONE}, 0x3f803f80")
    svc(f"v_mov_b32 v{ONE+1}, 0x3f803f80")
    svc(f"v_add_u32 v{t6}, {MISC}, v2")
    svc.wait_lgkm()
    svc("s_barrier")
    for t in range(16):
        svc(f"ds_read_b128 {v(FF+4*t,4)}, v{t6} offset:{t*1024}")
    extra = []
    if OPT['codepf']:
        q2 = Prog()
        q2("s_getpc_b64 s[96:97]")
        q2(f"{cx.role}_PC:")
        q2(f"s_sub_u32 s96, s96, {cx.role}_PC-{NAME}")
        q2("s_subb_u32 s97, s97, 0")
        q2(f"s_mov_b32 s98, CODE_END-{NAME}")
        q2("s_mov_b32 s99, 0x00020000")
        q2(f"s_lshl_b32 s100, s{S_IDX}, 12")
        q2(f"v_lshlrev_b32 v{XT+12}, 4, v0")
        q2(f"buffer_load_dwordx4 v[{TMP+12}:{TMP+15}], v{XT+12}, s[96:99], s100 offen")
        extra = [q2.items]
    wun = (w_dma(0, 0) if gemm else [])
    PER = OPT.get('p1_period', 64)
    mer, left = spread(fgen.items + svc.items[:nsetup], extra + units, PER)
    p.add(mer)
    NYOUNG = sum(1 for x in p.items if isinstance(x, I) and x.kind == 'vmem')
    if not gemm:
        p("s_cmp_lg_u32 s57, 896")
        p(f"s_cbranch_scc1 {lab}_B")
        t = Prog()
        t(f"s_waitcnt vmcnt({NYOUNG})")
        t("s_mov_b32 s56, -3")
        t(f"{lab}_L:")
        t("s_add_u32 s56, s56, 4")
        for k in range(4):
            t(f"v_subrev_u32 v{TMP+4+k}, s56, v{TMP+k}")
        t(f"v_min_u32 v{TMP+4}, v{TMP+4}, v{TMP+5}")
        t(f"v_min3_u32 v{TMP+4}, v{TMP+4}, v{TMP+6}, v{TMP+7}")
        t(f"v_cmp_ge_u32 vcc, 3, v{TMP+4}")
        t("s_nop 1")
        t(f"s_cbranch_vccnz {lab}_L")
        t(f"v_mov_b32 v{TMP+8}, s56")
        t(f"v_mov_b32 v{TMP+9}, 0")
        t("s_mov_b64 exec, 1")
        t(f"buffer_store_dword v{TMP+8}, v{TMP+9}, {R(R_DBG)}, 0 offen sc1")
        t("s_mov_b64 exec, -1")
        t("s_nop 1")
        for l in finalize(t.items):
            p.items.append(Marker('raw', l))
        p(f"{lab}_B:")
    probe(p, 0, 2)
    mer, left = spread(svc.items[nsetup:], left + small + wun, PER)
    p.add(mer)
    probe(p, 1)
    probe(p, 1, 2)
    units = [(-1, u) for u in left]
    if gemm:
        for ks in range(1, 8):
            units += [(ks - 1, u) for u in w_dma(0, ks)]

    def xreads(ks):
        q = Prog()
        off = slot(ks)
        for tp in range(4):
            q(f"ds_read_b128 {a(ks*16 + 4*tp, 4)}, v{XR + tp + 4*(off >> 16)} offset:{off & 0xffff}")
        if gemm:
            for tp in range(4):
                q(f"ds_read_b128 {a(128 + ks*16 + 4*tp, 4)}, v{XP + tp + 4*(off >> 16)} offset:{off & 0xffff}")
        return q.items
    NF = TMP + 16
    nq = Prog()
    nq(f"v_mov_b32 v{NF+1}, 0")
    iss, chk_nonce = cx.await_flags(NF, NF + 1, 0, srdn=R_DBG, nonce=True)
    nq.add(iss)
    p.wait_vm(('X', 0))
    if gemm:
        p("s_barrier")
    p.add(xreads(0))
    for ks in range(8):
        probe(p, 2 + ks, 2)
        p.touch(a(ks*16, 16))
        if gemm:
            p.touch(a(128 + ks*16, 16))
        rd = []
        if ks + 1 < 8:
            p.wait_vm(('X', ks + 1))
            if gemm:
                p("s_barrier")
            rd = xreads(ks + 1)
        for tp in range(4):
            t = ks*4 + tp
            d = DD + 16 * (t >> 4)
            p(f"v_mfma_f32_32x32x16_bf16 {v(d,16)}, {a(4*t,4)}, {v(FF+4*(t & 15),4)}, {'0' if t % 16 == 0 else v(d,16)}")
            nrd = -(-len(rd) // (4 - tp))
            p.add(rd[:nrd])
            rd = rd[nrd:]
            for _ in range(1):
                if units and units[0][0] <= ks:
                    p.add(units.pop(0)[1])
            for hf in range(2):
                x_ = a(4*t + 2*hf, 2)
                for k, A_ in enumerate((v(ONE, 2), x_)):
                    r = v(STA + 8*k + 4*hf, 4)
                    p(f"v_mfma_f32_4x4x4_16b_bf16 {r}, {A_}, {x_}, {'0' if t == 0 else r}")
        if ks == OPT['nonce_at']:
            p.add(nq)
    probe(p, 2)
    probe(p, 0, 1)
    a0 = Prog()
    TA, TB_, TC = CSL + 4, CSL + 5, CSL + 6
    a1 = Prog()
    a1(f"v_and_b32 v{ST4+1}, 3, v1")
    for k in range(4):
        a1(f"v_add_f32 v{STA+8+k}, v{STA+8+k}, v{STA+12+k}")
    a1(f"v_add_f32 v{ST4}, v{STA}, v{STA+4}")
    for k in range(1, 4):
        a1(f"v_cmp_eq_u32 vcc, {k}, v{ST4+1}")
        a1(f"v_fma_f32 v{DD+k}, v{DD+16+k}, v{SGN}, v{DD+k}")
        a1(f"v_fma_f32 v{DD+4+k}, v{DD+20+k}, v{SGN}, v{DD+4+k}")
        a1(f"v_cndmask_b32 v{STA+8 if k < 3 else ST4+2}, v{STA+8}, v{STA+8+k}, vcc")
    a1(f"v_mov_b32 v{ST4+1}, v{ST4}")
    a1(f"v_mov_b32 v{ST4+3}, v{ST4+2}")
    a1(f"s_add_u32 s60, s53, {M_ST}")
    a1(f"v_lshl_add_u32 v{TA}, v{VM}, 2, s60")
    a1(f"v_permlane32_swap_b32 v{ST4}, v{ST4+1}")
    a1(f"v_permlane32_swap_b32 v{ST4+2}, v{ST4+3}")
    a1(f"v_add_f32 v{ST4}, v{ST4}, v{ST4+1}")
    a1(f"v_add_f32 v{ST4+2}, v{ST4+2}, v{ST4+3}")
    a1(f"v_mul_f32 v{ST4}, {hexf(1/512)}, v{ST4}")
    a1(f"v_mul_f32 v{ST4+2}, {hexf(1/512)}, v{ST4+2}")
    a1(f"v_fma_f32 v{ST4+2}, -v{ST4}, v{ST4}, v{ST4+2}")
    a1(f"v_max_f32 v{ST4+2}, 0, v{ST4+2}")
    a1(f"v_cvt_pk_bf16_f32 v{ST4}, v{ST4}, v{ST4+2}")
    a1(f"v_and_b32 v{ST4+2}, 0xffff0000, v{ST4}")
    a1(f"v_add_f32 v{ST4+2}, {hexf(1e-5)}, v{ST4+2}")
    a1(f"v_cvt_pk_bf16_f32 v{ST4+2}, v{ST4+2}, v{ST4+2}")
    a1(f"v_and_b32 v{ST4+2}, 0xffff0000, v{ST4+2}")
    a1(f"v_sqrt_f32 v{ST4+2}, v{ST4+2}")
    a1(f"v_lshl_add_u32 v{ST4+3}, v{VH}, 4, s60")
    a1(f"v_cvt_pk_bf16_f32 v{ST4+2}, v{ST4+2}, v{ST4+2}")
    a1(f"v_and_b32 v{V_RS+1}, 0xffff0000, v{ST4+2}")
    a1(f"v_rcp_f32 v{V_RS}, v{V_RS+1}")
    a1(f"v_and_b32 v{ST4}, 0xffff, v{ST4}")
    a1(f"v_or_b32 v{ST4}, v{ST4}, v{V_RS+1}")
    a1(f"ds_write2_b32 v{TA}, v{V_RS}, v{ST4} offset0:0 offset1:32")
    for rq in range(4):
        a1(f"ds_read_b128 {v(STA+4*rq,4)}, v{ST4+3} offset:{rq*32}")
    for r in (0, 4, 8, 9, 10, 11, 12, 13, 14, 15):
        a1(f"v_fma_f32 v{DD+r}, v{DD+16+r}, v{SGN}, v{DD+r}")
    a1.gap(1)
    for r in range(16):
        a1(f"v_mul_f32 v{DD+r}, v{DD+r}, v{STA+r}")
    YB = CSL + 8
    for k in range(8):
        a1(f"v_cvt_pk_bf16_f32 v{YB + k}, v{DD+2*k}, v{DD+2*k+1}")
    PP, QQ = DD, XT
    m1 = Prog()
    for t in range(2):
        m1(f"v_mfma_f32_32x32x16_bf16 {v(PP,16)}, {v(MM+4*t,4)}, {v(YB+4*t,4)}, {'0' if t == 0 else v(PP,16)}")
        m1(f"v_mfma_f32_32x32x16_bf16 {v(QQ,16)}, {v(MM+8+4*t,4)}, {v(YB+4*t,4)}, {'0' if t == 0 else v(QQ,16)}")
    a2 = Prog()
    a2(f"s_add_u32 s62, s53, {M_YX}")
    a2(f"v_and_b32 v{TB_}, 15, v1")
    a2(f"v_lshl_add_u32 v{TB_}, v{TB_}, 7, s62")
    a2(f"v_lshrrev_b32 v{TC}, 4, v1")
    a2(f"v_and_b32 v{ST4+3}, 7, v1")
    a2(f"v_xor_b32 v{TC}, v{TC}, v{ST4+3}")
    a2(f"v_lshl_add_u32 v{TB_}, v{TC}, 4, v{TB_}")
    a2(f"v_xor_b32 v{TC}, 64, v{TB_}")
    a2("s_mov_b32 s60, 0x05040100")
    a2("s_mov_b32 s61, 0x07060302")
    for z in range(2):
        for e in range(4):
            a2(f"v_perm_b32 v{WTL+z*8+e}, v{WTL+12+e}, v{WTL+4+e}, s{60+z}")
        a2(f"ds_write_b128 v{TB_+z}, {v(WTL+z*8,4)}")
    a2(f"v_lshlrev_b32 v{ST4+1}, 1, v1")
    a2(f"v_and_b32 v{ST4+1}, 0x70, v{ST4+1}")
    a2(f"v_xor_b32 v{ST4+1}, v{ST4+1}, v2")
    a2(f"v_add_u32 v{ST4+1}, s62, v{ST4+1}")
    a2(f"ds_read_b128 {v(WTL,4)}, v{ST4+1}")
    a2(f"ds_read_b128 {v(WTL+8,4)}, v{ST4+1} offset:1024")
    a2(f"v_lshlrev_b32 v{ST4+2}, 31, v1")
    a2(f"v_or_b32 v{ST4+2}, 1.0, v{ST4+2}")
    a2(f"v_lshlrev_b32 v{TB_}, 6, v{VM}")
    a2(f"v_lshl_add_u32 v{TB_}, v{VH}, 5, v{TB_}")
    a2(f"v_lshlrev_b32 v{TC}, 3, v1")
    a2(f"v_and_b32 v{TC}, 0x70, v{TC}")
    a2(f"v_xor_b32 v{TB_}, v{TB_}, v{TC}")
    a2(f"v_add_u32 v{TB_}, s62, v{TB_}")
    a2(f"v_xor_b32 v{TC}, 16, v{TB_}")
    for r in range(16):
        a2(f"v_fmac_f32_dpp v{PP+r}, v{QQ+r}, v{ST4+2} quad_perm:[1,0,3,2] row_mask:0xf bank_mask:0xf")
    for k in range(8):
        a2(f"v_cvt_pk_bf16_f32 v{QQ+k}, v{PP+2*k}, v{PP+2*k+1}")
        if k % 4 == 3:
            a2(f"ds_write_b128 v{TB_ + (k >> 2)}, {v(QQ+k-3,4)} offset:2048")
    a2(f"ds_read_b128 {v(QQ+8,4)}, v{ST4+1} offset:2048")
    a2(f"ds_read_b128 {v(QQ+12,4)}, v{ST4+1} offset:3072")
    a2(f"s_add_u32 s60, s23, {16*8192}")
    a2(f"buffer_store_dwordx4 {v(WTL,4)}, v{VWT}, {R(R_WS)}, s23 offen sc1", tag='P1st')
    a2(f"buffer_store_dwordx4 {v(WTL+8,4)}, v{VWT}, {R(R_WS)}, s60 offen sc1", tag='P1st')
    a2(f"v_lshrrev_b32 v{TC}, 3, v1")
    a2(f"v_lshlrev_b32 v{TC}, 13, v{TC}")
    a2(f"v_lshl_add_u32 v{TC}, v{ST4+3}, 4, v{TC}")
    a2(f"s_lshl_b32 s60, s{S_NT}, 17")
    a2(f"s_lshl_b32 s61, s{S_G}, 7")
    a2("s_add_u32 s60, s60, s61")
    a2(f"s_add_u32 s60, s60, {Y1_OFF}")
    a2("s_add_u32 s61, s60, 65536")
    a2.gap(1)
    a2(f"buffer_store_dwordx4 {v(QQ+8,4)}, v{TC}, {R(R_WS)}, s60 offen sc1", tag='P1st')
    a2(f"buffer_store_dwordx4 {v(QQ+12,4)}, v{TC}, {R(R_WS)}, s61 offen sc1", tag='P1st')
    a3 = Prog()
    if OPT.get('log'):
        print("A units left", len(units))
    return [u for _, u in units], a0.items, a1.items + chk_nonce, m1.items, a2.items, a3.items, TA


def gemm_phase(cx, p, left_a, a0, a1, m1, a2, a3, TA):
    ACC = 128
    ET = 64
    RB, RA, RSP = 88, 96, 124

    def reads(j):
        chunk, step, tl = j >> 6, (j >> 1) & 31, j & 1
        off = slot(8 + chunk*8 + (step >> 2)) + (step & 3) * 4096
        ad = AD + tl + 2 * (off >> 16)
        off &= 0xffff
        r = WF + (j % 6) * 4
        return [I(f"ds_read_b64_tr_b16 {v(r,2)}, v{ad} offset:{off}"),
                I(f"ds_read_b64_tr_b16 {v(r+2,2)}, v{ad} offset:{off+512}")]

    def epilogue(n, packed):
        q = Prog()
        G, Uu = ACC + 16*n, ACC + 16*n + 8
        Z = ET + (n & 1) * 8
        PK = ET + 16 + (n & 1) * 4
        RS = V_RS if (n & 1) == 0 else RSP
        if not packed:
            for i in range(8):
                q(f"v_mul_f32 v{G+i}, v{G+i}, v{RS}")
            for i in range(8):
                q(f"v_mul_f32 v{Z+i}, v{G+i}, v{G+i}")
            for i in range(8):
                q(f"v_fma_f32 v{Z+i}, v{Z+i}, v{V_C+1}, v{V_C}")
            for i in range(8):
                q(f"v_mul_f32 v{Z+i}, v{Z+i}, v{G+i}")
            for i in range(8):
                q(f"v_exp_f32 v{Z+i}, v{Z+i}")
                q(f"v_mul_f32 v{G+i}, v{G+i}, v{Uu+i}")
            for i in range(8):
                q(f"v_fma_f32 v{Z+i}, v{Z+i}, v{RS+1}, v{RS+1}")
            for i in range(8):
                q(f"v_rcp_f32 v{Z+i}, v{Z+i}")
            for i in range(8):
                q(f"v_mul_f32 v{G+i}, v{G+i}, v{Z+i}")
        else:
            rs = v(RS, 2)
            for i in range(0, 8, 2):
                q(f"v_pk_mul_f32 {v(G+i,2)}, {v(G+i,2)}, {rs} op_sel_hi:[1,0]")
            for i in range(0, 8, 2):
                q(f"v_pk_mul_f32 {v(Z+i,2)}, {v(G+i,2)}, {v(G+i,2)}")
            for i in range(0, 8, 2):
                q(f"v_pk_fma_f32 {v(Z+i,2)}, {v(Z+i,2)}, {v(V_C,2)}, {v(V_C,2)} op_sel:[0,1,0] op_sel_hi:[1,1,0]")
            for i in range(0, 8, 2):
                q(f"v_pk_mul_f32 {v(Z+i,2)}, {v(Z+i,2)}, {v(G+i,2)}")
            for i in range(8):
                q(f"v_exp_f32 v{Z+i}, v{Z+i}")
                if i % 2 == 0:
                    q(f"v_pk_mul_f32 {v(G+i,2)}, {v(G+i,2)}, {v(Uu+i,2)}")
            for i in range(0, 8, 2):
                q(f"v_pk_fma_f32 {v(Z+i,2)}, {v(Z+i,2)}, {rs}, {rs} op_sel:[0,1,1] op_sel_hi:[1,1,1]")
            for i in range(8):
                q(f"v_rcp_f32 v{Z+i}, v{Z+i}")
            for i in range(0, 8, 2):
                q(f"v_pk_mul_f32 {v(G+i,2)}, {v(G+i,2)}, {v(Z+i,2)}")
        for i in range(4):
            q(f"v_cvt_pk_bf16_f32 v{PK+i}, v{G+2*i}, v{G+2*i+1}")
        so = 56 + (n & 1) * 2 + (n >> 2)
        q(f"buffer_store_dwordx4 {v(PK,4)}, v2, {R(R_WS)}, s{so} offen offset:{((n >> 1) & 1)*1024} sc1", tag='Hst')
        return q.items

    GA = CSL + 7
    CP = 104
    b0 = Prog()
    b0(f"v_lshlrev_b32 v{GA}, 3, v{VM}")
    b0(f"s_lshl_b32 s51, s{S_NT}, 11")
    b0("s_lshl_b32 s60, s63, 3")
    b0("s_add_u32 s51, s51, s60")
    b0(f"s_add_u32 s51, s51, {CS_OFF}")
    b1 = Prog()
    b1(f"v_xor_b32 v{TA}, 0x1000, v{TA}")
    b1(f"ds_read2_b32 {v(RSP,2)}, v{TA} offset0:0 offset1:32")
    b1("v_cmp_gt_u32 vcc, 32, v1")
    for k in range(2):
        if k:
            b1.gap(3)
        src = ST4 if k == 0 else RSP + 1
        r = RB + 4*k
        b1(f"v_mov_b32 v{r+2}, 0")
        b1(f"v_mov_b32 v{r+3}, 0")
        b1(f"v_and_b32 v{r}, 0xffff, v{src}")
        b1(f"v_xor_b32 v{r}, 0x8000, v{r}")
        b1(f"v_cndmask_b32 v{r+1}, 0, v{r}, vcc")
        b1(f"v_lshl_or_b32 v{r}, v{r+1}, 16, v{r+1}")
    b1(f"v_and_b32 v{RSP+1}, 0xffff0000, v{RSP+1}")
    for k in range(2):
        b1(f"s_xor_b32 s{56+2*k}, s{S_G}, {k}")
        b1(f"s_mul_i32 s{56+2*k}, s{56+2*k}, 112")
        b1(f"s_lshl_b32 s{57+2*k}, s{S_NT}, 3")
        b1(f"s_add_u32 s{56+2*k}, s{56+2*k}, s{57+2*k}")
        b1(f"s_lshl_b32 s{56+2*k}, s{56+2*k}, 10")
        b1(f"s_lshl_b32 s{57+2*k}, s63, 5")
        b1(f"s_add_u32 s{56+2*k}, s{56+2*k}, s{57+2*k}")
        b1(f"s_add_u32 s{56+2*k}, s{56+2*k}, {H_OFF}")
        b1(f"s_add_u32 s{57+2*k}, s{56+2*k}, 4096")
    ld_cs = [[I(f"buffer_load_dwordx2 {v(CP+2*k,2)}, v{GA}, {R(R_WS)}, s51 offen offset:{(k >> 1)*1024 + (k & 1)*256} sc1")]
             for k in range(4)]

    def tags_bad(q):
        for k in range(4):
            q(f"v_xor_b32 v{CP+2*k+1}, s{S_NONCE}, v{CP+2*k+1}")
        q(f"v_or3_b32 v{CP+1}, v{CP+1}, v{CP+3}, v{CP+5}")
        q(f"v_or_b32 v{CP+1}, v{CP+1}, v{CP+7}")
        q(f"v_cmp_ne_u32 vcc, 0, v{CP+1}")
    c1 = Prog()
    tags_bad(c1)
    c1("s_nop 1")
    c1("s_cbranch_vccnz G_CS_SPIN")
    c1("G_CS_OK:")
    t = Prog()
    t(f"s_mov_b32 s101, {OPT['spin_limit']}")
    t("G_CS_L:")
    for u in ld_cs:
        t.add(u)
    t("s_sub_u32 s101, s101, 1")
    t("s_waitcnt vmcnt(0)")
    tags_bad(t)
    t("s_cmp_eq_u32 s101, 0")
    t("s_cbranch_scc1 G_CS_OK")
    t("s_nop 1")
    t("s_cbranch_vccnz G_CS_L")
    t("s_branch G_CS_OK")
    cx.tail += ["G_CS_SPIN:"] + finalize(t.items)
    for k in range(2):
        c1(f"v_mov_b32 v{RA+4*k+2}, 0")
        c1(f"v_mov_b32 v{RA+4*k+3}, 0")

    def rank1_prep(k):
        q = Prog()
        r = RA + 4 * (k & 1)
        c = CP + 2*k
        q(f"v_and_b32 v{r}, 0xffff0000, v{c}")
        q(f"v_sub_f32 v{c}, v{c}, v{r}")
        q(f"v_and_b32 v{r+1}, 0xffff0000, v{c}")
        q(f"v_sub_f32 v{c}, v{c}, v{r+1}")
        q(f"v_lshrrev_b32 v{r}, 16, v{r}")
        q(f"v_or_b32 v{r}, v{r}, v{r+1}")
        q(f"v_lshrrev_b32 v{r+1}, 16, v{c}")
        return q.items

    def rank1(n):
        r = RA + 4 * ((n >> 1) & 1)
        return I(f"v_mfma_f32_32x32x16_bf16 {v(ACC+16*n,16)}, {v(r,4)}, {v(RB+4*(n&1),4)}, {v(ACC+16*n,16)}")

    seen = set()
    ev = set()

    def rd_for(j):
        q = Prog()
        key = (j >> 6, (j >> 3) & 7)
        if key not in seen:
            seen.add(key)
            q.wait_vm(('W',) + key)
            q("s_barrier")
            if 'p3' in ev:
                ev.add('p3ok')
        r = reads(j)
        return q.items + r[:1], r[1:]

    def group(f):
        q = Prog()
        f(q)
        return [q.items]

    def publish(tag, delta):
        def f(q):
            q.wait_vm(tag)
            q("s_barrier")
            q.add(cx.set_flag(delta, CSL + 12))
        return group(f)
    LAF = 4
    for j in range(LAF):
        x_, y_ = rd_for(j)
        p.add(x_ + y_)
    BUD = OPT['gap_budget']
    bar = group(lambda q: q("s_barrier"))
    timed = [(OPT['poll_cs'] + 2*k, u) for k, u in enumerate(ld_cs)]
    script = [('fill', a1), ('mfma', m1), ('fill', b0.items + a2), ('mark', 'y'), ('at', 42),
              ('fill', b1.items), ('unit', [p3_setup()]), ('ev', 'p3'),
              ('after', ('y', OPT['pub1_gap'])), ('unit', publish('P1st', 1)),
              ('at', OPT['poll_cs'] + 8 + OPT['cs_wait']),
              ('fill', c1.items + rank1_prep(0) + rank1_prep(1)),
              ('at', 130), ('mfma', [rank1(n) for n in range(4)]),
              ('fill', rank1_prep(2) + rank1_prep(3))]
    marks = {}
    for n in range(4):
        script += [('fill', epilogue(n, False))]
    if OPT.get('serial_y'):
        p.add(a1 + m1 + b0.items + a2)
        script = [('mark', 'y'), ('after', ('y', OPT['pub1_gap'])), script[9]] + script[4:8] + script[10:]
        probe(p, 0, 1)
    units = [((lambda: True), u) for u in left_a]
    for ks in (1, 2, 3, 4, 0, 5, 6, 7):
        cond = (lambda: 'p3ok' in ev) if ks == 0 else ((lambda k=ks: (0, k + 1) in seen) if ks < 7 else (lambda: (1, 0) in seen))
        units += [(cond, u) for u in w_dma(1, ks)]
    for q_ in range(8):
        cond = (lambda k=q_: 'p3ok' in ev and (1, max(1, k)) in seen)
        units += [(cond, u) for u in wd_units('G', q_)]
    prio_units = []
    fill = []
    last_dsw = -100
    hold = 0
    log = []
    pend = []
    for i in range(256):
        j, rgi = i >> 1, i & 1
        n = (j >> 6) * 4 + (j & 1) * 2 + rgi
        step = (j >> 1) & 31
        gap = Prog()
        if i % 4 == 0:
            p.touch(v(WF + ((j + 1) % 6) * 4, 4))
        c = "0" if step == 0 else v(ACC + 16*n, 16)
        p(f"v_mfma_f32_32x32x16_bf16 {v(ACC+16*n,16)}, {v(WF + (j % 6)*4, 4)}, {a(rgi*128 + step*4,4)}, {c}")
        if rgi == 0:
            if j + LAF < 128:
                x_, pend = rd_for(j + LAF)
                gap.add(x_)
        else:
            gap.add(pend)
            pend = []
        if prio_units:
            gap.add(prio_units.pop(0))
        elif timed and i >= timed[0][0] and i % 2 == 0:
            gap.add(timed.pop(0)[1])
        elif units and i % 2 == 1 and units[0][0]():
            gap.add(units.pop(0)[1])
        cost = sum(x.cost for x in gap.items) + (4 if i % 4 == 3 else 0)
        extra_m = []
        while True:
            while fill and cost + fill[0].cost <= BUD and i >= hold:
                if isinstance(fill[0], Marker) and fill[0].kind == 'gap':
                    hold = i + 1 + fill.pop(0).arg
                    continue
                cost += fill[0].cost
                if isinstance(fill[0], I) and fill[0].op.startswith('ds_write'):
                    last_dsw = i
                gap.add([fill.pop(0)])
            if fill or not script or prio_units:
                break
            kind, pay = script[0]
            if kind == 'at' and i + 1 < pay:
                break
            if kind == 'since' and i < last_dsw + pay:
                break
            if kind == 'after' and i < marks.get(pay[0], 0) + pay[1]:
                break
            if kind == 'mark':
                marks[pay] = i
            script.pop(0)
            log.append((i, kind))
            if kind == 'fill':
                fill = list(pay)
            elif kind == 'mfma':
                extra_m = pay
                break
            elif kind == 'unit':
                prio_units = list(pay)
            elif kind == 'gap':
                script.insert(0, ('at', i + 1 + pay))
            elif kind == 'ev':
                ev.add(pay)
        p.add(gap)
        p.add(extra_m)
        if i in (127,):
            probe(p, 3)
        if i % 16 == 15 and i < 160:
            probe(p, 1 + i // 16, 1)
        z0, zs = OPT.get('zoom', (28, 2))
        if i >= z0 and (i - z0) % zs == 0 and (i - z0) // zs < 11:
            probe(p, (i - z0) // zs, 5)
    if OPT.get('log'):
        print(log, len(fill), [k for k, _ in script], len(units))
    assert not prio_units and not timed
    probe(p, 4)
    rest = list(fill)
    for kind, pay in script:
        assert kind in ('fill', 'mfma'), kind
        rest += pay
    rest = [rank1(n) for n in range(4, 8)] + rest
    for n in range(4, 8):
        rest += epilogue(n, True)
    p.add(rest)
    probe(p, 5)
    p.wait_vm('Hst')
    p("s_barrier")
    p.add(cx.set_flag(2, 64))
    probe(p, 6)
    return [u for _, u in units] + wd_units('G', 8) + wd_units('G', 9)


def fft_tables():
    def bf(x):
        u = np.asarray(x, dtype=np.float32).view(np.uint32)
        return ((u + 0x7fff + ((u >> 16) & 1)) >> 16).astype(np.uint16)
    lane = np.arange(64)
    m, h = lane & 31, lane >> 5
    i = np.arange(8)
    blob = []
    for N, ntile in ((32, 1), (64, 2)):
        fr = {0: [], 1: [], 2: []}
        for tile in range(ntile):
            for st in range(2 * ntile):
                tau, t = st >> 1, st & 1
                k = 32*tau + 16*t + 8*(i[None, :] >> 2) + 4*h[:, None] + (i[None, :] & 3)
                ang = 2*np.pi*(((32*tile + m[:, None]) * k) % N)/N
                fr[0].append(bf(np.cos(ang)))
                fr[1].append(bf(np.sin(ang)))
                fr[2].append(bf(-np.sin(ang)))
        for kind in range(3):
            blob.append(np.concatenate([x.ravel() for x in fr[kind]]).tobytes())
    e = np.arange(4)
    t2 = []
    for tau in range(2):
        for rq in range(4):
            row = 8*rq + 4*h[:, None] + e[None, :]
            ang2 = 2*np.pi*(row * (32*tau + m[:, None]))/2048
            t2 += [np.cos(ang2), np.sin(ang2)]
    T2 = np.concatenate([x.ravel() for x in t2]).astype(np.float32).tobytes()
    return T2 + b"".join(blob[:3]) + bytes(2048) + b"".join(blob[3:])


def fft_phase(cx, p, left, a1, m1, a2):
    for u in left:
        p.add(u)
    p("s_barrier")
    p("s_getpc_b64 s[32:33]")
    p("F_TPC:")
    p("s_add_u32 s32, s32, FFT_TBL-F_TPC")
    p("s_addc_u32 s33, s33, 0")
    p(f"s_mov_b32 s34, {TBL_BYTES}")
    p("s_mov_b32 s35, 0x00020000")
    tb = []
    for k in range(12):
        q = Prog()
        if k == 0:
            q(f"s_add_u32 m0, s53, {L_T2}")
            q("s_mov_b32 s55, s53")
        if k in (4, 8):
            q(f"s_lshl_b32 s55, s{S_W}, 13")
            q(f"s_add_u32 m0, s55, {L_WT + (k-4)*1024}")
            q(f"s_add_u32 s55, s55, {16384 + (k-4)*1024}")
        q(f"buffer_load_dwordx4 v2, s[32:35], s55 offen offset:{(k % 4)*1024} lds", tag='TB')
        tb.append(q.items)
    p.add(a1 + m1 + a2)
    for u in tb:
        p.add(u)
    E = 128
    p("v_and_b32 v144, 3, v1")
    p("v_lshlrev_b32 v144, 4, v144")
    p("v_mov_b32 v146, 0x3f80")
    p("v_mov_b32 v147, 0")
    p("v_lshlrev_b64 v[144:145], v144, v[146:147]")
    for k in range(32):
        for hf in range(2):
            r = v(E + 8*(k & 1) + 4*hf, 4)
            p(f"v_mfma_f32_4x4x4_16b_bf16 {r}, v[144:145], {a(128+4*k+2*hf,2)}, {'0' if k < 2 else r}")
        if k == 8:
            p.wait_vm('P1st')
            p("s_barrier")
            p.add(cx.set_flag(1, CSL + 12))
            probe(p, 3)
    p(f"v_lshrrev_b32 v148, 4, v1")
    p(f"v_and_b32 v149, 15, v1")
    for e in range(8):
        p(f"v_add_f32 v{E+e}, v{E+e}, v{E+8+e}")
    for k in range(4):
        p(f"v_permlane16_swap_b32 v{E+2*k}, v{E+2*k+1}")
    for k in range(4):
        p(f"v_add_f32 v{E+8+k}, v{E+2*k}, v{E+2*k+1}")
    p(f"v_lshlrev_b32 v150, 3, v0")
    p(f"v_add_u32 v150, {MISC}, v150")
    p(f"v_permlane32_swap_b32 v{E+8}, v{E+9}")
    p(f"v_permlane32_swap_b32 v{E+10}, v{E+11}")
    p(f"v_add_f32 v{E}, v{E+8}, v{E+9}")
    p(f"v_add_f32 v{E+1}, v{E+10}, v{E+11}")
    p("s_barrier")
    p(f"ds_write_b64 v150, {v(E,2)}")
    p(f"v_lshlrev_b32 v150, 3, v1")
    p(f"v_add_u32 v150, {MISC}, v150")
    p("v_lshrrev_b32 v151, 1, v149")
    p("v_lshl_add_u32 v148, v151, 5, v148")
    p("v_and_b32 v149, 1, v149")
    p("v_lshl_add_u32 v148, v149, 2, v148")
    p("v_lshlrev_b32 v148, 3, v148")
    p.wait_lgkm()
    p.wait_vm('TB')
    p("s_barrier")
    for w in range(4):
        p(f"ds_read_b64 {v(E+2*w,2)}, v150 offset:{w*512}")
    AF32, AF64 = 0, 24
    for k in range(6):
        p(f"ds_read_b128 {a(AF32+4*k,4)}, v2 offset:{L_F32 + k*1024 - 65536}".replace("v2 offset", "v152 offset")) if False else None
    p("v_add_u32 v152, 0x10000, v2")
    p(f"v_pk_add_f32 {v(E,2)}, {v(E,2)}, {v(E+2,2)}")
    p(f"v_pk_add_f32 {v(E+4,2)}, {v(E+4,2)}, {v(E+6,2)}")
    p(f"v_mov_b32 v{E+9}, s{S_NONCE}")
    p(f"v_add_f32 v{E+8}, v{E}, v{E+4}")
    p(f"v_add_f32 v{E+10}, v{E+1}, v{E+5}")
    p(f"v_mov_b32 v{E+11}, s{S_NONCE}")
    p(f"buffer_store_dwordx2 {v(E+8,2)}, v148, {R(R_WS)}, s58 offen sc1")
    p(f"buffer_store_dwordx2 {v(E+10,2)}, v148, {R(R_WS)}, s58 offen offset:64 sc1")
    for k in range(6):
        p(f"ds_read_b128 {a(AF32+4*k,4)}, v152 offset:{L_F32 + k*1024 - 65536}")
    for k in range(24):
        p(f"ds_read_b128 {a(AF64+4*k,4)}, v152 offset:{L_F64 + k*1024 - 65536}")
    p(f"s_lshl_b32 s56, s{S_X}, 2")
    p(f"s_add_u32 s56, s56, s{S_IDX}")
    p("s_sub_u32 s56, s56, 28")
    p("s_lshl_b32 s57, s56, 3")
    p(f"s_lshl_b32 s58, s{S_W}, 1")
    p("s_add_u32 s57, s57, s58")
    p("s_lshl_b32 s57, s57, 13")
    p(f"s_add_u32 s58, s57, {Y1_OFF}")
    p(f"s_add_u32 s59, s57, {WT_OFF}")
    p(f"s_lshl_b32 s54, s{S_W}, 14")
    p(f"s_add_u32 s52, s54, {L_Y}")
    p(f"s_add_u32 s54, s54, {L_WT}")
    p("v_add_u32 v6, s54, v2")
    p("v_lshlrev_b32 v3, 7, v0")
    p("v_lshrrev_b32 v4, 3, v1")
    p("v_and_b32 v4, 2, v4")
    p("v_lshlrev_b32 v4, 5, v4")
    p("v_xor_b32 v4, v4, v2")
    p("v_bfe_u32 v12, v1, 2, 2")
    p(f"v_lshl_add_u32 v5, v{VH}, 2, v12")
    p("v_lshlrev_b32 v5, 7, v5")
    p("v_bfe_u32 v13, v1, 4, 1")
    p("v_lshl_add_u32 v5, v13, 5, v5")
    p("v_and_b32 v13, 3, v1")
    p("v_lshl_add_u32 v5, v13, 3, v5")
    p("v_and_b32 v12, 2, v12")
    p("v_lshlrev_b32 v12, 5, v12")
    p("v_xor_b32 v5, v5, v12")
    p("v_add_u32 v5, s52, v5")
    p("v_xor_b32 v12, 64, v5")
    FDV = 252
    p.add(p3_setup(FDV, 160))
    cg = cgen(160, 224, 240, 128)
    iss, chk = cx.await_flags(11, 3, 1)
    k = len(cg) - OPT.get('f_poll_lead', 150)
    p.add(cg[:k] + iss + cg[k:])
    p.wait_lgkm()
    p.add(chk)
    p("s_barrier")
    probe(p, 4)
    ACC = [16, 112]
    PK = [80, 176]
    TB, RT, WU = 208, 224, 240
    wdu = []
    for q_ in range(5):
        wdu += wd_units('F', q_, FDV)

    def acc(col, c, tile):
        return ACC[col] + c*32 + tile*16

    def pk(col, c, st):
        return PK[col] + c*16 + st*4

    def lin_dma(vo, lb, sb, name, col):
        U = []
        for k in range(8):
            q = Prog()
            if k % 4 == 0:
                q(f"s_add_u32 m0, s{lb}, {col*8192 + k*1024}")
                q(f"s_add_u32 s55, s{sb}, {col*8192 + k*1024}")
            q(f"buffer_load_dwordx4 v{vo}, {R(R_WS)}, s55 offen offset:{(k % 4)*1024} {OPT['ldf']} lds", tag=(name, col, k // 2))
            U.append(q.items)
        return U

    def y_reads(col, st):
        q = Prog()
        q.wait_vm(('Y', col, st))
        for c in range(2):
            for b in range(2):
                q(f"ds_read_b64_tr_b16 {v(pk(col,c,st)+2*b,2)}, v{5 if c == 0 else 12} offset:{col*8192 + st*2048 + b*1024}")
        return q.items
    for u in lin_dma(4, 52, 58, 'Y', 0) + lin_dma(4, 52, 58, 'Y', 1)[:4]:
        p.add(u)
    units = lin_dma(4, 52, 58, 'Y', 1)[4:] + lin_dma(2, 54, 59, 'WT', 0) + lin_dma(2, 54, 59, 'WT', 1)

    def mm(d, A, B, first):
        return I(f"v_mfma_f32_32x32x16_bf16 {v(d,16)}, {A}, {B}, {'0' if first else v(d,16)}")

    def f32(kind, t):
        return a(AF32 + kind*8 + t*4, 4)

    def f64(kind, tile, st):
        return a(AF64 + kind*32 + tile*16 + st*4, 4)

    def stage(col, n):
        L = []
        kre, kim = (2, 1) if n >= 3 else (1, 2)
        nst = 2 if n == 4 else 4
        for st in range(nst):
            for tile in range(2):
                if n == 2:
                    pr = lambda kind, c: (f64(kind, tile, st), v(pk(col, c, st), 4))
                elif n == 3:
                    pr = lambda kind, c: (v(pk(col, c, st), 4), f64(kind, tile, st))
                else:
                    pr = lambda kind, c: (v(pk(col, c, tile*2 + st), 4), f32(kind, st))
                L.append(mm(acc(col, 0, tile), *pr(0, 0), st == 0))
                L.append(mm(acc(col, 1, tile), *pr(0, 1), st == 0))
                L.append(mm(acc(col, 0, tile), *pr(kre, 1), False))
                L.append(mm(acc(col, 1, tile), *pr(kim, 0), False))
        return L

    p("v_lshlrev_b32 v7, 2, v14")
    p("v_lshl_add_u32 v8, v15, 8, v7")
    p("v_lshl_add_u32 v7, v15, 11, v7")
    p(f"s_lshl_b32 s55, s{S_W}, 7")
    p(f"s_add_u32 s55, s55, {L_Y}")
    p("v_add_u32 v7, s55, v7")
    p(f"s_lshl_b32 s55, s{S_W}, 13")
    p(f"s_add_u32 s55, s55, {L_Y}")
    p("v_add_u32 v8, s55, v8")
    p("v_add_u32 v9, 128, v8")

    def xw(col, k):
        g = 32*(k >> 4) + 8*((k & 15) >> 2) + (k & 3)
        return [I(f"ds_write_b32 v7, v{PK[col]+k} offset:{col*32768 + g*512}")]

    def vphase(col, n):
        q = Prog()
        if n == 4:
            for k in range(32):
                q(f"v_cvt_pk_bf16_f32 v{PK[col]+k}, v{acc(col,0,0)+k}, v{acc(col,1,0)+k}")
                if k >= 2:
                    q.add(xw(col, k - 2))
            return q.items + xw(col, 30) + xw(col, 31)

        def rd(k):
            b = TB + (k & 1) * 8
            if n == 2:
                q(f"ds_read_b128 {v(b,4)}, v6 offset:{col*8192 + k*1024}")
            else:
                q(f"ds_read_b128 {v(b,4)}, v2 offset:{L_T2 + k*2048}")
                q(f"ds_read_b128 {v(b+4,4)}, v2 offset:{L_T2 + k*2048 + 1024}")
        rd(0)
        for k in range(8):
            tile, rq = k >> 2, k & 3
            if k + 1 < 8:
                rd(k + 1)
            b = TB + (k & 1) * 8
            xr, xi = acc(col, 0, tile) + 4*rq, acc(col, 1, tile) + 4*rq
            Rr = RT + (k & 1) * 8
            if n == 2:
                for e in range(4):
                    q(f"v_lshlrev_b32 v{WU+e}, 16, v{b+e}")
                    q(f"v_and_b32 v{WU+4+e}, 0xffff0000, v{b+e}")
                cc, ss = WU, WU + 4
            else:
                cc, ss = b, b + 4
            for e in range(4):
                q(f"v_mul_f32 v{Rr+e}, v{xr+e}, v{cc+e}")
                q(f"v_mul_f32 v{Rr+4+e}, v{xi+e}, v{cc+e}")
            for e in range(4):
                q(f"v_fma_f32 v{Rr+e}, -v{xi+e}, v{ss+e}, v{Rr+e}")
                q(f"v_fma_f32 v{Rr+4+e}, v{xr+e}, v{ss+e}, v{Rr+4+e}")
            st, half = tile*2 + (rq >> 1), (rq & 1) * 2
            for c in range(2):
                for e in range(2):
                    q(f"v_cvt_pk_bf16_f32 v{pk(col,c,st)+half+e}, v{Rr+4*c+2*e}, v{Rr+4*c+2*e+1}")
        return q.items
    probe(p, 0, 3)
    S = stage(0, 2)
    S = y_reads(0, 0) + y_reads(0, 1) + S[:8] + y_reads(0, 2) + S[8:16] + y_reads(0, 3) + S[16:24] + y_reads(1, 0) + y_reads(1, 1) + S[24:]
    mer, units = spread(S, units, 64)
    p.add(mer)
    p.add(y_reads(1, 2) + y_reads(1, 3))
    probe(p, 1, 3)
    order = [((1, 2), (0, 2)), ((0, 3), (1, 2)), ((1, 3), (0, 3)), ((0, 4), (1, 3)), ((1, 4), (0, 4))]
    for (sc, sn), (vc, vn) in order:
        if vn == 2:
            p.wait_vm(('WT', vc, 3))
        if (sc, sn) == (1, 3):
            p("s_barrier")
            units = units + wdu
        S, Vv = stage(sc, sn), vphase(vc, vn)
        tot = sum(x.cost for x in Vv)
        bud = max(24, -(-tot // len(S) // 4) * 4)
        mer, left = interleave(S, Vv, budget=bud)
        mer, units = spread(mer + left, units, 64)
        p.add(mer)
        probe(p, 2 + order.index(((sc, sn), (vc, vn))), 3)
    assert not units
    p.add(vphase(1, 4))
    probe(p, 5)
    p(f"s_lshl_b32 s60, s{S_W}, 19")
    p("s_lshl_b32 s61, s56, 10")
    p("s_add_u32 s60, s60, s61")
    p(f"s_add_u32 s60, s60, {V_OFF}")
    probe(p, 7, 3)
    p.wait_lgkm()
    p("s_barrier")
    probe(p, 8, 3)
    O = 16

    for k in range(16):
        p(f"ds_read2st64_b32 {v(O+4*k,2)}, v8 offset0:{2*k} offset1:{2*k+128}")
        p(f"ds_read2st64_b32 {v(O+4*k+2,2)}, v9 offset0:{2*k} offset1:{2*k+128}")
        if k >= 3:
            p(f"buffer_store_dwordx4 {v(O+4*(k-3),4)}, v2, {R(R_WS)}, s60 offen sc1", tag='Vst')
            p("s_add_u32 s60, s60, 32768")
    for k in range(13, 16):
        p(f"buffer_store_dwordx4 {v(O+4*k,4)}, v2, {R(R_WS)}, s60 offen sc1", tag='Vst')
        if k < 15:
            p("s_add_u32 s60, s60, 32768")
    probe(p, 9, 3)
    for k in range(64):
        p(f"v_accvgpr_mov_b32 a{A_PRE+k}, a{128+k}")
    p.wait_vm('Vst')
    p("s_barrier")
    p.add(cx.set_flag(2, 10))
    probe(p, 6)
    probe(p, 10, 3)
    return []


P3_DV = 44
P3_SLOT = {'G': [MISC] + [k * 16384 for k in (6, 7, 8, 0, 1, 2, 3, 4, 5)],
           'F': [MISC] + [k * 16384 for k in (6, 7, 8, 5, 0, 1, 2, 3, 4)]}
R_WD, R_OUT = R_WR, R_WI
S_WD, S_G0, S_DB = 48, 49, 50
A_V, A_PRE, A_H = 0, 64, 128


def p3_setup(dv=P3_DV, t=84):
    q = Prog()
    q(f"s_and_b32 s60, s{S_IDX}, 3")
    q(f"s_lshl_b32 s61, s{S_X}, 3")
    q("s_lshl_b32 s60, s60, 1")
    q(f"s_add_u32 s{S_G0}, s60, s61")
    q(f"s_lshr_b32 s{S_DB}, s{S_IDX}, 2")
    q(f"v_lshrrev_b32 v{t}, 3, v1")
    q(f"v_and_b32 v{t+1}, 7, v1")
    q(f"v_and_b32 v{t+2}, 2, v{t}")
    q(f"v_lshlrev_b32 v{t+2}, 1, v{t+2}")
    q(f"v_xor_b32 v{t+1}, v{t+1}, v{t+2}")
    q(f"v_lshlrev_b32 v{t}, 10, v{t}")
    q(f"v_lshl_add_u32 v{dv}, v{t+1}, 4, v{t}")
    for k in range(1, 4):
        q(f"v_add_u32 v{dv+k}, {k*(8192-1024)}, v{dv}")
    q(f"s_mul_i32 s{S_WD}, s{S_W}, {28*16*1024}")
    q(f"s_lshl_b32 s60, s{S_DB}, 7")
    q(f"s_add_u32 s{S_WD}, s{S_WD}, s60")
    srd(q, R_WD, 4, 1792*512*2)
    srd(q, R_OUT, 6, 2097152)
    return q.items


def wd_units(role, pair, dv=P3_DV):
    U = []
    for k in range(4):
        q = Prog()
        if k == 0:
            q(f"s_add_u32 m0, s53, {P3_SLOT[role][pair % 10]}")
            q(f"s_add_u32 s55, s{S_WD}, {pair*32*1024}")
        q(f"buffer_load_dwordx4 v{dv+k}, {R(R_WD)}, s55 offen offset:{k*1024} lds", tag=('D', pair*2 + (k >> 1)))
        U.append(q.items)
    return U


def cgen(dst, S0, T, to_acc):
    q = Prog()
    S1 = S0 + 8
    d_, j_, th, t8, c2, tmp = T, T + 1, T + 2, T + 3, T + 4, T + 6
    q(f"v_and_b32 v{d_}, 31, v1")
    q(f"s_lshl_b32 s62, s{S_DB}, 6")
    q(f"v_add_u32 v{d_}, s62, v{d_}")
    q(f"v_lshrrev_b32 v{j_}, 5, v1")
    q(f"s_lshl_b32 s62, s{S_W}, 6")
    q(f"v_lshl_add_u32 v{j_}, v{j_}, 2, s62")
    q(f"v_add_u32 v{j_}, 1, v{j_}")
    q("s_movk_i32 s62, 0xc5")
    q(f"v_cmp_eq_u32 s[60:61], s62, v{j_}")
    q(f"v_cvt_f32_u32 v{j_}, v{j_}")
    for Dt in range(2):
        q(f"v_cvt_f32_u32 v{th}, v{d_}")
        q(f"v_mul_f32 v{th}, {hexf(1/512)}, v{th}")
        q(f"v_mul_f32 v{t8}, {hexf(8.0)}, v{th}")
        q(f"v_sub_f32 v{c2}, {hexf(0.25)}, v{t8}")
        q(f"v_sin_f32 v{c2}, v{c2}")
        q(f"v_fma_f32 v{S0+1}, -v{j_}, v{th}, 0")
        for ci in range(1, 4):
            q(f"v_sub_f32 v{S0+2*ci+1}, v{S0+2*ci-1}, v{th}")
        for ci in range(4):
            q(f"v_add_f32 v{S0+2*ci}, {hexf(0.25)}, v{S0+2*ci+1}")
        for i in range(8):
            q(f"v_sub_f32 v{S1+i}, v{S0+i}, v{t8}")
        q(f"v_add_f32 v{c2}, v{c2}, v{c2}")
        for i in range(16):
            q(f"v_sin_f32 v{S0+i}, v{S0+i}")
        for t in range(8):
            cur = S0 if t % 2 == 0 else S1
            oth = S1 if t % 2 == 0 else S0
            if t >= 2:
                for i in range(0, 8, 2):
                    q(f"v_pk_fma_f32 {v(cur+i,2)}, {v(c2,2)}, {v(oth+i,2)}, {v(cur+i,2)} op_sel_hi:[0,1,1] neg_lo:[0,0,1] neg_hi:[0,0,1]")
            for i in range(4):
                q(f"v_cvt_pk_bf16_f32 v{dst+Dt*32+4*t+i}, v{cur+2*i}, v{cur+2*i+1}")
        q(f"v_and_b32 v{tmp}, 1, v{d_}")
        q(f"v_lshlrev_b32 v{tmp}, 15, v{tmp}")
        q(f"v_or_b32 v{tmp}, {fbits(0.5) >> 16}, v{tmp}")
        q(f"v_cndmask_b32 v{dst+Dt*32+31}, v{dst+Dt*32+31}, v{tmp}, s[60:61]")
        if Dt == 0:
            q(f"v_add_u32 v{d_}, 32, v{d_}")
    if to_acc is not None:
        for k in range(64):
            q(f"v_accvgpr_write_b32 a{to_acc+k}, v{dst+k}")
    return q.items


def phase3(cx, p, pre_left, dv):
    G = cx.role == 'G'
    SL = P3_SLOT[cx.role]
    XRR, TAD, DV3, EW, ER = 240, 250, 12, 96, 104
    CF, AS, AG, WF3, SV = 16, 112, 176, 80, 16
    SC = 2.0 ** -19

    def hreg(step, rg):
        return A_H + (step % 16)*8 + rg*4
    q = Prog()
    if dv != DV3:
        for k in range(4):
            q(f"v_mov_b32 v{DV3+k}, v{dv+k}")
    q("v_and_b32 v248, 31, v1")
    q("v_and_b32 v10, 15, v1")
    q("v_min_u32 v10, 13, v10")
    q("v_cmp_lt_u32 vcc, 6, v10")
    q("v_subrev_u32 v3, 7, v10")
    q(f"s_lshr_b32 s58, s{S_G0}, 2")
    q("v_cndmask_b32 v10, v10, v3, vcc")
    q("v_cndmask_b32 v3, 0, 4, vcc")
    q("v_lshl_add_u32 v10, v10, 5, v3")
    q("s_and_b32 s59, s58, 3")
    q("s_lshl_b32 s59, s59, 3")
    q("s_lshr_b32 s58, s58, 2")
    q("s_add_u32 s58, s58, s59")
    q("v_add_lshl_u32 v10, v10, s58, 7")
    iss, chk = cx.await_flags(3, 10, 2)
    iss2, chk2 = cx.await_flags(4, 9, 2)
    if not G:
        q.add(iss)
    q("v_lshrrev_b32 v249, 5, v1")
    q("v_add_u32 v9, 224, v248")
    q("v_lshlrev_b32 v9, 7, v9")
    q("v_bfe_u32 v96, v1, 2, 2")
    q("v_and_b32 v97, 3, v1")
    q("v_bfe_u32 v98, v1, 4, 1")
    q("v_lshl_add_u32 v99, v249, 3, v96")
    q("v_lshlrev_b32 v99, 7, v99")
    q("v_lshl_add_u32 v99, v98, 5, v99")
    q("v_lshl_add_u32 v99, v97, 3, v99")
    q("v_and_b32 v96, 2, v96")
    q("v_lshlrev_b32 v96, 5, v96")
    q("v_xor_b32 v99, v99, v96")
    q(f"v_add_u32 v{TAD}, s53, v99")
    q(f"v_xor_b32 v{TAD+1}, 64, v{TAD}")
    for k in range(2):
        q(f"v_add_u32 v{TAD+2+k}, 0x10000, v{TAD+k}")
        q(f"v_add_u32 v{TAD+4+k}, 0x20000, v{TAD+k}")

    def wreads(step, dst):
        q = Prog()
        q.wait_vm(('D', step))
        off = SL[(step >> 1) % 10] + (step & 1) * 2048
        for Dt in range(2):
            ad = TAD + Dt + 2 * (off >> 16)
            q(f"ds_read_b64_tr_b16 {dst(Dt*4,2)}, v{ad} offset:{off & 0xffff}")
            q(f"ds_read_b64_tr_b16 {dst(Dt*4+2,2)}, v{ad} offset:{(off & 0xffff)+512}")
        return q.items
    NPRE = 8 if G else 0
    for step in range(NPRE):
        q.add(wreads(step, lambda o, n: a(A_PRE + step*8 + o, n)))
    q("v_lshrrev_b32 v6, 3, v0")
    q("v_and_b32 v7, 7, v0")
    q("v_lshlrev_b32 v8, 16, v6")
    q("v_lshl_add_u32 v8, v7, 4, v8")
    q(f"s_lshl_b32 s54, s{S_G0}, 10")
    q(f"s_lshl_b32 s56, s{S_DB}, 7")
    q("s_add_u32 s54, s54, s56")
    xl = [[I(f"buffer_load_dwordx4 {v(XRR,4)}, v8, {R(R_XX)}, s54 offen"),
           I(f"buffer_load_dwordx4 {v(XRR+4,4)}, v8, {R(R_XX)}, s54 offen offset:1024")]]
    q(f"v_add_u32 v11, {112*1024}, v2")
    q(f"s_mul_i32 s56, s{S_G0}, 112")
    q(f"s_mul_i32 s57, s{S_W}, 28")
    q("s_add_u32 s56, s56, s57")
    q("s_lshl_b32 s56, s56, 10")
    q(f"s_add_u32 s56, s56, {H_OFF}")
    q(f"s_lshl_b32 s57, s{S_G0}, 15")
    q(f"s_lshl_b32 s58, s{S_W}, 13")
    q("s_add_u32 s57, s57, s58")
    q(f"s_add_u32 s57, s57, {V_OFF}")
    fix = lambda U: [[I(x.text.replace(f"dwordx4 v{dv+k}, ", f"dwordx4 v{DV3+k}, "), x.tag) for x in u]
                     for u in U for k in [int(u[-1].text.split('offset:')[1].split()[0]) // 1024]]
    mer, left = spread(q.items, fix(pre_left) if G else [], 64, phase=24)
    p.add(mer)
    q = Prog()
    if G:
        q.touch(a(A_PRE, 64))
        for pair in range(10, 14):
            left += wd_units(cx.role, pair, DV3)
        cg = cgen(CF, 80, 96, None)
        q.add(cg[:len(cg) // 2] + iss + cg[len(cg) // 2:])
    q("v_bfe_u32 v110, v1, 1, 2")
    q("v_and_b32 v111, 1, v1")
    q("v_lshl_or_b32 v110, v111, 2, v110")
    q("v_xor_b32 v110, v110, v249")
    q("v_lshl_add_u32 v111, v248, 7, s53")
    for rq in range(4):
        q(f"v_xor_b32 v{EW+rq}, {2*rq}, v110")
        q(f"v_lshl_add_u32 v{EW+rq}, v{EW+rq}, 4, v111")
        q(f"v_add_u32 v{EW+4+rq}, 0x10000, v{EW+rq}")
    q("v_bfe_u32 v110, v6, 1, 2")
    q("v_and_b32 v111, 1, v6")
    q("v_lshl_or_b32 v110, v111, 2, v110")
    q("v_lshrrev_b32 v111, 2, v7")
    q("v_lshlrev_b32 v111, 14, v111")
    q("v_lshl_add_u32 v111, v6, 7, v111")
    q("v_and_b32 v109, 3, v7")
    for b in range(2):
        q(f"v_lshl_add_u32 v108, v109, 1, {b}")
        q("v_xor_b32 v108, v108, v110")
        q(f"v_lshl_add_u32 v{ER+b}, v108, 4, v111")
        q(f"v_add_u32 v{ER+2+b}, 0x10000, v{ER+b}")
    mer, left = spread(q.items, left + xl, 64, phase=8)
    p.add(mer)
    for u in left:
        p.add(u)
    probe(p, 7)
    p.add(chk)
    probe(p, 8)
    VS = OPT['v_s']

    def tuse(step):
        return 4 * step + (32 if step > VS else 0)
    units = []
    for step in range(28):
        for rg in range(2):
            q = Prog()
            if rg == 0:
                q(f"s_add_u32 s59, s56, {step*1024}")
            q(f"buffer_load_dwordx4 {a(hreg(step, rg),4)}, v{2 if rg == 0 else 11}, {R(R_WS)}, s59 offen {OPT['ld3']}")
            units.append((tuse(step), step - 15, q.items))
    for t in range(8):
        for rg in range(2):
            q = Prog()
            if t == 0 and rg == 0:
                q.add(chk2)
            q(f"s_add_u32 s58, s57, {rg*32768 + t*1024}")
            q(f"buffer_load_dwordx4 {a(A_V + t*8 + rg*4, 4)}, v2, {R(R_WS)}, s58 offen {OPT['ld3']}")
            units.append((4 * (VS + 1) + 4 * t, -1, q.items))
    units.append((4 * (VS + 1) - OPT.get('v_poll', 40), -1, iss2))
    if not G:
        done = {x.tag[1] // 2 for x in p.items if isinstance(x, I) and isinstance(x.tag, tuple) and x.tag[0] == 'D'}
        for pair in range(14):
            if pair not in done:
                units += [(tuse(2*pair - 1) - 4, 2*pair - 18, u) for u in wd_units(cx.role, pair, DV3)]
    units.sort(key=lambda u: u[0])

    def xwrite(accb, ew):
        return [I(f"ds_write_b128 v{ew+rq}, {v(accb + t*16 + 4*rq, 4)} offset:{t*16384}") for t in range(4) for rq in range(4)]

    def xread(er, T, packed):
        q = Prog()
        for w in range(4):
            for rg in range(2):
                for b in range(2):
                    q(f"ds_read_b128 {v(T + w*16 + rg*8 + b*4, 4)}, v{er+b} offset:{rg*32768 + w*4096}")
        s_ = Prog()
        for d_, s0 in ((0, 16), (32, 48), (0, 32)):
            for k in range(0, 16, 2 if packed else 1):
                if packed:
                    s_(f"v_pk_add_f32 {v(T+d_+k,2)}, {v(T+d_+k,2)}, {v(T+s0+k,2)}")
                else:
                    s_(f"v_add_f32 v{T+d_+k}, v{T+d_+k}, v{T+s0+k}")
        return q.items, s_.items

    def pop(step):
        k = next((i for i, u in enumerate(units) if u[1] <= step), None)
        if k is not None:
            p.add(units.pop(k)[2])

    def wsrc(step, Dt):
        return a(A_PRE + step*8 + Dt*4, 4) if step < NPRE else v(WF3 + (step & 1)*8 + Dt*4, 4)

    def wrd(step):
        return wreads(step, lambda o, n: v(WF3 + (step & 1)*8 + o, n)) if NPRE <= step < 28 else []
    for _ in range(OPT['p3_n0']):
        pop(-1)
    probe(p, 0, 6)
    p.add(wrd(0))
    fill = []
    nm = [0]

    def gapwork(step):
        nm[0] += 1
        cost = 0
        if nm[0] % OPT['p3_per'] == 0 or (units and units[0][0] <= nm[0] + OPT.get('p3_lead', 32)):
            pop(step)
            cost = 8
        while units and units[0][0] <= nm[0] + 8 and units[0][1] <= step:
            pop(step)
        assert not units or units[0][0] > nm[0] + 4, (step, nm, units[0][:2])
        while fill and cost + fill[0].cost <= 20:
            it = fill.pop(0)
            cost += it.cost * (4 if (isinstance(it, I) and it.op == 'ds_write_b128') else 1)
            p.add([it])
    for step in range(28):
        rd = wrd(step + 1)
        for k in range(4):
            rg, Dt = k >> 1, k & 1
            d = AG + k*16
            p(f"v_mfma_f32_32x32x16_bf16 {v(d,16)}, {wsrc(step, Dt)}, {a(hreg(step,rg),4)}, {'0' if step == 0 else v(d,16)}")
            if k == 0:
                p.add(rd)
            else:
                gapwork(step)
            if k == 0:
                nm[0] += 1
        if step % 3 == 2:
            probe(p, 1 + step // 3, 6)
        if step == VS:
            for t in range(8):
                for k in range(4):
                    rg, Dt = k >> 1, k & 1
                    d = AS + k*16
                    cf = v(CF+Dt*32+4*t, 4) if G else a(A_PRE+Dt*32+4*t, 4)
                    p(f"v_mfma_f32_32x32x16_bf16 {v(d,16)}, {cf}, {a(A_V+t*8+rg*4,4)}, {'0' if t == 0 else v(d,16)}")
                    gapwork(step)
            fill = xwrite(AS, EW)
        if step == VS + 6:
            p.add(fill)
            p.wait_lgkm()
            p("s_barrier")
            rd, sm = xread(ER, SV, False)
            fill = rd + [I(f"v_lshlrev_b32 v{XUF+2*k}, 16, v{XRR+k}") for k in range(0)] + sm
            probe(p, 9)
    while units:
        pop(99)
    probe(p, 10)
    probe(p, 10, 6)
    GT = 112
    xw = xwrite(AG, EW + 4)
    mer = []
    for k, w_ in enumerate(xw):
        mer.append(w_)
        mer += fill[k*len(fill)//16:(k+1)*len(fill)//16]
    p.add(mer)
    p(f"v_mov_b32 v72, {hexf(-math.log2(math.e))}")
    p(f"v_mov_b32 v73, {hexf(SC)}")
    for k in range(0, 16, 2):
        p(f"v_pk_mul_f32 {v(SV+k,2)}, {v(SV+k,2)}, v[72:73] op_sel:[0,1] op_sel_hi:[1,1]")
    p.wait_lgkm()
    p("s_barrier")
    rd, sm = xread(ER + 2, GT, True)
    p.add(rd)
    for k in range(8):
        p(f"v_lshlrev_b32 v{XUF+2*k}, 16, v{XRR+k}")
        p(f"v_and_b32 v{XUF+2*k+1}, 0xffff0000, v{XRR+k}")
    p.add(sm)
    Z = 48
    for k in range(0, 16, 2):
        p(f"v_pk_mul_f32 {v(Z+k,2)}, {v(GT+k,2)}, v[72:73] op_sel_hi:[1,0]")
    for k in range(16):
        p(f"v_exp_f32 v{Z+k}, v{Z+k}")
        if k % 2 == 0:
            p(f"v_pk_mul_f32 {v(GT+k,2)}, {v(GT+k,2)}, {v(SV+k,2)}")
    for k in range(0, 16, 2):
        p(f"v_pk_add_f32 {v(Z+k,2)}, {v(Z+k,2)}, 1.0 op_sel_hi:[1,0]")
    for k in range(16):
        p(f"v_rcp_f32 v{Z+k}, v{Z+k}")
        if k % 8 == 7:
            for m in range(k - 7, k + 1, 2):
                p(f"v_pk_fma_f32 {v(Z+m,2)}, {v(GT+m,2)}, {v(Z+m,2)}, {v(XUF+m,2)}")
            for m in range(k - 7, k + 1, 2):
                p(f"v_cvt_pk_bf16_f32 v{64+m//2}, v{Z+m}, v{Z+m+1}")
            p(f"buffer_store_dwordx4 {v(64 + (k >> 3)*4,4)}, v8, {R(R_OUT)}, s54 offen offset:{(k >> 3)*1024}")


XUF = 32


def program(role):
    cx = Ctx(role)
    p = Prog()
    la, a0, a1, m1, a2, a3, TA = phase1(cx, p)
    if role == 'G':
        left = gemm_phase(cx, p, la, a0, a1, m1, a2, a3, TA)
    else:
        left = fft_phase(cx, p, la, a1, m1, a2)
    phase3(cx, p, left, P3_DV if role == 'G' else 252)
    stamp_end(p, 8)
    p("s_endpgm")
    return finalize(p.items) + cx.tail


HEADER = """; Kernarg layout (80 bytes, ptrs only, base s[0:1]): A_x 0, A_w_r 8, A_w_i 16, B_x 24, w_gate 32, w_up 40,
; One launch, 256 resident workgroups.  Phase 1: row statistics, row DFT, first column-FFT stage, filter re-layout.
; Phase 2: gate/up GEMM + GELU (224 workgroups) or column FFT * filter * inverse FFT (32 workgroups).
; Phase 3: down GEMM + inverse row DFT + silu / combine.   Generated by tools/genf.py
"""


def build():
    out = [HEADER.rstrip()]
    out.append("; @launch grid=(256,1,1) block=(256,1,1) lds=163840")
    out.append('.amdgcn_target "amdgcn-amd-amdhsa--gfx950"')
    out.append(".text")
    out.append(f".globl {NAME}\n.p2align 8\n.type {NAME},@function\n{NAME}:")
    p = Prog()
    p("s_cmp_ge_u32 s2, 256")
    p("s_cbranch_scc1 K_END")
    p("s_load_dwordx2 s[4:5], s[0:1], 0")
    p("s_load_dwordx4 s[8:11], s[0:1], 8")
    p("s_load_dwordx2 s[12:13], s[0:1], 32")
    p("s_load_dwordx2 s[58:59], s[0:1], 40")
    p("s_load_dwordx2 s[14:15], s[0:1], 64")
    p("s_load_dwordx2 s[6:7], s[0:1], 72")
    stamp_begin(p)
    p(f"s_and_b32 s{S_X}, s2, 7")
    p(f"s_lshr_b32 s{S_IDX}, s2, 3")
    p("v_lshrrev_b32 v1, 6, v0")
    p(f"v_readfirstlane_b32 s{S_W}, v1")
    p(f"s_cmp_ge_u32 s{S_IDX}, 28")
    p("s_cbranch_scc0 ROLE_G")
    p("s_branch ROLE_F")
    p("K_END:")
    p("s_endpgm")
    out += finalize(p.items)
    pend = Prog()
    for role in ('G', 'F'):
        out.append(f"ROLE_{role}:")
        out.append("    s_nop 4")
        lines = program(role)
        out += lines
    blob = fft_tables()
    assert len(blob) == TBL_BYTES
    out.append(".p2align 8\n.type FFT_TBL,@object\nFFT_TBL:")
    w = np.frombuffer(blob, dtype=np.uint32)
    for i in range(0, len(w), 8):
        out.append(".long " + ",".join(f"0x{x:x}" for x in w[i:i+8]))
    out.append(f".size FFT_TBL, {TBL_BYTES}")
    out.append("CODE_END:")
    out.append('.section .rodata,"a"')
    out.append(f""".p2align 6
.amdhsa_kernel {NAME}
  .amdhsa_next_free_vgpr 512
  .amdhsa_next_free_sgpr 102
  .amdhsa_accum_offset 256
  .amdhsa_group_segment_fixed_size 0
  .amdhsa_kernarg_size 80
  .amdhsa_user_sgpr_count 2
  .amdhsa_user_sgpr_kernarg_segment_ptr 1
  .amdhsa_system_sgpr_workgroup_id_x 1
.end_amdhsa_kernel""")
    return "\n".join(out) + "\n"


if __name__ == "__main__":
    path = sys.argv[1]
    for kv in sys.argv[2:]:
        k, val = kv.split("=", 1)
        OPT[k] = eval(val)
    open(path, "w").write(build())
```

```python
import sys, math, struct
import numpy as np
sys.path.insert(0, 'tools')
from emit import *

NAME = "recurrent_scan__spectral_gfnet__glu_gated_geglu__prompt_kernel"
FL_OFF = 0x000000
CS_OFF = 0x010000
Y1_OFF = 0x200000
WT_OFF = 0x400000
H_OFF = 0x600000
V_OFF = 0xD00000
ST_OFF = 0x1000000
PR_OFF = ST_OFF + 0x40000
WS_USED = 0x1100000
NPROBE = 12

OPT = dict(stamps=False, gap_budget=20, spin_limit=1 << 16, poll_cs=92, cs_wait=22, pub1_gap=16, nonce_at=1, codepf=True, wpf=3, x_burst=8, pub2_gap=24, w_wait=30, rot=False, acq=False, ld3='sc1', ldf='sc1', v_s=17, serial_y=True, p3_n0=14, p3_per=2)

C1 = -2.0 * math.log2(math.e) * math.sqrt(2.0 / math.pi)
C2 = C1 * 0.044715
MISC = 9 * 16384
CSX = MISC
M_YX, M_ST = MISC, 7 * 16384
TBL_BYTES = 48 * 1024
L_T2, L_Y, L_WT = 0, 16*1024, 80*1024
L_F32, L_F64 = L_WT, L_WT + 8*1024
RING = 12
L_SX = 4 * RING * 2048

S_X, S_IDX, S_W, S_G, S_NT, S_MT, S_NONCE = 16, 17, 18, 19, 20, 21, 22
R_WS, R_WG, R_WU, R_XX, R_WR, R_WI, R_DBG = 24, 28, 32, 36, 40, 44, 48


def fbits(x):
    return struct.unpack('<I', struct.pack('<f', x))[0]


def hexf(x):
    return f"0x{fbits(x):08x}"


def srd(p, d, base, nbytes):
    p(f"s_mov_b32 s{d}, s{base}")
    p(f"s_mov_b32 s{d+1}, s{base+1}")
    p(f"s_mov_b32 s{d+2}, {nbytes}")
    p(f"s_mov_b32 s{d+3}, 0x00020000")


def R(n):
    return f"s[{n}:{n+3}]"


def probe(p, i, pset=0):
    if OPT['stamps'] and OPT.get('pset', 0) == pset:
        p(f"s_memtime s[{64+2*i}:{65+2*i}]")


def stamp_begin(p):
    if OPT['stamps']:
        p("s_memrealtime s[90:91]")
        for i in range(NPROBE):
            p(f"s_mov_b32 s{64+2*i}, 0")
        p("s_memtime s[88:89]")


def stamp_end(p, vtmp):
    if OPT['stamps']:
        p.wait_all_vm()
        p("s_memrealtime s[92:93]")
        p("s_memtime s[86:87]")
        p.wait_lgkm()
        p(f"v_mov_b32 v{vtmp}, s90")
        p(f"v_mov_b32 v{vtmp+1}, s92")
        p(f"v_lshrrev_b32 v{vtmp+2}, 6, v0")
        p(f"v_lshlrev_b32 v{vtmp+2}, 3, v{vtmp+2}")
        p(f"s_lshl_b32 s94, s2, 6")
        p(f"s_add_u32 s94, s94, {ST_OFF}")
        p(f"v_and_b32 v{vtmp+3}, 63, v0")
        p(f"v_cmp_eq_u32 vcc, 0, v{vtmp+3}")
        p("s_and_saveexec_b64 s[96:97], vcc")
        p(f"buffer_store_dwordx2 v[{vtmp}:{vtmp+1}], v{vtmp+2}, {R(R_WS)}, s94 offen")
        p(f"v_lshlrev_b32 v{vtmp+2}, 3, v{vtmp+2}")
        p(f"s_lshl_b32 s94, s2, 9")
        p(f"s_add_u32 s94, s94, {PR_OFF}")
        for i in range(NPROBE):
            p(f"s_sub_u32 s95, s{64+2*i}, s88")
            p(f"v_mov_b32 v{vtmp}, s95")
            p(f"buffer_store_dword v{vtmp}, v{vtmp+2}, {R(R_WS)}, s94 offen offset:{4*i}")
        p("s_mov_b64 exec, s[96:97]")


class Ctx:
    def __init__(self, role):
        self.role = role
        self.tail = []
        self.n = 0

    def await_flags(self, vflag, vaddr, delta, srdn=R_WS, soff=None, nonce=False):
        self.n += 1
        lab = f"{self.role}_AW{self.n}"
        so = "0" if soff is None else f"s{soff}"
        ld = f"buffer_load_dword v{vflag}, v{vaddr}, {R(srdn)}, {so} offen sc1"
        a_ = Prog()
        a_(ld)
        c = Prog()

        def cmp_(q):
            if nonce:
                q(f"v_cmp_eq_u32 vcc, 0, v{vflag}")
            else:
                q(f"v_subrev_u32 v{vflag}, s{S_NONCE}, v{vflag}")
                if delta:
                    q(f"v_subrev_u32 v{vflag}, {delta}, v{vflag}")
                q(f"v_cmp_lt_u32 vcc, {2 - delta}, v{vflag}")
        cmp_(c)
        c("s_nop 1")
        c(f"s_cbranch_vccnz {lab}_SPIN")
        c(f"{lab}_OK:")
        if nonce:
            c(f"v_readfirstlane_b32 s{S_NONCE}, v{vflag}")
        elif OPT['acq']:
            c("buffer_inv sc1")
        t = Prog()
        t(f"s_mov_b32 s101, {OPT['spin_limit']}")
        t(f"{lab}_L:")
        t(ld)
        t("s_sub_u32 s101, s101, 1")
        t("s_waitcnt vmcnt(0)")
        cmp_(t)
        t("s_cmp_eq_u32 s101, 0")
        t(f"s_cbranch_scc1 {lab}_OK")
        t("s_nop 1")
        t(f"s_cbranch_vccnz {lab}_L")
        t(f"s_branch {lab}_OK")
        self.tail += [f"{lab}_SPIN:"] + finalize(t.items)
        return a_.items, c.items

    def set_flag(self, delta, vt):
        q = Prog()
        q(f"s_add_u32 s100, s{S_NONCE}, {delta}")
        q(f"v_mov_b32 v{vt}, s100")
        q(f"s_cmp_eq_u32 s{S_W}, 0")
        q(f"s_cselect_b32 s100, 0, 0x7ffffff0")
        q(f"v_mov_b32 v{vt+1}, s100")
        q(f"s_lshl_b32 s100, s2, 7")
        q("s_mov_b64 exec, 1")
        q(f"buffer_store_dword v{vt}, v{vt+1}, {R(R_WS)}, s100 offen sc1")
        q("s_mov_b64 exec, -1")
        return q.items


V_C, V_RS = 4, 6
AD, VM, VH, DV, XV, XR, XP = 8, 14, 15, 16, 20, 24, 32
WF = 20
ST4, WTL, CSL, DD, XT, MM, FF = 44, 48, 64, 80, 96, 112, 128
STA, ONE, SGN, RDA, TMP = 192, 208, 210, 211, 212
VWT = 3
S_ROT = 3
WX = 7 * 16384


def slot(idx):
    return (idx % 9) * 16384


def kblock(q, st, mul, base, extra=0):
    if not OPT['rot']:
        q(f"s_add_u32 s55, s{base}, {st*mul + extra}")
        return
    q(f"s_add_u32 s55, s{S_ROT}, {st}")
    q("s_and_b32 s55, s55, 7")
    q(f"s_mul_i32 s55, s55, {mul}")
    q(f"s_add_u32 s55, s55, s{base}")
    if extra:
        q(f"s_add_u32 s55, s55, {extra}")


def w_dma(chunk, ks):
    U = []
    for k in range(4):
        q = Prog()
        if k == 0:
            q(f"s_add_u32 m0, s53, {slot(8 + chunk*8 + ks)}")
            kblock(q, ks, 64*3584, 52, chunk*128)
        q(f"buffer_load_dwordx4 v{DV+k}, {R(R_WG if k < 2 else R_WU)}, s55 offen offset:{k*1024} lds", tag=('W', chunk, ks))
        U.append(q.items)
    return U


def phase1(cx, p):
    gemm = cx.role == 'G'
    t0, t1, t2, t3, t4, t5, t6, t7 = range(XT, XT + 8)
    p(f"s_and_b32 s{S_MT}, s{S_X}, 3")
    p(f"s_lshl_b32 s{S_MT}, s{S_MT}, 2")
    p(f"s_and_b32 s52, s{S_IDX}, 3")
    p(f"s_add_u32 s{S_MT}, s{S_MT}, s52")
    p(f"s_lshr_b32 s53, s{S_IDX}, 2")
    if OPT['rot']:
        p("s_lshl_b32 s52, s52, 1")
        p(f"s_add_u32 s{S_ROT}, s52, s53")
        p(f"s_and_b32 s{S_ROT}, s{S_ROT}, 7")
    p(f"s_lshr_b32 s{S_NT}, s{S_X}, 2")
    if gemm:
        p(f"s_mul_i32 s{S_NT}, s{S_NT}, 7")
        p(f"s_add_u32 s{S_NT}, s{S_NT}, s53")
    else:
        p(f"s_add_u32 s{S_NT}, s{S_NT}, 14")
    p(f"s_lshl_b32 s{S_G}, s{S_MT}, 2")
    p(f"s_add_u32 s{S_G}, s{S_G}, s{S_W}")
    p("v_and_b32 v1, 63, v0")
    p("v_lshlrev_b32 v2, 4, v1")
    p(f"v_lshrrev_b32 v{t0}, 3, v1")
    p(f"v_and_b32 v{t1}, 7, v1")
    p(f"v_lshrrev_b32 v{t2}, 4, v1")
    p(f"v_xor_b32 v{t1}, v{t1}, v{t2}")
    p(f"v_lshlrev_b32 v{t3}, 16, v{t0}")
    p(f"v_lshl_add_u32 v{XV}, v{t1}, 4, v{t3}")
    p(f"v_xor_b32 v{t1}, 4, v{t1}")
    p(f"v_lshl_add_u32 v{XV+1}, v{t1}, 4, v{t3}")
    p(f"v_add_u32 v{XV+1}, {8*65536-1024}, v{XV+1}")
    p(f"v_add_u32 v{XV+2}, {16*65536-2048}, v{XV}")
    p(f"v_add_u32 v{XV+3}, {16*65536-2048}, v{XV+1}")
    p(f"s_lshl_b32 s53, s{S_W}, 12")
    p(f"s_lshl_b32 s54, s{S_G}, 10")
    p("s_waitcnt lgkmcnt(0)")
    srd(p, R_XX, 4, 2097152)
    srd(p, R_WS, 6, WS_USED)
    srd(p, R_DBG, 14, 256)
    p("s_load_dwordx4 s[4:7], s[0:1], 48")
    lab = cx.role + "_NONCE"
    if not gemm:
        p("s_lshl_b32 s57, s2, 2")
        p("s_add_u32 s57, s57, s18")
        p("s_cmp_lg_u32 s57, 896")
        p(f"s_cbranch_scc1 {lab}_A")
        t = Prog()
        t(f"v_lshlrev_b32 v{t4}, 7, v1")
        for k in range(4):
            t(f"s_mov_b32 s56, {FL_OFF + k*8192}")
            t(f"buffer_load_dword v{TMP+k}, v{t4}, {R(R_WS)}, s56 offen sc1")
        for l in finalize(t.items):
            p.items.append(Marker('raw', l))
        p(f"{lab}_A:")
    units = []
    for ks in range(8):
        for z in range(4):
            q = Prog()
            if z == 0:
                q(f"s_add_u32 m0, s53, {slot(ks)}")
                kblock(q, ks, 128, 54)
            q(f"buffer_load_dwordx4 v{XV+z}, {R(R_XX)}, s55 offen offset:{z*1024} lds", tag=('X', ks))
            units.append(q.items)
    for u in units[:OPT['x_burst']]:
        p.add(u)
    units = units[OPT['x_burst']:]
    probe(p, 0)
    S0, S1 = DD, DD + 8
    fgen = Prog()
    fgen(f"v_and_b32 v{VM}, 31, v1")
    fgen(f"v_lshrrev_b32 v{VH}, 5, v1")
    fgen(f"v_and_b32 v{t2}, 1, v1")
    fgen(f"v_lshrrev_b32 v{t3}, 1, v{VM}")
    fgen(f"s_lshl_b32 s62, s{S_NT}, 4")
    fgen(f"v_add3_u32 v{t3}, s62, v{t3}, 1")
    fgen(f"v_lshlrev_b32 v{SGN}, 31, v{t3}")
    fgen(f"v_or_b32 v{SGN}, 1.0, v{SGN}")
    fgen(f"v_cvt_f32_u32 v{t5}, v{t2}")
    fgen(f"v_cvt_f32_u32 v{t3}, v{t3}")
    fgen(f"v_mul_f32 v{t3}, {hexf(1/512)}, v{t3}")
    fgen(f"v_mul_f32 v{t5}, {hexf(-0.25)}, v{t5}")
    fgen(f"v_add_f32 v{t5}, {hexf(0.25)}, v{t5}")
    if OPT['rot']:
        fgen(f"s_add_u32 s62, s{S_ROT}, s{S_W}")
        fgen("s_lshl_b32 s62, s62, 6")
    else:
        fgen(f"s_lshl_b32 s62, s{S_W}, 6")
    fgen(f"v_lshl_add_u32 v{t4}, v{VH}, 3, s62")
    fgen(f"v_cvt_f32_u32 v{t4}, v{t4}")
    fgen(f"v_fma_f32 v{S0}, -v{t4}, v{t3}, v{t5}")
    fgen(f"v_mul_f32 v{t4}, {hexf(16.0)}, v{t3}")
    fgen(f"v_sub_f32 v{t5}, {hexf(0.25)}, v{t4}")
    fgen(f"v_sin_f32 v{t5}, v{t5}")
    for i in range(1, 8):
        fgen(f"v_sub_f32 v{S0+i}, v{S0+i-1}, v{t3}")
    for i in range(8):
        fgen(f"v_sub_f32 v{S1+i}, v{S0+i}, v{t4}")
    fgen(f"v_add_f32 v{t5}, v{t5}, v{t5}")
    for i in range(16):
        fgen(f"v_sin_f32 v{S0+i}, v{S0+i}")
    fgen(f"v_add_u32 v{t6}, s53, v2")
    fgen(f"v_add_u32 v{t6}, {MISC}, v{t6}")
    for t in range(4):
        cur = S0 if t % 2 == 0 else S1
        oth = S1 if t % 2 == 0 else S0
        if t >= 2:
            for i in range(0, 8, 2):
                fgen(f"v_pk_fma_f32 {v(cur+i,2)}, {v(t5-1,2)}, {v(oth+i,2)}, {v(cur+i,2)} op_sel:[1,0,0] op_sel_hi:[1,1,1] neg_lo:[0,0,1] neg_hi:[0,0,1]")
        for i in range(4):
            fgen(f"v_cvt_pk_bf16_f32 v{FF+4*t+i}, v{cur+2*i}, v{cur+2*i+1}")
        fgen(f"ds_write_b128 v{t6}, {v(FF+4*t,4)} offset:{t*1024}")
    svc = Prog()
    svc(f"v_bfe_u32 v{t3}, v1, 1, 3")
    svc(f"v_xor_b32 v{t3}, v{t3}, v{VH}")
    svc(f"v_lshl_add_u32 v{t4}, v{VM}, 7, s53")
    for tp in range(4):
        svc(f"v_xor_b32 v{t5}, {2*tp}, v{t3}")
        svc(f"v_lshl_add_u32 v{XR+tp}, v{t5}, 4, v{t4}")
        svc(f"v_add_u32 v{XR+4+tp}, 0x10000, v{XR+tp}")
        if gemm:
            svc(f"v_xor_b32 v{XP+tp}, 0x1000, v{XR+tp}")
            svc(f"v_xor_b32 v{XP+4+tp}, 0x1000, v{XR+4+tp}")
    svc(f"v_mov_b32 v{ONE}, 0x3f803f80")
    svc(f"v_mov_b32 v{ONE+1}, 0x3f803f80")
    svc(f"v_add_u32 v{t6}, {MISC}, v2")
    u0, u2 = TMP + 18, 41
    small = []
    if gemm:
        srd(svc, R_WG, 12, 512*1792*2)
        svc(f"s_sub_u32 s{R_WU}, s58, 2048")
        svc(f"s_subb_u32 s{R_WU+1}, s59, 0")
        svc(f"s_mov_b32 s{R_WU+2}, {512*1792*2 + 2048}")
        svc(f"s_mov_b32 s{R_WU+3}, 0x00020000")
        svc(f"v_and_b32 v{t1}, 7, v1")
        svc(f"v_mul_u32_u24 v{t3}, 3584, v{t0}")
        svc(f"v_and_b32 v{t2}, 2, v{t0}")
        svc(f"v_xor_b32 v{t1}, v{t1}, v{t2}")
        svc(f"v_lshl_add_u32 v{DV}, v{t1}, 4, v{t3}")
        svc(f"v_xor_b32 v{DV+2}, 64, v{DV}")
        svc(f"v_add_u32 v{DV+1}, {8*3584-1024}, v{DV}")
        svc(f"v_add_u32 v{DV+3}, {8*3584-1024}, v{DV+2}")
        svc(f"s_mul_i32 s52, s{S_W}, {16*3584}")
        svc(f"s_lshl_b32 s56, s{S_NT}, 8")
        svc("s_add_u32 s52, s52, s56")
    svc.wait_lgkm()
    svc("s_barrier")
    for t in range(16):
        svc(f"ds_read_b128 {v(FF+4*t,4)}, v{t6} offset:{t*1024}")
    nsetup = len(svc.items)
    P_ = DD
    svc(f"v_bfe_u32 v{t3}, v1, 2, 1")
    svc(f"v_bfe_u32 v{t4}, v1, 3, 2")
    svc(f"v_lshlrev_b32 v{t4}, 2, v{t4}")
    svc(f"v_lshl_add_u32 v{t3}, v{t3}, 4, v{t4}")
    svc(f"v_and_or_b32 v{t3}, v1, 3, v{t3}")
    svc(f"v_cvt_f32_u32 v{t3}, v{t3}")
    svc(f"v_lshl_add_u32 v{t4}, v{VH}, 8, s{S_G}")
    svc(f"v_cvt_f32_u32 v{t4}, v{t4}")
    svc(f"v_mul_f32 v{t4}, {hexf(1/64)}, v{t4}")
    svc(f"v_mul_f32 v{t3}, {hexf(1/32)}, v{t3}")
    svc(f"v_mul_f32 v{P_+1}, v{t4}, v{t3}")
    svc(f"v_mul_f32 v{t5}, {hexf(8.0)}, v{t3}")
    svc(f"v_add_f32 v{P_+3}, v{P_+1}, v{t3}")
    svc(f"v_add_f32 v{P_+9}, v{P_+1}, v{t5}")
    svc(f"v_add_f32 v{P_+11}, v{P_+3}, v{t5}")
    svc(f"v_cos_f32 v{t4}, v{t3}")
    svc(f"v_cos_f32 v{t5}, v{t5}")
    for r in (0, 2, 8, 10):
        svc(f"v_cos_f32 v{P_+r}, v{P_+r+1}")
        svc(f"v_sin_f32 v{P_+r+1}, v{P_+r+1}")
    svc(f"v_pk_add_f32 {v(t4,2)}, {v(t4,2)}, {v(t4,2)}")
    NEG = "neg_lo:[0,0,1] neg_hi:[0,0,1]"
    for r in (4, 12, 6, 14):
        svc(f"v_pk_fma_f32 {v(P_+r,2)}, {v(t4,2)}, {v(P_+r-2,2)}, {v(P_+r-4,2)} op_sel_hi:[0,1,1] {NEG}")
    for t in range(2):
        for cs in range(2):
            for i in range(4):
                svc(f"v_cvt_pk_bf16_f32 v{MM+8*cs+4*t+i}, v{P_+4*i+cs}, v{P_+4*i+2+cs}")
        if t == 0:
            for hh in range(2):
                for r in range(0, 8, 2):
                    svc(f"v_pk_fma_f32 {v(P_+8*hh+r,2)}, {v(t4,2)}, {v(P_+8*(1-hh)+r,2)}, {v(P_+8*hh+r,2)} op_sel:[1,0,0] op_sel_hi:[1,1,1] {NEG}")
    if gemm:
        svc(f"v_bfe_u32 v{t3}, v1, 2, 2")
        svc(f"v_bfe_u32 v{t5}, v1, 4, 1")
        svc(f"v_lshl_add_u32 v{t6+1}, v{VH}, 3, v{t3}")
        svc(f"v_lshlrev_b32 v{t6+1}, 7, v{t6+1}")
        svc(f"v_lshl_add_u32 v{t6+1}, v{t5}, 11, v{t6+1}")
        svc(f"v_and_b32 v{t2}, 1, v1")
        svc(f"v_and_or_b32 v{t2}, v{t3}, 2, v{t2}")
        svc(f"v_lshl_add_u32 v{t2}, v{t5}, 2, v{t2}")
        svc(f"v_lshl_add_u32 v{t6+1}, v{t2}, 4, v{t6+1}")
        svc(f"v_bfe_u32 v{t4}, v1, 1, 1")
        svc(f"v_lshl_add_u32 v{t6+1}, v{t4}, 3, v{t6+1}")
        svc(f"s_bitreverse_b32 s63, s{S_W}" .replace("s_bitreverse_b32", "s_brev_b32"))
        svc("s_lshr_b32 s63, s63, 25")
        svc(f"v_xor_b32 v{AD}, s63, v{t6+1}")
        svc(f"v_xor_b32 v{AD+1}, 32, v{AD}")
        for k in range(2):
            svc(f"v_add_u32 v{AD+2+k}, 0x10000, v{AD+k}")
            svc(f"v_add_u32 v{AD+4+k}, 0x20000, v{AD+k}")
    w0 = Prog()
    w1_, w2_ = TMP + 19, TMP + 20
    srd(w0, R_WR, 8, 2048*257*2)
    srd(w0, R_WI, 10, 2048*257*2)
    w0(f"s_lshr_b32 s61, s{S_IDX}, 4")
    w0("s_lshl_b32 s61, s61, 2")
    w0(f"s_add_u32 s61, s61, s{S_W}")
    w0(f"v_lshrrev_b32 v{w1_}, 4, v1")
    w0(f"v_mul_u32_u24 v{u0}, 514, v{w1_}")
    w0(f"v_and_b32 v{w2_}, 15, v1")
    w0(f"v_lshl_add_u32 v{u0}, v{w2_}, 2, v{u0}")
    w0(f"s_bfe_u32 s60, s{S_IDX}, 0x10003")
    w0(f"s_lshl_b32 s8, s{S_X}, 1")
    w0("s_add_u32 s60, s60, s8")
    w0(f"s_and_b32 s8, s{S_IDX}, 7")
    w0("s_lshl_b32 s60, s60, 3")
    w0("s_add_u32 s8, s8, s60")
    w0("s_lshl_b32 s23, s8, 6")
    w0("s_lshl_b32 s9, s61, 18")
    w0("s_add_u32 s23, s23, s9")
    w0(f"s_add_u32 s23, s23, {WT_OFF}")
    w0("s_mul_i32 s60, s60, 3")
    w0("s_add_u32 s8, s8, s60")
    w0("s_mul_i32 s8, s8, 2056")
    w0("s_lshl_b32 s61, s61, 6")
    w0("s_add_u32 s8, s8, s61")
    svc.add(w0)
    wl = []
    for e in range(4):
        for c in range(2):
            q = Prog()
            if e and c == 0:
                q("s_add_u32 s8, s8, 16448")
            q(f"buffer_load_dword v{WTL+4+c*8+e}, v{u0}, {R(R_WR if c == 0 else R_WI)}, s8 offen offset:2")
            wl.append(q.items)
    w0 = Prog()
    w0(f"s_add_u32 s9, s53, {M_YX}")
    w0(f"v_lshl_add_u32 v{w2_}, v{w2_}, 7, s9")
    w0(f"v_and_b32 v{u0}, 7, v1")
    w0(f"v_xor_b32 v{w1_}, v{w1_}, v{u0}")
    w0(f"v_lshl_add_u32 v{w1_}, v{w1_}, 4, v{w2_}")
    w0(f"v_xor_b32 v{w2_}, 64, v{w1_}")
    w0(f"v_lshrrev_b32 v{VWT}, 2, v1")
    w0(f"v_lshlrev_b32 v{VWT}, 13, v{VWT}")
    w0(f"v_and_b32 v{u0}, 3, v1")
    w0(f"v_lshl_add_u32 v{VWT}, v{u0}, 4, v{VWT}")
    w0("s_mov_b32 s10, 0x05040100")
    w0("s_mov_b32 s11, 0x07060302")
    w0(f"s_add_u32 s9, s23, {16*8192}")
    w1 = Prog()
    for z in range(2):
        for e in range(4):
            w1(f"v_perm_b32 v{WTL+z*8+e}, v{WTL+12+e}, v{WTL+4+e}, s{10+z}")
        w1(f"ds_write_b128 v{w1_+z}, {v(WTL+z*8,4)}")
    w1(f"ds_read_b128 {v(WTL,4)}, v{RDA}")
    w1(f"ds_read_b128 {v(WTL+8,4)}, v{RDA} offset:1024")
    w1.gap(4)
    w1(f"buffer_store_dwordx4 {v(WTL,4)}, v{VWT}, {R(R_WS)}, s23 offen sc1", tag='Wst')
    w1(f"buffer_store_dwordx4 {v(WTL+8,4)}, v{VWT}, {R(R_WS)}, s9 offen sc1", tag='Wst')
    extra = []
    if OPT['codepf']:
        q2 = Prog()
        q2("s_getpc_b64 s[96:97]")
        q2(f"{cx.role}_PC:")
        q2(f"s_sub_u32 s96, s96, {cx.role}_PC-{NAME}")
        q2("s_subb_u32 s97, s97, 0")
        q2(f"s_mov_b32 s98, CODE_END-{NAME}")
        q2("s_mov_b32 s99, 0x00020000")
        q2(f"s_lshl_b32 s100, s{S_IDX}, 12")
        q2(f"v_lshlrev_b32 v{XT+12}, 4, v0")
        q2(f"buffer_load_dwordx4 v[{TMP+12}:{TMP+15}], v{XT+12}, s[96:99], s100 offen")
        extra = [q2.items]
    if OPT['wpf']:
        for k, base in enumerate((12, 58, 4)[:OPT['wpf']] if OPT['wpf'] < 4 else (4,)):
            q2 = Prog()
            if k == 0:
                q2("s_mul_i32 s100, s2, 7168")
                q2("s_add_u32 s101, s100, 4096")
                q2(f"v_lshlrev_b32 v{XT+12}, 4, v0")
            if base == 4:
                q2.touch("s[4:7]")
            srd(q2, 96, base, 512*1792*2)
            q2(f"buffer_load_dwordx4 v[{TMP+12}:{TMP+15}], v{XT+12}, s[96:99], s100 offen")
            extra.append(q2.items)
            extra.append([I(f"buffer_load_dwordx4 v[{TMP+12}:{TMP+15}], v{XT+12}, s[96:99], s101 offen")])
    wun = (w_dma(0, 0) if gemm else [])
    PER = OPT.get('p1_period', 48)
    mer, left = spread(fgen.items + svc.items[:nsetup], extra + units, PER)
    p.add(mer)
    NYOUNG = sum(1 for x in p.items if isinstance(x, I) and x.kind == 'vmem')
    if not gemm:
        p("s_cmp_lg_u32 s57, 896")
        p(f"s_cbranch_scc1 {lab}_B")
        t = Prog()
        t(f"s_waitcnt vmcnt({NYOUNG})")
        t("s_mov_b32 s56, -3")
        t(f"{lab}_L:")
        t("s_add_u32 s56, s56, 4")
        for k in range(4):
            t(f"v_subrev_u32 v{TMP+4+k}, s56, v{TMP+k}")
        t(f"v_min_u32 v{TMP+4}, v{TMP+4}, v{TMP+5}")
        t(f"v_min3_u32 v{TMP+4}, v{TMP+4}, v{TMP+6}, v{TMP+7}")
        t(f"v_cmp_ge_u32 vcc, 3, v{TMP+4}")
        t("s_nop 1")
        t(f"s_cbranch_vccnz {lab}_L")
        t(f"v_mov_b32 v{TMP+8}, s56")
        t(f"v_mov_b32 v{TMP+9}, 0")
        t("s_mov_b64 exec, 1")
        t(f"buffer_store_dword v{TMP+8}, v{TMP+9}, {R(R_DBG)}, 0 offen sc1")
        t("s_mov_b64 exec, -1")
        t("s_nop 1")
        for l in finalize(t.items):
            p.items.append(Marker('raw', l))
        p(f"{lab}_B:")
    probe(p, 0, 2)
    mer, left = spread(svc.items[nsetup:], left + small + wun, PER)
    p.add(mer)
    probe(p, 1)
    probe(p, 1, 2)
    units = [(-1, u) for u in left]
    if gemm:
        for ks in range(1, 8):
            units += [(ks - 1, u) for u in w_dma(0, ks)]
            if ks == 2:
                units += [(0, u) for u in wl]
    else:
        k = sum(1 for _, u in units if u[-1].tag and u[-1].tag[0] == 'X')
        units[k:k] = [(-1, u) for u in wl]

    def xreads(ks):
        q = Prog()
        off = slot(ks)
        for tp in range(4):
            q(f"ds_read_b128 {a(ks*16 + 4*tp, 4)}, v{XR + tp + 4*(off >> 16)} offset:{off & 0xffff}")
        if gemm:
            for tp in range(4):
                q(f"ds_read_b128 {a(128 + ks*16 + 4*tp, 4)}, v{XP + tp + 4*(off >> 16)} offset:{off & 0xffff}")
        return q.items
    NF = TMP + 16
    nq = Prog()
    nq(f"v_mov_b32 v{NF+1}, 0")
    iss, chk_nonce = cx.await_flags(NF, NF + 1, 0, srdn=R_DBG, nonce=True)
    nq.add(iss)
    p.wait_vm(('X', 0))
    if gemm:
        p("s_barrier")
    p.add(xreads(0))
    for ks in range(8):
        probe(p, 2 + ks, 2)
        p.touch(a(ks*16, 16))
        if gemm:
            p.touch(a(128 + ks*16, 16))
        rd = []
        if ks + 1 < 8:
            p.wait_vm(('X', ks + 1))
            if gemm:
                p("s_barrier")
            rd = xreads(ks + 1)
        for tp in range(4):
            t = ks*4 + tp
            d = DD + 16 * (t >> 4)
            p(f"v_mfma_f32_32x32x16_bf16 {v(d,16)}, {a(4*t,4)}, {v(FF+4*(t & 15),4)}, {'0' if t % 16 == 0 else v(d,16)}")
            nrd = -(-len(rd) // (4 - tp))
            p.add(rd[:nrd])
            rd = rd[nrd:]
            for _ in range(1):
                if units and units[0][0] <= ks:
                    p.add(units.pop(0)[1])
            for hf in range(2):
                x_ = a(4*t + 2*hf, 2)
                for k, A_ in enumerate((v(ONE, 2), x_)):
                    r = v(STA + 8*k + 4*hf, 4)
                    p(f"v_mfma_f32_4x4x4_16b_bf16 {r}, {A_}, {x_}, {'0' if t == 0 else r}")
        if ks == OPT['nonce_at']:
            p.add(nq)
    probe(p, 2)
    probe(p, 0, 1)
    a0 = Prog()
    TA, TB_, TC = CSL + 4, CSL + 5, CSL + 6
    a1 = Prog()
    a1(f"v_and_b32 v{ST4+1}, 3, v1")
    for k in range(4):
        a1(f"v_add_f32 v{STA+8+k}, v{STA+8+k}, v{STA+12+k}")
    a1(f"v_add_f32 v{ST4}, v{STA}, v{STA+4}")
    for k in range(1, 4):
        a1(f"v_cmp_eq_u32 vcc, {k}, v{ST4+1}")
        a1(f"v_fma_f32 v{DD+k}, v{DD+16+k}, v{SGN}, v{DD+k}")
        a1(f"v_fma_f32 v{DD+4+k}, v{DD+20+k}, v{SGN}, v{DD+4+k}")
        a1(f"v_cndmask_b32 v{STA+8 if k < 3 else ST4+2}, v{STA+8}, v{STA+8+k}, vcc")
    a1(f"v_mov_b32 v{ST4+1}, v{ST4}")
    a1(f"v_mov_b32 v{ST4+3}, v{ST4+2}")
    a1(f"s_add_u32 s60, s53, {M_ST}")
    a1(f"v_lshl_add_u32 v{TA}, v{VM}, 2, s60")
    a1(f"v_permlane32_swap_b32 v{ST4}, v{ST4+1}")
    a1(f"v_permlane32_swap_b32 v{ST4+2}, v{ST4+3}")
    a1(f"v_add_f32 v{ST4}, v{ST4}, v{ST4+1}")
    a1(f"v_add_f32 v{ST4+2}, v{ST4+2}, v{ST4+3}")
    a1(f"v_mul_f32 v{ST4}, {hexf(1/512)}, v{ST4}")
    a1(f"v_mul_f32 v{ST4+2}, {hexf(1/512)}, v{ST4+2}")
    a1(f"v_fma_f32 v{ST4+2}, -v{ST4}, v{ST4}, v{ST4+2}")
    a1(f"v_max_f32 v{ST4+2}, 0, v{ST4+2}")
    a1(f"v_cvt_pk_bf16_f32 v{ST4}, v{ST4}, v{ST4+2}")
    a1(f"v_and_b32 v{ST4+2}, 0xffff0000, v{ST4}")
    a1(f"v_add_f32 v{ST4+2}, {hexf(1e-5)}, v{ST4+2}")
    a1(f"v_cvt_pk_bf16_f32 v{ST4+2}, v{ST4+2}, v{ST4+2}")
    a1(f"v_and_b32 v{ST4+2}, 0xffff0000, v{ST4+2}")
    a1(f"v_sqrt_f32 v{ST4+2}, v{ST4+2}")
    a1(f"v_lshl_add_u32 v{ST4+3}, v{VH}, 4, s60")
    a1(f"v_cvt_pk_bf16_f32 v{ST4+2}, v{ST4+2}, v{ST4+2}")
    a1(f"v_and_b32 v{V_RS+1}, 0xffff0000, v{ST4+2}")
    a1(f"v_rcp_f32 v{V_RS}, v{V_RS+1}")
    a1(f"v_and_b32 v{ST4}, 0xffff, v{ST4}")
    a1(f"v_or_b32 v{ST4}, v{ST4}, v{V_RS+1}")
    a1(f"ds_write2_b32 v{TA}, v{V_RS}, v{ST4} offset0:0 offset1:32")
    for rq in range(4):
        a1(f"ds_read_b128 {v(STA+4*rq,4)}, v{ST4+3} offset:{rq*32}")
    for r in (0, 4, 8, 9, 10, 11, 12, 13, 14, 15):
        a1(f"v_fma_f32 v{DD+r}, v{DD+16+r}, v{SGN}, v{DD+r}")
    a1.gap(1)
    for r in range(16):
        a1(f"v_mul_f32 v{DD+r}, v{DD+r}, v{STA+r}")
    YB = CSL + 8
    for k in range(8):
        a1(f"v_cvt_pk_bf16_f32 v{YB + k}, v{DD+2*k}, v{DD+2*k+1}")
    PP, QQ = DD, XT
    m1 = Prog()
    for t in range(2):
        m1(f"v_mfma_f32_32x32x16_bf16 {v(PP,16)}, {v(MM+4*t,4)}, {v(YB+4*t,4)}, {'0' if t == 0 else v(PP,16)}")
        m1(f"v_mfma_f32_32x32x16_bf16 {v(QQ,16)}, {v(MM+8+4*t,4)}, {v(YB+4*t,4)}, {'0' if t == 0 else v(QQ,16)}")
    a2 = Prog()
    a2(f"s_add_u32 s62, s53, {M_YX}")
    a2(f"v_lshlrev_b32 v{RDA}, 1, v1")
    a2(f"v_and_b32 v{RDA}, 0x70, v{RDA}")
    a2(f"v_xor_b32 v{RDA}, v{RDA}, v2")
    a2(f"v_add_u32 v{RDA}, s62, v{RDA}")
    a2(f"v_lshlrev_b32 v{ST4+2}, 31, v1")
    a2(f"v_or_b32 v{ST4+2}, 1.0, v{ST4+2}")
    a2(f"v_lshlrev_b32 v{TB_}, 6, v{VM}")
    a2(f"v_lshl_add_u32 v{TB_}, v{VH}, 5, v{TB_}")
    a2(f"v_lshlrev_b32 v{TC}, 3, v1")
    a2(f"v_and_b32 v{TC}, 0x70, v{TC}")
    a2(f"v_xor_b32 v{TB_}, v{TB_}, v{TC}")
    a2(f"v_add_u32 v{TB_}, s62, v{TB_}")
    a2(f"v_xor_b32 v{TC}, 16, v{TB_}")
    a2(f"s_lshl_b32 s60, s{S_NT}, 17")
    a2(f"s_lshl_b32 s61, s{S_G}, 7")
    a2("s_add_u32 s60, s60, s61")
    a2(f"s_add_u32 s60, s60, {Y1_OFF}")
    a2("s_add_u32 s61, s60, 65536")
    for r in range(16):
        a2(f"v_fmac_f32_dpp v{PP+r}, v{QQ+r}, v{ST4+2} quad_perm:[1,0,3,2] row_mask:0xf bank_mask:0xf")
        if r % 8 == 7:
            for k in range(r // 2 - 3, r // 2 + 1):
                a2(f"v_cvt_pk_bf16_f32 v{YB+k}, v{PP+2*k}, v{PP+2*k+1}")
            a2(f"ds_write_b128 v{TB_ + (r >> 3)}, {v(YB+(r >> 3)*4,4)} offset:2048")
    a2(f"ds_read_b128 {v(QQ+8,4)}, v{RDA} offset:2048")
    a2(f"ds_read_b128 {v(QQ+12,4)}, v{RDA} offset:3072")
    a2(f"v_lshrrev_b32 v{TC}, 3, v1")
    a2(f"v_lshlrev_b32 v{TC}, 13, v{TC}")
    a2(f"v_and_b32 v{ST4+3}, 7, v1")
    a2(f"v_lshl_add_u32 v{TC}, v{ST4+3}, 4, v{TC}")
    a2.gap(3)
    a2(f"buffer_store_dwordx4 {v(QQ+8,4)}, v{TC}, {R(R_WS)}, s60 offen sc1", tag='P1st')
    a2(f"buffer_store_dwordx4 {v(QQ+12,4)}, v{TC}, {R(R_WS)}, s61 offen sc1", tag='P1st')
    a3 = Prog()
    if OPT.get('log'):
        print("A units left", len(units))
    return [u for _, u in units], [], a1.items + chk_nonce, m1.items, a2.items, w0.items + w1.items, TA


def gemm_phase(cx, p, left_a, a0, a1, m1, a2, a3, TA):
    ACC = 128
    ET = 64
    RB, RA, RSP = 88, 96, 124

    def reads(j):
        chunk, step, tl = j >> 6, (j >> 1) & 31, j & 1
        off = slot(8 + chunk*8 + (step >> 2)) + (step & 3) * 4096
        ad = AD + tl + 2 * (off >> 16)
        off &= 0xffff
        r = WF + (j % 6) * 4
        return [I(f"ds_read_b64_tr_b16 {v(r,2)}, v{ad} offset:{off}"),
                I(f"ds_read_b64_tr_b16 {v(r+2,2)}, v{ad} offset:{off+512}")]

    def epilogue(n, packed):
        q = Prog()
        G, Uu = ACC + 16*n, ACC + 16*n + 8
        Z = ET + (n & 1) * 8
        PK = ET + 16 + (n & 1) * 4
        RS = V_RS if (n & 1) == 0 else RSP
        if not packed:
            for i in range(8):
                q(f"v_mul_f32 v{G+i}, v{G+i}, v{RS}")
            for i in range(8):
                q(f"v_mul_f32 v{Z+i}, v{G+i}, v{G+i}")
            for i in range(8):
                q(f"v_fma_f32 v{Z+i}, v{Z+i}, v{V_C+1}, v{V_C}")
            for i in range(8):
                q(f"v_mul_f32 v{Z+i}, v{Z+i}, v{G+i}")
            for i in range(8):
                q(f"v_exp_f32 v{Z+i}, v{Z+i}")
                q(f"v_mul_f32 v{G+i}, v{G+i}, v{Uu+i}")
            for i in range(8):
                q(f"v_fma_f32 v{Z+i}, v{Z+i}, v{RS+1}, v{RS+1}")
            for i in range(8):
                q(f"v_rcp_f32 v{Z+i}, v{Z+i}")
            for i in range(8):
                q(f"v_mul_f32 v{G+i}, v{G+i}, v{Z+i}")
        else:
            rs = v(RS, 2)
            for i in range(0, 8, 2):
                q(f"v_pk_mul_f32 {v(G+i,2)}, {v(G+i,2)}, {rs} op_sel_hi:[1,0]")
            for i in range(0, 8, 2):
                q(f"v_pk_mul_f32 {v(Z+i,2)}, {v(G+i,2)}, {v(G+i,2)}")
            for i in range(0, 8, 2):
                q(f"v_pk_fma_f32 {v(Z+i,2)}, {v(Z+i,2)}, {v(V_C,2)}, {v(V_C,2)} op_sel:[0,1,0] op_sel_hi:[1,1,0]")
            for i in range(0, 8, 2):
                q(f"v_pk_mul_f32 {v(Z+i,2)}, {v(Z+i,2)}, {v(G+i,2)}")
            for i in range(8):
                q(f"v_exp_f32 v{Z+i}, v{Z+i}")
                if i % 2 == 0:
                    q(f"v_pk_mul_f32 {v(G+i,2)}, {v(G+i,2)}, {v(Uu+i,2)}")
            for i in range(0, 8, 2):
                q(f"v_pk_fma_f32 {v(Z+i,2)}, {v(Z+i,2)}, {rs}, {rs} op_sel:[0,1,1] op_sel_hi:[1,1,1]")
            for i in range(8):
                q(f"v_rcp_f32 v{Z+i}, v{Z+i}")
            for i in range(0, 8, 2):
                q(f"v_pk_mul_f32 {v(G+i,2)}, {v(G+i,2)}, {v(Z+i,2)}")
        for i in range(4):
            q(f"v_cvt_pk_bf16_f32 v{PK+i}, v{G+2*i}, v{G+2*i+1}")
        so = 56 + (n & 1) * 2 + (n >> 2)
        q(f"buffer_store_dwordx4 {v(PK,4)}, v{HV + ((n >> 1) & 1)}, {R(R_WS)}, s{so} offen sc1", tag='Hst')
        return q.items

    GA, ON2, CA, HV, CP = 112, 114, 116, 126, 104
    b0 = Prog()
    b0(f"v_mov_b32 v{ON2}, 0x3f803f80")
    b0(f"v_mov_b32 v{ON2+1}, 0x3f803f80")
    b1 = Prog()
    b1(f"v_xor_b32 v{TA}, 0x1000, v{TA}")
    b1(f"ds_read2_b32 {v(RSP,2)}, v{TA} offset0:0 offset1:32")
    b1("v_cmp_gt_u32 vcc, 32, v1")
    for k in range(2):
        if k:
            b1.gap(3)
        src = ST4 if k == 0 else RSP + 1
        r = RB + 4*k
        b1(f"v_mov_b32 v{r+2}, 0")
        b1(f"v_mov_b32 v{r+3}, 0")
        b1(f"v_and_b32 v{r}, 0xffff, v{src}")
        b1(f"v_xor_b32 v{r}, 0x8000, v{r}")
        b1(f"v_cndmask_b32 v{r+1}, 0, v{r}, vcc")
        b1(f"v_lshl_or_b32 v{r}, v{r+1}, 16, v{r+1}")
    b1(f"v_and_b32 v{RSP+1}, 0xffff0000, v{RSP+1}")
    b1("s_lshl_b32 s60, s63, 5")
    b1(f"v_add_u32 v{HV}, s60, v2")
    b1(f"v_xor_b32 v{HV+1}, 1024, v{HV}")
    b1(f"s_add_u32 s60, s53, {CSX}")
    b1(f"v_lshl_add_u32 v{GA}, v{VM}, 2, s60")
    b1(f"v_xor_b32 v{GA+1}, 0x2000, v{GA}")
    for k in range(2):
        b1(f"v_mov_b32 v{RA+4*k+2}, 0")
        b1(f"v_mov_b32 v{RA+4*k+3}, 0")
    for k in range(2):
        b1(f"s_xor_b32 s{56+2*k}, s{S_G}, {k}")
        b1(f"s_mul_i32 s{56+2*k}, s{56+2*k}, 112")
        b1(f"s_lshl_b32 s{57+2*k}, s{S_NT}, 3")
        b1(f"s_add_u32 s{56+2*k}, s{56+2*k}, s{57+2*k}")
        b1(f"s_lshl_b32 s{56+2*k}, s{56+2*k}, 10")
        b1(f"s_add_u32 s{56+2*k}, s{56+2*k}, {H_OFF}")
        b1(f"s_add_u32 s{57+2*k}, s{56+2*k}, 4096")
    def cs_mfma(j):
        r = WF + (j % 6) * 4
        first = (j & 63) == 0
        return [I(f"v_mfma_f32_4x4x4_16b_bf16 {v(CA+4*hf,4)}, {v(ON2,2)}, {v(r+2*hf,2)}, {'0' if first else v(CA+4*hf,4)}")
                for hf in range(2)]

    def cs_fin(ch):
        q = Prog()
        c = CP + 4*ch
        q(f"v_add_f32 v{c}, v{CA}, v{CA+4}")
        q(f"v_mov_b32 v{c+1}, v{c}")
        q("s_nop 1")
        q(f"v_permlane32_swap_b32 v{c}, v{c+1}")
        q(f"v_add_f32 v{c}, v{c}, v{c+1}")
        q(f"ds_write_b32 v{GA}, v{c} offset:{ch*128}")
        return q.items

    def cs_get(ch):
        q = Prog()
        q(f"ds_read_b32 v{CP+4*ch+2}, v{GA+1} offset:{ch*128}")
        q.gap(3)
        return q.items

    def rank1_prep(k):
        q = Prog()
        r = RA + 4 * (k & 1)
        c = CP + 2*k
        q(f"v_and_b32 v{r}, 0xffff0000, v{c}")
        q(f"v_sub_f32 v{c}, v{c}, v{r}")
        q(f"v_and_b32 v{r+1}, 0xffff0000, v{c}")
        q(f"v_sub_f32 v{c}, v{c}, v{r+1}")
        q(f"v_lshrrev_b32 v{r}, 16, v{r}")
        q(f"v_or_b32 v{r}, v{r}, v{r+1}")
        q(f"v_lshrrev_b32 v{r+1}, 16, v{c}")
        return q.items

    def rank1(n):
        r = RA + 4 * ((n >> 1) & 1)
        return I(f"v_mfma_f32_32x32x16_bf16 {v(ACC+16*n,16)}, {v(r,4)}, {v(RB+4*(n&1),4)}, {v(ACC+16*n,16)}")

    seen = set()
    ev = set()
    lastbar = [-100]
    LAF = 4

    def rd_for(j):
        q = Prog()
        key = (j >> 6, (j >> 3) & 7)
        if key not in seen:
            seen.add(key)
            q.wait_vm(('W',) + key)
            q("s_barrier")
            lastbar[0] = 2 * (j - LAF)
            if 'p3' in ev:
                ev.add('p3ok')
        r = reads(j)
        return q.items + r[:1], r[1:]

    def group(f):
        q = Prog()
        f(q)
        return [q.items]

    def publish(tag, delta):
        def f(q):
            q.wait_vm(tag)
            q("s_barrier")
            q.add(cx.set_flag(delta, CSL + 12))
        return group(f)
    LAF = 4
    for j in range(LAF):
        x_, y_ = rd_for(j)
        p.add(x_ + y_)
    BUD = OPT['gap_budget']
    bar = group(lambda q: q("s_barrier"))
    timed = []
    b0(f"v_mov_b32 v{V_C}, {hexf(C1)}")
    b0(f"v_mov_b32 v{V_C+1}, {hexf(C2)}")
    script = [('fill', a1), ('mfma', m1), ('fill', a2), ('fill', a3), ('mark', 'y'), ('fill', b0.items),
              ('after', ('y', OPT['pub1_gap'])), ('unit', publish('Wst', 1)), ('gap', 1),
              ('fill', b1.items), ('unit', [p3_setup()]), ('ev', 'p3'),
              ('at', 128), ('fill', cs_fin(0) + rank1_prep(0)), ('mfma', [rank1(0), rank1(1)]),
              ('fill', epilogue(0, False)), ('nextbar', None), ('fill', cs_get(0) + rank1_prep(1)), ('mfma', [rank1(2), rank1(3)])]
    marks = {}
    for n in range(1, 4):
        script += [('fill', epilogue(n, False))]
    if OPT.get('serial_y'):
        p.add(a1 + m1 + b0.items + a2 + a3)
        script = script[4:5] + script[6:]
        probe(p, 0, 1)
    units = [((lambda: True), u) for u in left_a]
    for ks in (1, 2, 3, 4, 0, 5, 6, 7):
        cond = (lambda: 'p3ok' in ev) if ks == 0 else ((lambda k=ks: (0, k + 1) in seen) if ks < 7 else (lambda: (1, 0) in seen))
        units += [(cond, u) for u in w_dma(1, ks)]
    for q_ in range(7):
        cond = (lambda k=q_: 'p3ok' in ev and (1, k + 1) in seen)
        units += [(cond, u) for u in wd_units('G', q_)]
    prio_units = []
    fill = []
    last_dsw = -100
    hold = 0
    log = []
    pend = []
    for i in range(256):
        j, rgi = i >> 1, i & 1
        n = (j >> 6) * 4 + (j & 1) * 2 + rgi
        step = (j >> 1) & 31
        gap = Prog()
        if i % 4 == 0:
            p.touch(v(WF + ((j + 1) % 6) * 4, 4))
        c = "0" if step == 0 else v(ACC + 16*n, 16)
        p(f"v_mfma_f32_32x32x16_bf16 {v(ACC+16*n,16)}, {v(WF + (j % 6)*4, 4)}, {a(rgi*128 + step*4,4)}, {c}")
        if rgi == 0:
            if j + LAF < 128:
                x_, pend = rd_for(j + LAF)
                gap.add(x_)
        else:
            gap.add(pend)
            pend = []
        if prio_units:
            gap.add(prio_units.pop(0))
        elif timed and i >= timed[0][0] and i % 2 == 0:
            gap.add(timed.pop(0)[1])
        elif units and i % 2 == 1 and units[0][0]():
            gap.add(units.pop(0)[1])
        cost = sum(x.cost for x in gap.items) + (4 if i % 4 == 3 else 0)
        extra_m = []
        while True:
            while fill and (cost + fill[0].cost <= BUD or (cost <= 8 and fill[0].cost > 8)) and i >= hold:
                if isinstance(fill[0], Marker) and fill[0].kind == 'gap':
                    hold = i + 1 + fill.pop(0).arg
                    continue
                cost += fill[0].cost
                if isinstance(fill[0], I) and fill[0].op.startswith('ds_write'):
                    last_dsw = i
                gap.add([fill.pop(0)])
            if fill or not script or prio_units:
                break
            kind, pay = script[0]
            if kind == 'at' and i + 1 < pay:
                break
            if kind == 'since' and i < last_dsw + pay:
                break
            if kind == 'after' and i < marks.get(pay[0], 0) + pay[1]:
                break
            if kind == 'nextbar' and not (lastbar[0] >= last_dsw + 10):
                break
            if kind == 'mark':
                marks[pay] = i
            script.pop(0)
            log.append((i, kind))
            if kind == 'fill':
                fill = list(pay)
            elif kind == 'mfma':
                extra_m = pay
                break
            elif kind == 'unit':
                prio_units = list(pay)
            elif kind == 'gap':
                script.insert(0, ('at', i + 1 + pay))
            elif kind == 'ev':
                ev.add(pay)
        p.add(gap)
        if rgi == 1 and (j & 1) == 0:
            p.add(cs_mfma(j))
        p.add(extra_m)
        if i in (127,):
            probe(p, 3)
        if i % 16 == 15 and i < 160:
            probe(p, 1 + i // 16, 1)
        z0, zs = OPT.get('zoom', (28, 2))
        if i >= z0 and (i - z0) % zs == 0 and (i - z0) // zs < 11:
            probe(p, (i - z0) // zs, 5)
    if OPT.get('log'):
        print(log, len(fill), [k for k, _ in script], len(units))
    assert not prio_units and not timed
    probe(p, 4)
    rest = list(fill)
    for kind, pay in script:
        assert kind == 'fill'
        rest += pay
    rest = cs_fin(1) + rank1_prep(2) + [rank1(4), rank1(5)] + rest + epilogue(4, True)
    q = Prog()
    q.wait_lgkm()
    q("s_barrier")
    rest += q.items + cs_get(1) + epilogue(5, True) + rank1_prep(3) + [rank1(6), rank1(7)]
    rest += [I("s_nop 7")] * 0 + epilogue(6, True) + epilogue(7, True)
    p.add(rest)
    probe(p, 5)
    p.wait_vm('Hst')
    p("s_barrier")
    p.add(cx.set_flag(2, 64))
    probe(p, 6)
    return [u for _, u in units] + wd_units('G', 7) + wd_units('G', 8) + wd_units('G', 9)


def fft_tables():
    def bf(x):
        u = np.asarray(x, dtype=np.float32).view(np.uint32)
        return ((u + 0x7fff + ((u >> 16) & 1)) >> 16).astype(np.uint16)
    lane = np.arange(64)
    m, h = lane & 31, lane >> 5
    i = np.arange(8)
    blob = []
    for N, ntile in ((32, 1), (64, 2)):
        fr = {0: [], 1: [], 2: []}
        for tile in range(ntile):
            for st in range(2 * ntile):
                tau, t = st >> 1, st & 1
                k = 32*tau + 16*t + 8*(i[None, :] >> 2) + 4*h[:, None] + (i[None, :] & 3)
                ang = 2*np.pi*(((32*tile + m[:, None]) * k) % N)/N
                fr[0].append(bf(np.cos(ang)))
                fr[1].append(bf(np.sin(ang)))
                fr[2].append(bf(-np.sin(ang)))
        for kind in range(3):
            blob.append(np.concatenate([x.ravel() for x in fr[kind]]).tobytes())
    e = np.arange(4)
    t2 = []
    for tau in range(2):
        for rq in range(4):
            row = 8*rq + 4*h[:, None] + e[None, :]
            ang2 = 2*np.pi*(row * (32*tau + m[:, None]))/2048
            t2 += [np.cos(ang2), np.sin(ang2)]
    T2 = np.concatenate([x.ravel() for x in t2]).astype(np.float32).tobytes()
    return T2 + b"".join(blob[:3]) + bytes(2048) + b"".join(blob[3:])


def fft_phase(cx, p, left, w0, a1, m1, a2, w1):
    for u in left:
        p.add(u)
    p("s_barrier")
    p("s_getpc_b64 s[32:33]")
    p("F_TPC:")
    p("s_add_u32 s32, s32, FFT_TBL-F_TPC")
    p("s_addc_u32 s33, s33, 0")
    p(f"s_mov_b32 s34, {TBL_BYTES}")
    p("s_mov_b32 s35, 0x00020000")
    tb = []
    for k in range(12):
        q = Prog()
        if k == 0:
            q(f"s_add_u32 m0, s53, {L_T2}")
            q("s_mov_b32 s55, s53")
        if k in (4, 8):
            q(f"s_lshl_b32 s55, s{S_W}, 13")
            q(f"s_add_u32 m0, s55, {L_WT + (k-4)*1024}")
            q(f"s_add_u32 s55, s55, {16384 + (k-4)*1024}")
        q(f"buffer_load_dwordx4 v2, s[32:35], s55 offen offset:{(k % 4)*1024} lds", tag='TB')
        tb.append(q.items)
    p.add(a1 + m1 + a2 + w1)
    FDV = 252
    p.add(p3_setup(FDV, 160))
    for u in tb:
        p.add(u)
    pre = []
    for q_ in range(4):
        U = wd_units('F', q_, FDV)
        U[0][0] = I(f"s_add_u32 m0, s53, {L_Y + q_*16384}")
        pre += U
    for u in pre[:8]:
        p.add(u)
    p("v_add_u32 v152, 0x10000, v2")
    p(f"s_lshl_b32 s56, s{S_X}, 2")
    p(f"s_add_u32 s56, s56, s{S_IDX}")
    p("s_sub_u32 s56, s56, 28")
    p("s_lshl_b32 s57, s56, 3")
    p(f"s_lshl_b32 s58, s{S_W}, 1")
    p("s_add_u32 s57, s57, s58")
    p("s_lshl_b32 s57, s57, 13")
    p(f"s_add_u32 s58, s57, {Y1_OFF}")
    p(f"s_add_u32 s59, s57, {WT_OFF}")
    p(f"s_lshl_b32 s54, s{S_W}, 14")
    p(f"s_add_u32 s52, s54, {L_Y}")
    p(f"s_add_u32 s54, s54, {L_WT}")
    p("v_add_u32 v6, s54, v2")
    p("v_lshlrev_b32 v3, 7, v0")
    p("v_lshrrev_b32 v4, 3, v1")
    p("v_and_b32 v4, 2, v4")
    p("v_lshlrev_b32 v4, 5, v4")
    p("v_xor_b32 v4, v4, v2")
    p("v_bfe_u32 v12, v1, 2, 2")
    p(f"v_lshl_add_u32 v5, v{VH}, 2, v12")
    p("v_lshlrev_b32 v5, 7, v5")
    p("v_bfe_u32 v11, v1, 4, 1")
    p("v_lshl_add_u32 v5, v11, 5, v5")
    p("v_and_b32 v11, 3, v1")
    p("v_lshl_add_u32 v5, v11, 3, v5")
    p("v_and_b32 v12, 2, v12")
    p("v_lshlrev_b32 v12, 5, v12")
    p("v_xor_b32 v5, v5, v12")
    p("v_add_u32 v5, s52, v5")
    p("v_xor_b32 v12, 64, v5")
    p("v_lshlrev_b32 v7, 2, v14")
    p("v_lshl_add_u32 v8, v15, 8, v7")
    p("v_lshl_add_u32 v7, v15, 11, v7")
    p(f"s_lshl_b32 s55, s{S_W}, 7")
    p(f"s_add_u32 s55, s55, {L_Y}")
    p("v_add_u32 v7, s55, v7")
    p(f"s_lshl_b32 s55, s{S_W}, 13")
    p(f"s_add_u32 s55, s55, {L_Y}")
    p("v_add_u32 v8, s55, v8")
    p("v_add_u32 v9, 128, v8")

    p.wait_vm('Wst')
    p("s_barrier")
    p.add(cx.set_flag(1, CSL + 12))
    probe(p, 3)
    for u in pre[8:]:
        p.add(u)
    AF32, AF64 = 0, 24
    iss, chk = cx.await_flags(11, 3, 1)
    p.wait_vm('TB')
    p("s_barrier")
    for k in range(24):
        p(f"ds_read_b128 {a(AF64+4*k,4)}, v152 offset:{L_F64 + k*1024 - 65536}")
    for k in range(6):
        p(f"ds_read_b128 {a(AF32+4*k,4)}, v152 offset:{L_F32 + k*1024 - 65536}")
    p.add(tr_addr(160, 161, 164))
    p.wait_vm(('D', 7))
    p.add(iss)
    for step in range(8):
        for Dt in range(2):
            for b in range(2):
                p(f"ds_read_b64_tr_b16 {a(128 + step*8 + Dt*4 + 2*b, 2)}, v{160+Dt} offset:{L_Y + (step >> 1)*16384 + (step & 1)*2048 + b*512 - 16384}")
    p.wait_lgkm()
    p.add(chk)
    p("s_barrier")
    probe(p, 4)
    ACC = [16, 112]
    PK = [80, 176]
    TB, RT, WU = 208, 224, 240
    wdu = []
    for q_ in range(1, OPT.get('f_wd', 1)):
        wdu += wd_units('F', q_, FDV)

    def acc(col, c, tile):
        return ACC[col] + c*32 + tile*16

    def pk(col, c, st):
        return PK[col] + c*16 + st*4

    def lin_dma(vo, lb, sb, name, col):
        U = []
        for k in range(8):
            q = Prog()
            if k % 4 == 0:
                q(f"s_add_u32 m0, s{lb}, {col*8192 + k*1024}")
                q(f"s_add_u32 s55, s{sb}, {col*8192 + k*1024}")
            q(f"buffer_load_dwordx4 v{vo}, {R(R_WS)}, s55 offen offset:{(k % 4)*1024} {OPT['ldf']} lds", tag=(name, col, k // 2))
            U.append(q.items)
        return U

    def y_reads(col, st):
        q = Prog()
        q.wait_vm(('Y', col, st))
        for c in range(2):
            for b in range(2):
                q(f"ds_read_b64_tr_b16 {v(pk(col,c,st)+2*b,2)}, v{5 if c == 0 else 12} offset:{col*8192 + st*2048 + b*1024}")
        return q.items
    units = lin_dma(4, 52, 58, 'Y', 0) + lin_dma(4, 52, 58, 'Y', 1) + lin_dma(2, 54, 59, 'WT', 0) + lin_dma(2, 54, 59, 'WT', 1)
    for u in units[:8]:
        p.add(u)
    for u in units[8:12]:
        p.add(u)
    units = units[12:]

    def mm(d, A, B, first):
        return I(f"v_mfma_f32_32x32x16_bf16 {v(d,16)}, {A}, {B}, {'0' if first else v(d,16)}")

    def f32(kind, t):
        return a(AF32 + kind*8 + t*4, 4)

    def f64(kind, tile, st):
        return a(AF64 + kind*32 + tile*16 + st*4, 4)

    def stage(col, n):
        L = []
        kre, kim = (2, 1) if n >= 3 else (1, 2)
        nst = 2 if n == 4 else 4
        for st in range(nst):
            for tile in range(2):
                if n == 2:
                    pr = lambda kind, c: (f64(kind, tile, st), v(pk(col, c, st), 4))
                elif n == 3:
                    pr = lambda kind, c: (v(pk(col, c, st), 4), f64(kind, tile, st))
                else:
                    pr = lambda kind, c: (v(pk(col, c, tile*2 + st), 4), f32(kind, st))
                L.append(mm(acc(col, 0, tile), *pr(0, 0), st == 0))
                L.append(mm(acc(col, 1, tile), *pr(0, 1), st == 0))
                L.append(mm(acc(col, 0, tile), *pr(kre, 1), False))
                L.append(mm(acc(col, 1, tile), *pr(kim, 0), False))
        return L

    def xw(col, k):
        g = 32*(k >> 4) + 8*((k & 15) >> 2) + (k & 3)
        return [I(f"ds_write_b32 v7, v{PK[col]+k} offset:{col*32768 + g*512}")]

    def vphase(col, n):
        q = Prog()
        if n == 4:
            for k in range(32):
                q(f"v_cvt_pk_bf16_f32 v{PK[col]+k}, v{acc(col,0,0)+k}, v{acc(col,1,0)+k}")
                if k >= 2:
                    q.add(xw(col, k - 2))
            return q.items + xw(col, 30) + xw(col, 31)

        def rd(k):
            b = TB + (k & 1) * 8
            if n == 2:
                q(f"ds_read_b128 {v(b,4)}, v6 offset:{col*8192 + k*1024}")
            else:
                q(f"ds_read_b128 {v(b,4)}, v2 offset:{L_T2 + k*2048}")
                q(f"ds_read_b128 {v(b+4,4)}, v2 offset:{L_T2 + k*2048 + 1024}")
        rd(0)
        for k in range(8):
            tile, rq = k >> 2, k & 3
            if k + 1 < 8:
                rd(k + 1)
            b = TB + (k & 1) * 8
            xr, xi = acc(col, 0, tile) + 4*rq, acc(col, 1, tile) + 4*rq
            Rr = RT + (k & 1) * 8
            if n == 2:
                for e in range(4):
                    q(f"v_lshlrev_b32 v{WU+e}, 16, v{b+e}")
                    q(f"v_and_b32 v{WU+4+e}, 0xffff0000, v{b+e}")
                cc, ss = WU, WU + 4
            else:
                cc, ss = b, b + 4
            for e in range(4):
                q(f"v_mul_f32 v{Rr+e}, v{xr+e}, v{cc+e}")
                q(f"v_mul_f32 v{Rr+4+e}, v{xi+e}, v{cc+e}")
            for e in range(4):
                q(f"v_fma_f32 v{Rr+e}, -v{xi+e}, v{ss+e}, v{Rr+e}")
                q(f"v_fma_f32 v{Rr+4+e}, v{xr+e}, v{ss+e}, v{Rr+4+e}")
            st, half = tile*2 + (rq >> 1), (rq & 1) * 2
            for c in range(2):
                for e in range(2):
                    q(f"v_cvt_pk_bf16_f32 v{pk(col,c,st)+half+e}, v{Rr+4*c+2*e}, v{Rr+4*c+2*e+1}")
        return q.items
    probe(p, 0, 3)
    S = stage(0, 2)
    S = y_reads(0, 0) + y_reads(0, 1) + S[:8] + y_reads(0, 2) + S[8:16] + y_reads(0, 3) + S[16:24] + y_reads(1, 0) + y_reads(1, 1) + S[24:]
    mer, units = spread(S, units, 40)
    p.add(mer)
    p.add(y_reads(1, 2) + y_reads(1, 3))
    probe(p, 1, 3)
    order = [((1, 2), (0, 2)), ((0, 3), (1, 2)), ((1, 3), (0, 3)), ((0, 4), (1, 3)), ((1, 4), (0, 4))]
    for (sc, sn), (vc, vn) in order:
        if vn == 2:
            p.wait_vm(('WT', vc, 3))
        if (sc, sn) == (1, 3):
            p("s_barrier")
            units = units + wdu
        S, Vv = stage(sc, sn), vphase(vc, vn)
        tot = sum(x.cost for x in Vv)
        bud = max(24, -(-tot // len(S) // 4) * 4)
        mer, left = interleave(S, Vv, budget=bud)
        mer, units = spread(mer + left, units, 64)
        p.add(mer)
        probe(p, 2 + order.index(((sc, sn), (vc, vn))), 3)
    assert not units
    p.add(vphase(1, 4))
    probe(p, 5)
    p(f"s_lshl_b32 s60, s{S_W}, 19")
    p("s_lshl_b32 s61, s56, 10")
    p("s_add_u32 s60, s60, s61")
    p(f"s_add_u32 s60, s60, {V_OFF}")
    probe(p, 7, 3)
    p.wait_lgkm()
    p("s_barrier")
    probe(p, 8, 3)
    O = 16

    for k in range(16):
        p(f"ds_read2st64_b32 {v(O+4*k,2)}, v8 offset0:{2*k} offset1:{2*k+128}")
        p(f"ds_read2st64_b32 {v(O+4*k+2,2)}, v9 offset0:{2*k} offset1:{2*k+128}")
        if k >= 3:
            p(f"buffer_store_dwordx4 {v(O+4*(k-3),4)}, v2, {R(R_WS)}, s60 offen sc1", tag='Vst')
            p("s_add_u32 s60, s60, 32768")
    for k in range(13, 16):
        p(f"buffer_store_dwordx4 {v(O+4*k,4)}, v2, {R(R_WS)}, s60 offen sc1", tag='Vst')
        if k < 15:
            p("s_add_u32 s60, s60, 32768")
    probe(p, 9, 3)
    for q_ in range(4, 9):
        for u in wd_units('F', q_, FDV):
            p.add(u)
    pub = Prog()
    pub.wait_vm('Vst')
    pub("s_barrier")
    pub.add(cx.set_flag(2, 112))
    cx.pub = pub.items
    probe(p, 6)
    probe(p, 10, 3)
    return []


P3_DV = 44
X_S, X_G = {'G': 16384, 'F': 5*16384}, {'G': 5*16384, 'F': 0}
P3_SLOT = {'G': [k * 16384 for k in (6, 7, 8, 0, 1, 2, 3, 4, 5)] + [MISC],
           'F': [k * 16384 for k in (0, 1, 2, 3)] + [MISC] + [k * 16384 for k in (5, 6, 7, 8, 4)]}
R_WD, R_OUT = R_WR, R_WI
S_WD, S_G0, S_DB = 48, 49, 50
A_V, A_PRE, A_H = 0, 64, 128


def p3_setup(dv=P3_DV, t=84):
    q = Prog()
    q(f"s_and_b32 s60, s{S_IDX}, 3")
    q(f"s_lshl_b32 s61, s{S_X}, 3")
    q("s_lshl_b32 s60, s60, 1")
    q(f"s_add_u32 s{S_G0}, s60, s61")
    q(f"s_lshr_b32 s{S_DB}, s{S_IDX}, 2")
    q(f"v_lshrrev_b32 v{t}, 3, v1")
    q(f"v_and_b32 v{t+1}, 7, v1")
    q(f"v_and_b32 v{t+2}, 2, v{t}")
    q(f"v_lshlrev_b32 v{t+2}, 1, v{t+2}")
    q(f"v_xor_b32 v{t+1}, v{t+1}, v{t+2}")
    q(f"v_lshlrev_b32 v{t}, 10, v{t}")
    q(f"v_lshl_add_u32 v{dv}, v{t+1}, 4, v{t}")
    for k in range(1, 4):
        q(f"v_add_u32 v{dv+k}, {k*(8192-1024)}, v{dv}")
    q(f"s_mul_i32 s{S_WD}, s{S_W}, {28*16*1024}")
    q(f"s_lshl_b32 s60, s{S_DB}, 7")
    q(f"s_add_u32 s{S_WD}, s{S_WD}, s60")
    srd(q, R_WD, 4, 1792*512*2)
    srd(q, R_OUT, 6, 2097152)
    return q.items


def wd_units(role, pair, dv=P3_DV):
    U = []
    for k in range(4):
        q = Prog()
        if k == 0:
            q(f"s_add_u32 m0, s53, {P3_SLOT[role][pair % 10]}")
            q(f"s_add_u32 s55, s{S_WD}, {pair*32*1024}")
        q(f"buffer_load_dwordx4 v{dv+k}, {R(R_WD)}, s55 offen offset:{k*1024} lds", tag=('D', pair*2 + (k >> 1)))
        U.append(q.items)
    return U


def tr_addr(d0, d1, t):
    q = Prog()
    q(f"v_bfe_u32 v{t}, v1, 2, 2")
    q(f"v_lshrrev_b32 v{t+1}, 5, v1")
    q(f"v_lshl_add_u32 v{t+1}, v{t+1}, 3, v{t}")
    q(f"v_lshl_add_u32 v{t+1}, v{t+1}, 7, s53")
    q(f"v_bfe_u32 v{t+2}, v1, 4, 1")
    q(f"v_lshl_add_u32 v{t+1}, v{t+2}, 5, v{t+1}")
    q(f"v_and_b32 v{t+2}, 3, v1")
    q(f"v_lshl_add_u32 v{t+1}, v{t+2}, 3, v{t+1}")
    q(f"v_and_b32 v{t}, 2, v{t}")
    q(f"v_lshlrev_b32 v{t}, 5, v{t}")
    q(f"v_xor_b32 v{d0}, v{t+1}, v{t}")
    if d0 == 160:
        q(f"v_add_u32 v{d0}, 16384, v{d0}")
    q(f"v_xor_b32 v{d1}, 64, v{d0}")
    return q.items


def cgen(dst, S0, T, packed):
    q = Prog()
    S1 = S0 + 8
    d_, j_, th, t8, c2, tmp = T, T + 1, T + 2, T + 3, T + 4, T + 6
    q(f"v_and_b32 v{d_}, 31, v1")
    q(f"s_lshl_b32 s62, s{S_DB}, 6")
    q(f"v_add_u32 v{d_}, s62, v{d_}")
    q(f"v_lshrrev_b32 v{j_}, 5, v1")
    q(f"s_lshl_b32 s62, s{S_W}, 6")
    q(f"v_lshl_add_u32 v{j_}, v{j_}, 2, s62")
    q(f"v_add_u32 v{j_}, 1, v{j_}")
    q("s_movk_i32 s62, 0xc5")
    q(f"v_cmp_eq_u32 s[60:61], s62, v{j_}")
    q(f"v_cvt_f32_u32 v{j_}, v{j_}")
    for Dt in range(2):
        q(f"v_cvt_f32_u32 v{th}, v{d_}")
        q(f"v_mul_f32 v{th}, {hexf(1/512)}, v{th}")
        q(f"v_mul_f32 v{t8}, {hexf(8.0)}, v{th}")
        q(f"v_sub_f32 v{c2}, {hexf(0.25)}, v{t8}")
        q(f"v_sin_f32 v{c2}, v{c2}")
        q(f"v_fma_f32 v{S0+1}, -v{j_}, v{th}, 0")
        for ci in range(1, 4):
            q(f"v_sub_f32 v{S0+2*ci+1}, v{S0+2*ci-1}, v{th}")
        for ci in range(4):
            q(f"v_add_f32 v{S0+2*ci}, {hexf(0.25)}, v{S0+2*ci+1}")
        for i in range(8):
            q(f"v_sub_f32 v{S1+i}, v{S0+i}, v{t8}")
        q(f"v_add_f32 v{c2}, v{c2}, v{c2}")
        for i in range(16):
            q(f"v_sin_f32 v{S0+i}, v{S0+i}")
        for t in range(8):
            cur = S0 if t % 2 == 0 else S1
            oth = S1 if t % 2 == 0 else S0
            if t >= 2:
                for i in range(0, 8, 2 if packed else 1):
                    if packed:
                        q(f"v_pk_fma_f32 {v(cur+i,2)}, {v(c2,2)}, {v(oth+i,2)}, {v(cur+i,2)} op_sel_hi:[0,1,1] neg_lo:[0,0,1] neg_hi:[0,0,1]")
                    else:
                        q(f"v_fma_f32 v{cur+i}, v{c2}, v{oth+i}, -v{cur+i}")
            for i in range(4):
                q(f"v_cvt_pk_bf16_f32 v{dst+Dt*32+4*t+i}, v{cur+2*i}, v{cur+2*i+1}")
        q(f"v_and_b32 v{tmp}, 1, v{d_}")
        q(f"v_lshlrev_b32 v{tmp}, 15, v{tmp}")
        q(f"v_or_b32 v{tmp}, {fbits(0.5) >> 16}, v{tmp}")
        q(f"v_cndmask_b32 v{dst+Dt*32+31}, v{dst+Dt*32+31}, v{tmp}, s[60:61]")
        if Dt == 0:
            q(f"v_add_u32 v{d_}, 32, v{d_}")
    return q.items


def phase3(cx, p, pre_left, dv):
    G = cx.role == 'G'
    SL = P3_SLOT[cx.role]
    XRR, TAD, DV3, EW, ER = 240, 250, 12, 96, 104
    CF, AS, AG, WF3, SV = 16, 112, 176, 80, 16
    SC = 2.0 ** -19

    PRE = A_PRE if G else 128

    def hreg(step, rg):
        r = A_H + (step % 16)*8 + rg*4
        return r if G or r >= 192 else r - 64
    q = Prog()
    if dv != DV3:
        for k in range(4):
            q(f"v_mov_b32 v{DV3+k}, v{dv+k}")
    q("v_and_b32 v248, 31, v1")
    q("v_and_b32 v10, 15, v1")
    q("v_min_u32 v10, 13, v10")
    q("v_cmp_lt_u32 vcc, 6, v10")
    q("v_subrev_u32 v3, 7, v10")
    q(f"s_lshr_b32 s58, s{S_G0}, 2")
    q("v_cndmask_b32 v10, v10, v3, vcc")
    q("v_cndmask_b32 v3, 0, 4, vcc")
    q("v_lshl_add_u32 v10, v10, 5, v3")
    q("s_and_b32 s59, s58, 3")
    q("s_lshl_b32 s59, s59, 3")
    q("s_lshr_b32 s58, s58, 2")
    q("s_add_u32 s58, s58, s59")
    q("v_add_lshl_u32 v10, v10, s58, 7")
    iss, chk = cx.await_flags(3, 10, 2)
    iss2, chk2 = cx.await_flags(4, 9, 2)
    if not G:
        q.add(iss)
    q("v_lshrrev_b32 v249, 5, v1")
    q("v_add_u32 v9, 224, v248")
    q("v_lshlrev_b32 v9, 7, v9")
    q.add(tr_addr(TAD, TAD + 1, 96))
    for k in range(2):
        q(f"v_add_u32 v{TAD+2+k}, 0x10000, v{TAD+k}")
        q(f"v_add_u32 v{TAD+4+k}, 0x20000, v{TAD+k}")

    def wreads(step, dst):
        q = Prog()
        q.wait_vm(('D', step))
        off = SL[(step >> 1) % 10] + (step & 1) * 2048
        for Dt in range(2):
            ad = TAD + Dt + 2 * (off >> 16)
            q(f"ds_read_b64_tr_b16 {dst(Dt*4,2)}, v{ad} offset:{off & 0xffff}")
            q(f"ds_read_b64_tr_b16 {dst(Dt*4+2,2)}, v{ad} offset:{(off & 0xffff)+512}")
        return q.items
    NPRE = 8
    for step in range(NPRE if G else 0):
        q.add(wreads(step, lambda o, n: a(A_PRE + step*8 + o, n)))
    q("v_lshrrev_b32 v6, 3, v0")
    q("v_and_b32 v7, 7, v0")
    q("v_lshlrev_b32 v8, 16, v6")
    q("v_lshl_add_u32 v8, v7, 4, v8")
    q(f"s_lshl_b32 s54, s{S_G0}, 10")
    q(f"s_lshl_b32 s56, s{S_DB}, 7")
    q("s_add_u32 s54, s54, s56")
    xl = [[I(f"buffer_load_dwordx4 {v(XRR,4)}, v8, {R(R_XX)}, s54 offen"),
           I(f"buffer_load_dwordx4 {v(XRR+4,4)}, v8, {R(R_XX)}, s54 offen offset:1024")]]
    q(f"v_add_u32 v11, {112*1024}, v2")
    q(f"s_mul_i32 s56, s{S_G0}, 112")
    q(f"s_mul_i32 s57, s{S_W}, 28")
    q("s_add_u32 s56, s56, s57")
    q("s_lshl_b32 s56, s56, 10")
    q(f"s_add_u32 s56, s56, {H_OFF}")
    q(f"s_lshl_b32 s57, s{S_G0}, 15")
    q(f"s_lshl_b32 s58, s{S_W}, 13")
    q("s_add_u32 s57, s57, s58")
    q(f"s_add_u32 s57, s57, {V_OFF}")
    fix = lambda U: [[I(x.text.replace(f"dwordx4 v{dv+k}, ", f"dwordx4 v{DV3+k}, "), x.tag) for x in u]
                     for u in U for k in [int(u[-1].text.split('offset:')[1].split()[0]) // 1024]]
    mer, left = spread(q.items, fix(pre_left) if G else [], 64, phase=24)
    p.add(mer)
    q = Prog()
    if G:
        q.touch(a(A_PRE, 64))
        for pair in range(10, 14):
            left += wd_units(cx.role, pair, DV3)
        left[len(left) - OPT.get('g_poll', 8):len(left) - OPT.get('g_poll', 8)] = [iss]
    q("v_bfe_u32 v110, v1, 1, 2")
    q("v_and_b32 v111, 1, v1")
    q("v_lshl_or_b32 v110, v111, 2, v110")
    q("v_xor_b32 v110, v110, v249")
    q("v_lshl_add_u32 v111, v248, 7, s53")
    for rq in range(4):
        q(f"v_xor_b32 v{EW+rq}, {2*rq}, v110")
        q(f"v_lshl_add_u32 v{EW+rq}, v{EW+rq}, 4, v111")
        q(f"v_add_u32 v{EW+4+rq}, {X_G[cx.role]}, v{EW+rq}")
        q(f"v_add_u32 v{EW+rq}, {X_S[cx.role]}, v{EW+rq}")
    q("v_bfe_u32 v110, v6, 1, 2")
    q("v_and_b32 v111, 1, v6")
    q("v_lshl_or_b32 v110, v111, 2, v110")
    q("v_lshrrev_b32 v111, 2, v7")
    q("v_lshlrev_b32 v111, 14, v111")
    q("v_lshl_add_u32 v111, v6, 7, v111")
    q("v_and_b32 v109, 3, v7")
    for b in range(2):
        q(f"v_lshl_add_u32 v108, v109, 1, {b}")
        q("v_xor_b32 v108, v108, v110")
        q(f"v_lshl_add_u32 v{ER+b}, v108, 4, v111")
        q(f"v_add_u32 v{ER+2+b}, {X_G[cx.role]}, v{ER+b}")
        q(f"v_add_u32 v{ER+b}, {X_S[cx.role]}, v{ER+b}")
    mer, left = spread(q.items, left + xl, 64, phase=8)
    p.add(mer)
    for u in left:
        p.add(u)
    if not G:
        p.add(cx.pub)
        for pair in range(9, 9 + OPT.get('f_post', 2)):
            for u in wd_units(cx.role, pair, DV3):
                p.add(u)
    probe(p, 7)
    p.add(chk)
    probe(p, 8)
    VS = OPT['v_s']

    def tuse(step):
        return 4 * step + (32 if step > VS else 0)
    units = []
    for step in range(28):
        for rg in range(2):
            q = Prog()
            if rg == 0:
                q(f"s_add_u32 s59, s56, {step*1024}")
            q(f"buffer_load_dwordx4 {a(hreg(step, rg),4)}, v{2 if rg == 0 else 11}, {R(R_WS)}, s59 offen {OPT['ld3']}")
            units.append((tuse(step), step - 15, q.items))
    for t in range(8):
        for rg in range(2):
            q = Prog()
            if t == 0 and rg == 0:
                q.add(chk2)
            q(f"s_add_u32 s58, s57, {rg*32768 + t*1024}")
            q(f"buffer_load_dwordx4 {a(A_V + t*8 + rg*4, 4)}, v2, {R(R_WS)}, s58 offen {OPT['ld3']}")
            units.append((4 * (VS + 1) + 4 * t, -1, q.items))
    units.append((4 * (VS + 1) - OPT.get('v_poll', 40), -1, iss2))
    if not G:
        done = {x.tag[1] // 2 for x in p.items if isinstance(x, I) and isinstance(x.tag, tuple) and x.tag[0] == 'D'}
        for pair in range(14):
            if pair not in done:
                units += [(tuse(2*pair - 1) - 4, -1, u) for u in wd_units(cx.role, pair, DV3)]
    units.sort(key=lambda u: u[0])

    def xwrite(accb, ew):
        return [I(f"ds_write_b128 v{ew+rq}, {v(accb + t*16 + 4*rq, 4)} offset:{t*16384}") for t in range(4) for rq in range(4)]

    def xread(er, T, packed):
        q = Prog()
        for w in range(4):
            for rg in range(2):
                for b in range(2):
                    q(f"ds_read_b128 {v(T + w*16 + rg*8 + b*4, 4)}, v{er+b} offset:{rg*32768 + w*4096}")
        s_ = Prog()
        for d_, s0 in ((0, 16), (32, 48), (0, 32)):
            for k in range(0, 16, 2 if packed else 1):
                if packed:
                    s_(f"v_pk_add_f32 {v(T+d_+k,2)}, {v(T+d_+k,2)}, {v(T+s0+k,2)}")
                else:
                    s_(f"v_add_f32 v{T+d_+k}, v{T+d_+k}, v{T+s0+k}")
        return q.items, s_.items

    def pop(step):
        k = next((i for i, u in enumerate(units) if u[1] <= step), None)
        if k is not None:
            p.add(units.pop(k)[2])

    def wsrc(step, Dt):
        return a(PRE + step*8 + Dt*4, 4) if step < NPRE else v(WF3 + (step & 1)*8 + Dt*4, 4)

    def wrd(step):
        return wreads(step, lambda o, n: v(WF3 + (step & 1)*8 + o, n)) if NPRE <= step < 28 else []
    for _ in range(OPT['p3_n0']):
        pop(-1)
    cg = cgen(CF, AS, AS + 16, False)
    k0 = OPT.get('cg_pre', 120)
    p.add(cg[:k0])
    probe(p, 0, 6)
    p.add(wrd(0))
    fill = cg[k0:]
    nm = [0]

    def gapwork(step):
        nm[0] += 1
        cost = 0
        if nm[0] % OPT['p3_per'] == 0 or (units and units[0][0] <= nm[0] + OPT.get('p3_lead', 32)):
            pop(step)
            cost = 16
        while units and units[0][0] <= nm[0] + 8 and units[0][1] <= step:
            pop(step)
        assert not units or units[0][0] > nm[0] + 4, (step, nm, units[0][:2])
        while fill and (cost + fill[0].cost <= 20 or cost == 0):
            it = fill.pop(0)
            cost += it.cost
            p.add([it])
    for step in range(28):
        rd = wrd(step + 1)
        for k in range(4):
            rg, Dt = k >> 1, k & 1
            d = AG + k*16
            p(f"v_mfma_f32_32x32x16_bf16 {v(d,16)}, {wsrc(step, Dt)}, {a(hreg(step,rg),4)}, {'0' if step == 0 else v(d,16)}")
            if k == 0:
                p.add(rd)
            else:
                gapwork(step)
            if k == 0:
                nm[0] += 1
        if step % 3 == 2:
            probe(p, 1 + step // 3, 6)
        if step == VS:
            p.add(fill)
            fill = []
            for t in range(8):
                for k in range(4):
                    rg, Dt = k >> 1, k & 1
                    d = AS + k*16
                    cf = v(CF+Dt*32+4*t, 4)
                    p(f"v_mfma_f32_32x32x16_bf16 {v(d,16)}, {cf}, {a(A_V+t*8+rg*4,4)}, {'0' if t == 0 else v(d,16)}")
                    gapwork(step)
            fill = xwrite(AS, EW)
    while units:
        pop(99)
    p.add(fill)
    probe(p, 10)
    probe(p, 10, 6)
    GT = 112
    un = Prog()
    un(f"v_mov_b32 v248, {hexf(-math.log2(math.e))}")
    un(f"v_mov_b32 v249, {hexf(SC)}")
    for k in range(8):
        un(f"v_lshlrev_b32 v{XUF+2*k}, 16, v{XRR+k}")
        un(f"v_and_b32 v{XUF+2*k+1}, 0xffff0000, v{XRR+k}")
    for k, w_ in enumerate(xwrite(AG, EW + 4)):
        p.add([w_] + un.items[k*18//16:(k+1)*18//16])
    p.wait_lgkm()
    p("s_barrier")
    probe(p, 9)
    rd, sm = xread(ER + 2, GT, True)
    rd2, sm2 = xread(ER, SV, True)
    p.add(rd + rd2[:6] + sm[:8] + rd2[6:] + sm[8:])
    Z = 176
    for k in range(0, 16, 2):
        p(f"v_pk_mul_f32 {v(Z+k,2)}, {v(GT+k,2)}, v[248:249] op_sel_hi:[1,0]")
    for k in range(16):
        p(f"v_exp_f32 v{Z+k}, v{Z+k}")
    p.add(sm2)
    for k in range(0, 16, 2):
        p(f"v_pk_mul_f32 {v(GT+k,2)}, {v(GT+k,2)}, v[248:249] op_sel:[0,1] op_sel_hi:[1,1]")
    for k in range(0, 16, 2):
        p(f"v_pk_mul_f32 {v(GT+k,2)}, {v(GT+k,2)}, {v(SV+k,2)}")
    for k in range(0, 16, 2):
        p(f"v_pk_add_f32 {v(Z+k,2)}, {v(Z+k,2)}, 1.0 op_sel_hi:[1,0]")
    for k in range(16):
        p(f"v_rcp_f32 v{Z+k}, v{Z+k}")
        if k % 8 == 7:
            for m in range(k - 7, k + 1, 2):
                p(f"v_pk_fma_f32 {v(Z+m,2)}, {v(GT+m,2)}, {v(Z+m,2)}, {v(XUF+m,2)}")
            for m in range(k - 7, k + 1, 2):
                p(f"v_cvt_pk_bf16_f32 v{192+m//2}, v{Z+m}, v{Z+m+1}")
            p(f"buffer_store_dwordx4 {v(192 + (k >> 3)*4,4)}, v8, {R(R_OUT)}, s54 offen offset:{(k >> 3)*1024}")


XUF = 80


def program(role):
    cx = Ctx(role)
    p = Prog()
    la, a0, a1, m1, a2, a3, TA = phase1(cx, p)
    if role == 'G':
        left = gemm_phase(cx, p, la, a0, a1, m1, a2, a3, TA)
    else:
        left = fft_phase(cx, p, la, a0, a1, m1, a2, a3)
    phase3(cx, p, left, P3_DV if role == 'G' else 252)
    stamp_end(p, 8)
    p("s_endpgm")
    return finalize(p.items) + cx.tail


HEADER = """; Kernarg layout (80 bytes, ptrs only, base s[0:1]): A_x 0, A_w_r 8, A_w_i 16, B_x 24, w_gate 32, w_up 40,
; One launch, 256 resident workgroups.  Phase 1: row statistics, row DFT, first column-FFT stage, filter re-layout.
; Phase 2: gate/up GEMM + GELU (224 workgroups) or column FFT * filter * inverse FFT (32 workgroups).
; Phase 3: down GEMM + inverse row DFT + silu / combine.   Generated by tools/genf.py
"""


def build():
    out = [HEADER.rstrip()]
    out.append("; @launch grid=(256,1,1) block=(256,1,1) lds=163840")
    out.append('.amdgcn_target "amdgcn-amd-amdhsa--gfx950"')
    out.append(".text")
    out.append(f".globl {NAME}\n.p2align 8\n.type {NAME},@function\n{NAME}:")
    p = Prog()
    p("s_cmp_ge_u32 s2, 256")
    p("s_cbranch_scc1 K_END")
    p("s_load_dwordx2 s[4:5], s[0:1], 0")
    p("s_load_dwordx4 s[8:11], s[0:1], 8")
    p("s_load_dwordx2 s[12:13], s[0:1], 32")
    p("s_load_dwordx2 s[58:59], s[0:1], 40")
    p("s_load_dwordx2 s[14:15], s[0:1], 64")
    p("s_load_dwordx2 s[6:7], s[0:1], 72")
    stamp_begin(p)
    p(f"s_and_b32 s{S_X}, s2, 7")
    p(f"s_lshr_b32 s{S_IDX}, s2, 3")
    p("v_lshrrev_b32 v1, 6, v0")
    p(f"v_readfirstlane_b32 s{S_W}, v1")
    p(f"s_cmp_ge_u32 s{S_IDX}, 28")
    p("s_cbranch_scc0 ROLE_G")
    p("s_branch ROLE_F")
    p("K_END:")
    p("s_endpgm")
    out += finalize(p.items)
    pend = Prog()
    for role in ('G', 'F'):
        out.append(f"ROLE_{role}:")
        out.append("    s_nop 4")
        lines = program(role)
        out += lines
    blob = fft_tables()
    assert len(blob) == TBL_BYTES
    out.append(".p2align 8\n.type FFT_TBL,@object\nFFT_TBL:")
    w = np.frombuffer(blob, dtype=np.uint32)
    for i in range(0, len(w), 8):
        out.append(".long " + ",".join(f"0x{x:x}" for x in w[i:i+8]))
    out.append(f".size FFT_TBL, {TBL_BYTES}")
    out.append("CODE_END:")
    out.append('.section .rodata,"a"')
    out.append(f""".p2align 6
.amdhsa_kernel {NAME}
  .amdhsa_next_free_vgpr 512
  .amdhsa_next_free_sgpr 102
  .amdhsa_accum_offset 256
  .amdhsa_group_segment_fixed_size 0
  .amdhsa_kernarg_size 80
  .amdhsa_user_sgpr_count 2
  .amdhsa_user_sgpr_kernarg_segment_ptr 1
  .amdhsa_system_sgpr_workgroup_id_x 1
.end_amdhsa_kernel""")
    return "\n".join(out) + "\n"


if __name__ == "__main__":
    path = sys.argv[1]
    for kv in sys.argv[2:]:
        k, val = kv.split("=", 1)
        OPT[k] = eval(val)
    open(path, "w").write(build())
```

```python
import sys, math, struct
import numpy as np
sys.path.insert(0, 'tools')
from emit import *

NAME = "recurrent_scan__spectral_gfnet__glu_gated_geglu__prompt_kernel"
FL_OFF = 0x000000
CS_OFF = 0x010000
Y1_OFF = 0x200000
WT_OFF = 0x400000
H_OFF = 0x600000
V_OFF = 0xD00000
ST_OFF = 0x1000000
PR_OFF = ST_OFF + 0x40000
WS_USED = 0x1100000
NPROBE = 12

OPT = dict(stamps=False, gap_budget=20, spin_limit=1 << 16, poll_cs=92, cs_wait=22, pub1_gap=16, nonce_at=1, codepf=True, wpf=3, x_burst=8, pub2_gap=24, w_wait=30, rot=False, acq=False, ld3='sc1', ldf='sc1', v_s=17, serial_y=True, p3_n0=14, p3_per=2)

C1 = -2.0 * math.log2(math.e) * math.sqrt(2.0 / math.pi)
C2 = C1 * 0.044715
MISC = 9 * 16384
CSX = MISC
M_YX, M_ST = MISC, 7 * 16384
TBL_BYTES = 48 * 1024
L_T2, L_Y, L_WT = 0, 16*1024, 80*1024
L_F32, L_F64 = L_WT, L_WT + 8*1024
RING = 12
L_SX = 4 * RING * 2048

S_X, S_IDX, S_W, S_G, S_NT, S_MT, S_NONCE = 16, 17, 18, 19, 20, 21, 22
R_WS, R_WG, R_WU, R_XX, R_WR, R_WI, R_DBG = 24, 28, 32, 36, 40, 44, 48


def fbits(x):
    return struct.unpack('<I', struct.pack('<f', x))[0]


def hexf(x):
    return f"0x{fbits(x):08x}"


def srd(p, d, base, nbytes):
    p(f"s_mov_b32 s{d}, s{base}")
    p(f"s_mov_b32 s{d+1}, s{base+1}")
    p(f"s_mov_b32 s{d+2}, {nbytes}")
    p(f"s_mov_b32 s{d+3}, 0x00020000")


def R(n):
    return f"s[{n}:{n+3}]"


def probe(p, i, pset=0):
    if OPT['stamps'] and OPT.get('pset', 0) == pset:
        p(f"s_memtime s[{64+2*i}:{65+2*i}]")


def stamp_begin(p):
    if OPT['stamps']:
        p("s_memrealtime s[90:91]")
        for i in range(NPROBE):
            p(f"s_mov_b32 s{64+2*i}, 0")
        p("s_memtime s[88:89]")


def stamp_end(p, vtmp):
    if OPT['stamps']:
        p.wait_all_vm()
        p("s_memrealtime s[92:93]")
        p("s_memtime s[86:87]")
        p.wait_lgkm()
        p(f"v_mov_b32 v{vtmp}, s90")
        p(f"v_mov_b32 v{vtmp+1}, s92")
        p(f"v_lshrrev_b32 v{vtmp+2}, 6, v0")
        p(f"v_lshlrev_b32 v{vtmp+2}, 3, v{vtmp+2}")
        p(f"s_lshl_b32 s94, s2, 6")
        p(f"s_add_u32 s94, s94, {ST_OFF}")
        p(f"v_and_b32 v{vtmp+3}, 63, v0")
        p(f"v_cmp_eq_u32 vcc, 0, v{vtmp+3}")
        p("s_and_saveexec_b64 s[96:97], vcc")
        p(f"buffer_store_dwordx2 v[{vtmp}:{vtmp+1}], v{vtmp+2}, {R(R_WS)}, s94 offen")
        p(f"v_lshlrev_b32 v{vtmp+2}, 3, v{vtmp+2}")
        p(f"s_lshl_b32 s94, s2, 9")
        p(f"s_add_u32 s94, s94, {PR_OFF}")
        for i in range(NPROBE):
            p(f"s_sub_u32 s95, s{64+2*i}, s88")
            p(f"v_mov_b32 v{vtmp}, s95")
            p(f"buffer_store_dword v{vtmp}, v{vtmp+2}, {R(R_WS)}, s94 offen offset:{4*i}")
        p("s_mov_b64 exec, s[96:97]")


class Ctx:
    def __init__(self, role):
        self.role = role
        self.tail = []
        self.n = 0

    def await_flags(self, vflag, vaddr, delta, srdn=R_WS, soff=None, nonce=False):
        self.n += 1
        lab = f"{self.role}_AW{self.n}"
        so = "0" if soff is None else f"s{soff}"
        ld = f"buffer_load_dword v{vflag}, v{vaddr}, {R(srdn)}, {so} offen sc1"
        a_ = Prog()
        a_(ld)
        c = Prog()

        def cmp_(q):
            if nonce:
                q(f"v_cmp_eq_u32 vcc, 0, v{vflag}")
            else:
                q(f"v_subrev_u32 v{vflag}, s{S_NONCE}, v{vflag}")
                if delta:
                    q(f"v_subrev_u32 v{vflag}, {delta}, v{vflag}")
                q(f"v_cmp_lt_u32 vcc, {2 - delta}, v{vflag}")
        cmp_(c)
        c("s_nop 1")
        c(f"s_cbranch_vccnz {lab}_SPIN")
        c(f"{lab}_OK:")
        if nonce:
            c(f"v_readfirstlane_b32 s{S_NONCE}, v{vflag}")
        elif OPT['acq']:
            c("buffer_inv sc1")
        t = Prog()
        t(f"s_mov_b32 s101, {OPT['spin_limit']}")
        t(f"{lab}_L:")
        t(ld)
        t("s_sub_u32 s101, s101, 1")
        t("s_waitcnt vmcnt(0)")
        cmp_(t)
        t("s_cmp_eq_u32 s101, 0")
        t(f"s_cbranch_scc1 {lab}_OK")
        t("s_nop 1")
        t(f"s_cbranch_vccnz {lab}_L")
        t(f"s_branch {lab}_OK")
        self.tail += [f"{lab}_SPIN:"] + finalize(t.items)
        return a_.items, c.items

    def set_flag(self, delta, vt):
        q = Prog()
        q(f"s_add_u32 s100, s{S_NONCE}, {delta}")
        q(f"v_mov_b32 v{vt}, s100")
        q(f"s_cmp_eq_u32 s{S_W}, 0")
        q(f"s_cselect_b32 s100, 0, 0x7ffffff0")
        q(f"v_mov_b32 v{vt+1}, s100")
        q(f"s_lshl_b32 s100, s2, 7")
        q("s_mov_b64 exec, 1")
        q(f"buffer_store_dword v{vt}, v{vt+1}, {R(R_WS)}, s100 offen sc1")
        q("s_mov_b64 exec, -1")
        return q.items


V_C, V_RS = 4, 6
AD, VM, VH, DV, XV, XR, XP = 8, 14, 15, 16, 20, 24, 32
WF = 20
ST4, WTL, CSL, DD, XT, MM, FF = 44, 48, 64, 80, 96, 112, 128
STA, ONE, SGN, RDA, TMP = 192, 208, 210, 211, 212
VWT = 3
S_ROT = 3
WX = 7 * 16384


def slot(idx):
    return (idx % 9) * 16384


def kblock(q, st, mul, base, extra=0):
    if not OPT['rot']:
        q(f"s_add_u32 s55, s{base}, {st*mul + extra}")
        return
    q(f"s_add_u32 s55, s{S_ROT}, {st}")
    q("s_and_b32 s55, s55, 7")
    q(f"s_mul_i32 s55, s55, {mul}")
    q(f"s_add_u32 s55, s55, s{base}")
    if extra:
        q(f"s_add_u32 s55, s55, {extra}")


def w_dma(chunk, ks):
    U = []
    for k in range(4):
        q = Prog()
        if k == 0:
            q(f"s_add_u32 m0, s53, {slot(8 + chunk*8 + ks)}")
            kblock(q, ks, 64*3584, 52, chunk*128)
        q(f"buffer_load_dwordx4 v{DV+k}, {R(R_WG if k < 2 else R_WU)}, s55 offen offset:{k*1024} lds", tag=('W', chunk, ks))
        U.append(q.items)
    return U


def phase1(cx, p):
    gemm = cx.role == 'G'
    t0, t1, t2, t3, t4, t5, t6, t7 = range(XT, XT + 8)
    p(f"s_and_b32 s{S_MT}, s{S_X}, 3")
    p(f"s_lshl_b32 s{S_MT}, s{S_MT}, 2")
    p(f"s_and_b32 s52, s{S_IDX}, 3")
    p(f"s_add_u32 s{S_MT}, s{S_MT}, s52")
    p(f"s_lshr_b32 s53, s{S_IDX}, 2")
    if OPT['rot']:
        p("s_lshl_b32 s52, s52, 1")
        p(f"s_add_u32 s{S_ROT}, s52, s53")
        p(f"s_and_b32 s{S_ROT}, s{S_ROT}, 7")
    p(f"s_lshr_b32 s{S_NT}, s{S_X}, 2")
    if gemm:
        p(f"s_mul_i32 s{S_NT}, s{S_NT}, 7")
        p(f"s_add_u32 s{S_NT}, s{S_NT}, s53")
    else:
        p(f"s_add_u32 s{S_NT}, s{S_NT}, 14")
    p(f"s_lshl_b32 s{S_G}, s{S_MT}, 2")
    p(f"s_add_u32 s{S_G}, s{S_G}, s{S_W}")
    p("v_and_b32 v1, 63, v0")
    p("v_lshlrev_b32 v2, 4, v1")
    p(f"v_lshrrev_b32 v{t0}, 3, v1")
    p(f"v_and_b32 v{t1}, 7, v1")
    p(f"v_lshrrev_b32 v{t2}, 4, v1")
    p(f"v_xor_b32 v{t1}, v{t1}, v{t2}")
    p(f"v_lshlrev_b32 v{t3}, 16, v{t0}")
    p(f"v_lshl_add_u32 v{XV}, v{t1}, 4, v{t3}")
    p(f"v_xor_b32 v{t1}, 4, v{t1}")
    p(f"v_lshl_add_u32 v{XV+1}, v{t1}, 4, v{t3}")
    p(f"v_add_u32 v{XV+1}, {8*65536-1024}, v{XV+1}")
    p(f"v_add_u32 v{XV+2}, {16*65536-2048}, v{XV}")
    p(f"v_add_u32 v{XV+3}, {16*65536-2048}, v{XV+1}")
    p(f"s_lshl_b32 s53, s{S_W}, 12")
    p(f"s_lshl_b32 s54, s{S_G}, 10")
    p("s_waitcnt lgkmcnt(0)")
    srd(p, R_XX, 4, 2097152)
    srd(p, R_WS, 6, WS_USED)
    srd(p, R_DBG, 14, 256)
    p("s_load_dwordx4 s[4:7], s[0:1], 48")
    lab = cx.role + "_NONCE"
    if not gemm:
        p("s_lshl_b32 s57, s2, 2")
        p("s_add_u32 s57, s57, s18")
        p("s_cmp_lg_u32 s57, 896")
        p(f"s_cbranch_scc1 {lab}_A")
        t = Prog()
        t(f"v_lshlrev_b32 v{t4}, 7, v1")
        for k in range(4):
            t(f"s_mov_b32 s56, {FL_OFF + k*8192}")
            t(f"buffer_load_dword v{TMP+k}, v{t4}, {R(R_WS)}, s56 offen sc1")
        for l in finalize(t.items):
            p.items.append(Marker('raw', l))
        p(f"{lab}_A:")
    units = []
    for ks in range(8):
        for z in range(4):
            q = Prog()
            if z == 0:
                q(f"s_add_u32 m0, s53, {slot(ks)}")
                kblock(q, ks, 128, 54)
            q(f"buffer_load_dwordx4 v{XV+z}, {R(R_XX)}, s55 offen offset:{z*1024} lds", tag=('X', ks))
            units.append(q.items)
    for u in units[:OPT['x_burst']]:
        p.add(u)
    units = units[OPT['x_burst']:]
    probe(p, 0)
    S0, S1 = DD, DD + 8
    fgen = Prog()
    fgen(f"v_and_b32 v{VM}, 31, v1")
    fgen(f"v_lshrrev_b32 v{VH}, 5, v1")
    fgen(f"v_and_b32 v{t2}, 1, v1")
    fgen(f"v_lshrrev_b32 v{t3}, 1, v{VM}")
    fgen(f"s_lshl_b32 s62, s{S_NT}, 4")
    fgen(f"v_add3_u32 v{t3}, s62, v{t3}, 1")
    fgen(f"v_lshlrev_b32 v{SGN}, 31, v{t3}")
    fgen(f"v_or_b32 v{SGN}, 1.0, v{SGN}")
    fgen(f"v_cvt_f32_u32 v{t5}, v{t2}")
    fgen(f"v_cvt_f32_u32 v{t3}, v{t3}")
    fgen(f"v_mul_f32 v{t3}, {hexf(1/512)}, v{t3}")
    fgen(f"v_mul_f32 v{t5}, {hexf(-0.25)}, v{t5}")
    fgen(f"v_add_f32 v{t5}, {hexf(0.25)}, v{t5}")
    if OPT['rot']:
        fgen(f"s_add_u32 s62, s{S_ROT}, s{S_W}")
        fgen("s_lshl_b32 s62, s62, 6")
    else:
        fgen(f"s_lshl_b32 s62, s{S_W}, 6")
    fgen(f"v_lshl_add_u32 v{t4}, v{VH}, 3, s62")
    fgen(f"v_cvt_f32_u32 v{t4}, v{t4}")
    fgen(f"v_fma_f32 v{S0}, -v{t4}, v{t3}, v{t5}")
    fgen(f"v_mul_f32 v{t4}, {hexf(16.0)}, v{t3}")
    fgen(f"v_sub_f32 v{t5}, {hexf(0.25)}, v{t4}")
    fgen(f"v_sin_f32 v{t5}, v{t5}")
    for i in range(1, 8):
        fgen(f"v_sub_f32 v{S0+i}, v{S0+i-1}, v{t3}")
    for i in range(8):
        fgen(f"v_sub_f32 v{S1+i}, v{S0+i}, v{t4}")
    fgen(f"v_add_f32 v{t5}, v{t5}, v{t5}")
    for i in range(16):
        fgen(f"v_sin_f32 v{S0+i}, v{S0+i}")
    fgen(f"v_add_u32 v{t6}, s53, v2")
    fgen(f"v_add_u32 v{t6}, {MISC}, v{t6}")
    for t in range(4):
        cur = S0 if t % 2 == 0 else S1
        oth = S1 if t % 2 == 0 else S0
        if t >= 2:
            for i in range(0, 8, 2):
                fgen(f"v_pk_fma_f32 {v(cur+i,2)}, {v(t5-1,2)}, {v(oth+i,2)}, {v(cur+i,2)} op_sel:[1,0,0] op_sel_hi:[1,1,1] neg_lo:[0,0,1] neg_hi:[0,0,1]")
        for i in range(4):
            fgen(f"v_cvt_pk_bf16_f32 v{FF+4*t+i}, v{cur+2*i}, v{cur+2*i+1}")
        fgen(f"ds_write_b128 v{t6}, {v(FF+4*t,4)} offset:{t*1024}")
    svc = Prog()
    svc(f"v_bfe_u32 v{t3}, v1, 1, 3")
    svc(f"v_xor_b32 v{t3}, v{t3}, v{VH}")
    svc(f"v_lshl_add_u32 v{t4}, v{VM}, 7, s53")
    for tp in range(4):
        svc(f"v_xor_b32 v{t5}, {2*tp}, v{t3}")
        svc(f"v_lshl_add_u32 v{XR+tp}, v{t5}, 4, v{t4}")
        svc(f"v_add_u32 v{XR+4+tp}, 0x10000, v{XR+tp}")
        if gemm:
            svc(f"v_xor_b32 v{XP+tp}, 0x1000, v{XR+tp}")
            svc(f"v_xor_b32 v{XP+4+tp}, 0x1000, v{XR+4+tp}")
    svc(f"v_mov_b32 v{ONE}, 0x3f803f80")
    svc(f"v_mov_b32 v{ONE+1}, 0x3f803f80")
    svc(f"v_add_u32 v{t6}, {MISC}, v2")
    u0, u2 = TMP + 18, 41
    small = []
    if gemm:
        srd(svc, R_WG, 12, 512*1792*2)
        svc(f"s_sub_u32 s{R_WU}, s58, 2048")
        svc(f"s_subb_u32 s{R_WU+1}, s59, 0")
        svc(f"s_mov_b32 s{R_WU+2}, {512*1792*2 + 2048}")
        svc(f"s_mov_b32 s{R_WU+3}, 0x00020000")
        svc(f"v_and_b32 v{t1}, 7, v1")
        svc(f"v_mul_u32_u24 v{t3}, 3584, v{t0}")
        svc(f"v_and_b32 v{t2}, 2, v{t0}")
        svc(f"v_xor_b32 v{t1}, v{t1}, v{t2}")
        svc(f"v_lshl_add_u32 v{DV}, v{t1}, 4, v{t3}")
        svc(f"v_xor_b32 v{DV+2}, 64, v{DV}")
        svc(f"v_add_u32 v{DV+1}, {8*3584-1024}, v{DV}")
        svc(f"v_add_u32 v{DV+3}, {8*3584-1024}, v{DV+2}")
        svc(f"s_mul_i32 s52, s{S_W}, {16*3584}")
        svc(f"s_lshl_b32 s56, s{S_NT}, 8")
        svc("s_add_u32 s52, s52, s56")
    svc.wait_lgkm()
    svc("s_barrier")
    for t in range(16):
        svc(f"ds_read_b128 {v(FF+4*t,4)}, v{t6} offset:{t*1024}")
    nsetup = len(svc.items)
    P_ = DD
    svc(f"v_bfe_u32 v{t3}, v1, 2, 1")
    svc(f"v_bfe_u32 v{t4}, v1, 3, 2")
    svc(f"v_lshlrev_b32 v{t4}, 2, v{t4}")
    svc(f"v_lshl_add_u32 v{t3}, v{t3}, 4, v{t4}")
    svc(f"v_and_or_b32 v{t3}, v1, 3, v{t3}")
    svc(f"v_cvt_f32_u32 v{t3}, v{t3}")
    svc(f"v_lshl_add_u32 v{t4}, v{VH}, 8, s{S_G}")
    svc(f"v_cvt_f32_u32 v{t4}, v{t4}")
    svc(f"v_mul_f32 v{t4}, {hexf(1/64)}, v{t4}")
    svc(f"v_mul_f32 v{t3}, {hexf(1/32)}, v{t3}")
    svc(f"v_mul_f32 v{P_+1}, v{t4}, v{t3}")
    svc(f"v_mul_f32 v{t5}, {hexf(8.0)}, v{t3}")
    svc(f"v_add_f32 v{P_+3}, v{P_+1}, v{t3}")
    svc(f"v_add_f32 v{P_+9}, v{P_+1}, v{t5}")
    svc(f"v_add_f32 v{P_+11}, v{P_+3}, v{t5}")
    svc(f"v_cos_f32 v{t4}, v{t3}")
    svc(f"v_cos_f32 v{t5}, v{t5}")
    for r in (0, 2, 8, 10):
        svc(f"v_cos_f32 v{P_+r}, v{P_+r+1}")
        svc(f"v_sin_f32 v{P_+r+1}, v{P_+r+1}")
    svc(f"v_pk_add_f32 {v(t4,2)}, {v(t4,2)}, {v(t4,2)}")
    NEG = "neg_lo:[0,0,1] neg_hi:[0,0,1]"
    for r in (4, 12, 6, 14):
        svc(f"v_pk_fma_f32 {v(P_+r,2)}, {v(t4,2)}, {v(P_+r-2,2)}, {v(P_+r-4,2)} op_sel_hi:[0,1,1] {NEG}")
    for t in range(2):
        for cs in range(2):
            for i in range(4):
                svc(f"v_cvt_pk_bf16_f32 v{MM+8*cs+4*t+i}, v{P_+4*i+cs}, v{P_+4*i+2+cs}")
        if t == 0:
            for hh in range(2):
                for r in range(0, 8, 2):
                    svc(f"v_pk_fma_f32 {v(P_+8*hh+r,2)}, {v(t4,2)}, {v(P_+8*(1-hh)+r,2)}, {v(P_+8*hh+r,2)} op_sel:[1,0,0] op_sel_hi:[1,1,1] {NEG}")
    if gemm:
        svc(f"v_bfe_u32 v{t3}, v1, 2, 2")
        svc(f"v_bfe_u32 v{t5}, v1, 4, 1")
        svc(f"v_lshl_add_u32 v{t6+1}, v{VH}, 3, v{t3}")
        svc(f"v_lshlrev_b32 v{t6+1}, 7, v{t6+1}")
        svc(f"v_lshl_add_u32 v{t6+1}, v{t5}, 11, v{t6+1}")
        svc(f"v_and_b32 v{t2}, 1, v1")
        svc(f"v_and_or_b32 v{t2}, v{t3}, 2, v{t2}")
        svc(f"v_lshl_add_u32 v{t2}, v{t5}, 2, v{t2}")
        svc(f"v_lshl_add_u32 v{t6+1}, v{t2}, 4, v{t6+1}")
        svc(f"v_bfe_u32 v{t4}, v1, 1, 1")
        svc(f"v_lshl_add_u32 v{t6+1}, v{t4}, 3, v{t6+1}")
        svc(f"s_bitreverse_b32 s63, s{S_W}" .replace("s_bitreverse_b32", "s_brev_b32"))
        svc("s_lshr_b32 s63, s63, 25")
        svc(f"v_xor_b32 v{AD}, s63, v{t6+1}")
        svc(f"v_xor_b32 v{AD+1}, 32, v{AD}")
        for k in range(2):
            svc(f"v_add_u32 v{AD+2+k}, 0x10000, v{AD+k}")
            svc(f"v_add_u32 v{AD+4+k}, 0x20000, v{AD+k}")
    w0 = Prog()
    w1_, w2_ = TMP + 19, TMP + 20
    srd(w0, R_WR, 8, 2048*257*2)
    srd(w0, R_WI, 10, 2048*257*2)
    w0(f"s_lshr_b32 s61, s{S_IDX}, 4")
    w0("s_lshl_b32 s61, s61, 2")
    w0(f"s_add_u32 s61, s61, s{S_W}")
    w0(f"v_lshrrev_b32 v{w1_}, 4, v1")
    w0(f"v_mul_u32_u24 v{u0}, 514, v{w1_}")
    w0(f"v_and_b32 v{w2_}, 15, v1")
    w0(f"v_lshl_add_u32 v{u0}, v{w2_}, 2, v{u0}")
    w0(f"s_bfe_u32 s60, s{S_IDX}, 0x10003")
    w0(f"s_lshl_b32 s8, s{S_X}, 1")
    w0("s_add_u32 s60, s60, s8")
    w0(f"s_and_b32 s8, s{S_IDX}, 7")
    w0("s_lshl_b32 s60, s60, 3")
    w0("s_add_u32 s8, s8, s60")
    w0("s_lshl_b32 s23, s8, 6")
    w0("s_lshl_b32 s9, s61, 18")
    w0("s_add_u32 s23, s23, s9")
    w0(f"s_add_u32 s23, s23, {WT_OFF}")
    w0("s_mul_i32 s60, s60, 3")
    w0("s_add_u32 s8, s8, s60")
    w0("s_mul_i32 s8, s8, 2056")
    w0("s_lshl_b32 s61, s61, 6")
    w0("s_add_u32 s8, s8, s61")
    svc.add(w0)
    wl = []
    for e in range(4):
        for c in range(2):
            q = Prog()
            if e and c == 0:
                q("s_add_u32 s8, s8, 16448")
            q(f"buffer_load_dword v{WTL+4+c*8+e}, v{u0}, {R(R_WR if c == 0 else R_WI)}, s8 offen offset:2")
            wl.append(q.items)
    w0 = Prog()
    w0(f"s_add_u32 s9, s53, {M_YX}")
    w0(f"v_lshl_add_u32 v{w2_}, v{w2_}, 7, s9")
    w0(f"v_and_b32 v{u0}, 7, v1")
    w0(f"v_xor_b32 v{w1_}, v{w1_}, v{u0}")
    w0(f"v_lshl_add_u32 v{w1_}, v{w1_}, 4, v{w2_}")
    w0(f"v_xor_b32 v{w2_}, 64, v{w1_}")
    w0(f"v_lshrrev_b32 v{VWT}, 2, v1")
    w0(f"v_lshlrev_b32 v{VWT}, 13, v{VWT}")
    w0(f"v_and_b32 v{u0}, 3, v1")
    w0(f"v_lshl_add_u32 v{VWT}, v{u0}, 4, v{VWT}")
    w0("s_mov_b32 s10, 0x05040100")
    w0("s_mov_b32 s11, 0x07060302")
    w0(f"s_add_u32 s9, s23, {16*8192}")
    w1 = Prog()
    for z in range(2):
        for e in range(4):
            w1(f"v_perm_b32 v{WTL+z*8+e}, v{WTL+12+e}, v{WTL+4+e}, s{10+z}")
        w1(f"ds_write_b128 v{w1_+z}, {v(WTL+z*8,4)}")
    w1(f"ds_read_b128 {v(WTL,4)}, v{RDA}")
    w1(f"ds_read_b128 {v(WTL+8,4)}, v{RDA} offset:1024")
    w1.gap(4)
    w1(f"buffer_store_dwordx4 {v(WTL,4)}, v{VWT}, {R(R_WS)}, s23 offen sc1", tag='Wst')
    w1(f"buffer_store_dwordx4 {v(WTL+8,4)}, v{VWT}, {R(R_WS)}, s9 offen sc1", tag='Wst')
    extra = []
    if OPT['codepf']:
        q2 = Prog()
        q2("s_getpc_b64 s[96:97]")
        q2(f"{cx.role}_PC:")
        q2(f"s_sub_u32 s96, s96, {cx.role}_PC-{NAME}")
        q2("s_subb_u32 s97, s97, 0")
        q2(f"s_mov_b32 s98, CODE_END-{NAME}")
        q2("s_mov_b32 s99, 0x00020000")
        q2(f"s_lshl_b32 s100, s{S_IDX}, 12")
        q2(f"v_lshlrev_b32 v{XT+12}, 4, v0")
        q2(f"buffer_load_dwordx4 v[{TMP+12}:{TMP+15}], v{XT+12}, s[96:99], s100 offen")
        extra = [q2.items]
    if OPT['wpf']:
        for k, base in enumerate((12, 58, 4)[:OPT['wpf']] if OPT['wpf'] < 4 else (4,)):
            q2 = Prog()
            if k == 0:
                q2("s_mul_i32 s100, s2, 7168")
                q2("s_add_u32 s101, s100, 4096")
                q2(f"v_lshlrev_b32 v{XT+12}, 4, v0")
            if base == 4:
                q2.touch("s[4:7]")
            srd(q2, 96, base, 512*1792*2)
            q2(f"buffer_load_dwordx4 v[{TMP+12}:{TMP+15}], v{XT+12}, s[96:99], s100 offen")
            extra.append(q2.items)
            extra.append([I(f"buffer_load_dwordx4 v[{TMP+12}:{TMP+15}], v{XT+12}, s[96:99], s101 offen")])
    wun = (w_dma(0, 0) if gemm else [])
    PER = OPT.get('p1_period', 48)
    if OPT.get('tlb'):
        q2 = Prog()
        q2(f"v_lshlrev_b32 v{XT+11}, 18, v1")
        q2(f"buffer_load_dword v{TMP+12}, v{XT+11}, {R(R_WS)}, 0 offen offset:64 sc1")
        q2.touch("s[4:7]")
        srd(q2, 96, 6, 2097152)
        q2(f"v_lshlrev_b32 v{XT+11}, 15, v1")
        q2(f"buffer_load_dword v{TMP+12}, v{XT+11}, s[96:99], 0 offen sc1")
        extra.append(q2.items)
    kx = OPT.get('wpf_pos', 0)
    mer, left = spread(fgen.items + svc.items[:nsetup], units[:kx] + extra + units[kx:], PER)
    p.add(mer)
    NYOUNG = sum(1 for x in p.items if isinstance(x, I) and x.kind == 'vmem')
    if not gemm:
        p("s_cmp_lg_u32 s57, 896")
        p(f"s_cbranch_scc1 {lab}_B")
        t = Prog()
        t(f"s_waitcnt vmcnt({NYOUNG})")
        t("s_mov_b32 s56, -3")
        t(f"{lab}_L:")
        t("s_add_u32 s56, s56, 4")
        for k in range(4):
            t(f"v_subrev_u32 v{TMP+4+k}, s56, v{TMP+k}")
        t(f"v_min_u32 v{TMP+4}, v{TMP+4}, v{TMP+5}")
        t(f"v_min3_u32 v{TMP+4}, v{TMP+4}, v{TMP+6}, v{TMP+7}")
        t(f"v_cmp_ge_u32 vcc, 3, v{TMP+4}")
        t("s_nop 1")
        t(f"s_cbranch_vccnz {lab}_L")
        t(f"v_mov_b32 v{TMP+8}, s56")
        t(f"v_mov_b32 v{TMP+9}, 0")
        t("s_mov_b64 exec, 1")
        t(f"buffer_store_dword v{TMP+8}, v{TMP+9}, {R(R_DBG)}, 0 offen sc1")
        t("s_mov_b64 exec, -1")
        t("s_nop 1")
        for l in finalize(t.items):
            p.items.append(Marker('raw', l))
        p(f"{lab}_B:")
    probe(p, 0, 2)
    mer, left = spread(svc.items[nsetup:], left + small + wun, PER)
    p.add(mer)
    probe(p, 1)
    probe(p, 1, 2)
    units = [(-1, u) for u in left]
    if gemm:
        for ks in range(1, 8):
            units += [(ks - 1, u) for u in w_dma(0, ks)]
            if ks == 2:
                units += [(0, u) for u in wl]
    else:
        k = sum(1 for _, u in units if u[-1].tag and u[-1].tag[0] == 'X')
        units[k:k] = [(-1, u) for u in wl]

    def xreads(ks):
        q = Prog()
        off = slot(ks)
        for tp in range(4):
            q(f"ds_read_b128 {a(ks*16 + 4*tp, 4)}, v{XR + tp + 4*(off >> 16)} offset:{off & 0xffff}")
        if gemm:
            for tp in range(4):
                q(f"ds_read_b128 {a(128 + ks*16 + 4*tp, 4)}, v{XP + tp + 4*(off >> 16)} offset:{off & 0xffff}")
        return q.items
    NF = TMP + 16
    nq = Prog()
    nq(f"v_mov_b32 v{NF+1}, 0")
    iss, chk_nonce = cx.await_flags(NF, NF + 1, 0, srdn=R_DBG, nonce=True)
    nq.add(iss)
    p.wait_vm(('X', 0))
    if gemm:
        p("s_barrier")
    p.add(xreads(0))
    for ks in range(8):
        probe(p, 2 + ks, 2)
        p.touch(a(ks*16, 16))
        if gemm:
            p.touch(a(128 + ks*16, 16))
        rd = []
        if ks + 1 < 8:
            p.wait_vm(('X', ks + 1))
            if gemm:
                p("s_barrier")
            rd = xreads(ks + 1)
        for tp in range(4):
            t = ks*4 + tp
            d = DD + 16 * (t >> 4)
            p(f"v_mfma_f32_32x32x16_bf16 {v(d,16)}, {a(4*t,4)}, {v(FF+4*(t & 15),4)}, {'0' if t % 16 == 0 else v(d,16)}")
            nrd = -(-len(rd) // (4 - tp))
            p.add(rd[:nrd])
            rd = rd[nrd:]
            for _ in range(1):
                if units and units[0][0] <= ks:
                    p.add(units.pop(0)[1])
            for hf in range(2):
                x_ = a(4*t + 2*hf, 2)
                for k, A_ in enumerate((v(ONE, 2), x_)):
                    r = v(STA + 8*k + 4*hf, 4)
                    p(f"v_mfma_f32_4x4x4_16b_bf16 {r}, {A_}, {x_}, {'0' if t == 0 else r}")
        if ks == OPT['nonce_at']:
            p.add(nq)
    probe(p, 2)
    probe(p, 0, 1)
    a0 = Prog()
    TA, TB_, TC = CSL + 4, CSL + 5, CSL + 6
    a1 = Prog()
    a1(f"v_and_b32 v{ST4+1}, 3, v1")
    for k in range(4):
        a1(f"v_add_f32 v{STA+8+k}, v{STA+8+k}, v{STA+12+k}")
    a1(f"v_add_f32 v{ST4}, v{STA}, v{STA+4}")
    for k in range(1, 4):
        a1(f"v_cmp_eq_u32 vcc, {k}, v{ST4+1}")
        a1(f"v_fma_f32 v{DD+k}, v{DD+16+k}, v{SGN}, v{DD+k}")
        a1(f"v_fma_f32 v{DD+4+k}, v{DD+20+k}, v{SGN}, v{DD+4+k}")
        a1(f"v_cndmask_b32 v{STA+8 if k < 3 else ST4+2}, v{STA+8}, v{STA+8+k}, vcc")
    a1(f"v_mov_b32 v{ST4+1}, v{ST4}")
    a1(f"v_mov_b32 v{ST4+3}, v{ST4+2}")
    a1(f"s_add_u32 s60, s53, {M_ST}")
    a1(f"v_lshl_add_u32 v{TA}, v{VM}, 2, s60")
    a1(f"v_permlane32_swap_b32 v{ST4}, v{ST4+1}")
    a1(f"v_permlane32_swap_b32 v{ST4+2}, v{ST4+3}")
    a1(f"v_add_f32 v{ST4}, v{ST4}, v{ST4+1}")
    a1(f"v_add_f32 v{ST4+2}, v{ST4+2}, v{ST4+3}")
    a1(f"v_mul_f32 v{ST4}, {hexf(1/512)}, v{ST4}")
    a1(f"v_mul_f32 v{ST4+2}, {hexf(1/512)}, v{ST4+2}")
    a1(f"v_fma_f32 v{ST4+2}, -v{ST4}, v{ST4}, v{ST4+2}")
    a1(f"v_max_f32 v{ST4+2}, 0, v{ST4+2}")
    a1(f"v_cvt_pk_bf16_f32 v{ST4}, v{ST4}, v{ST4+2}")
    a1(f"v_and_b32 v{ST4+2}, 0xffff0000, v{ST4}")
    a1(f"v_add_f32 v{ST4+2}, {hexf(1e-5)}, v{ST4+2}")
    a1(f"v_cvt_pk_bf16_f32 v{ST4+2}, v{ST4+2}, v{ST4+2}")
    a1(f"v_and_b32 v{ST4+2}, 0xffff0000, v{ST4+2}")
    a1(f"v_sqrt_f32 v{ST4+2}, v{ST4+2}")
    a1(f"v_lshl_add_u32 v{ST4+3}, v{VH}, 4, s60")
    a1(f"v_cvt_pk_bf16_f32 v{ST4+2}, v{ST4+2}, v{ST4+2}")
    a1(f"v_and_b32 v{V_RS+1}, 0xffff0000, v{ST4+2}")
    a1(f"v_rcp_f32 v{V_RS}, v{V_RS+1}")
    a1(f"v_and_b32 v{ST4}, 0xffff, v{ST4}")
    a1(f"v_or_b32 v{ST4}, v{ST4}, v{V_RS+1}")
    a1(f"ds_write2_b32 v{TA}, v{V_RS}, v{ST4} offset0:0 offset1:32")
    for rq in range(4):
        a1(f"ds_read_b128 {v(STA+4*rq,4)}, v{ST4+3} offset:{rq*32}")
    for r in (0, 4, 8, 9, 10, 11, 12, 13, 14, 15):
        a1(f"v_fma_f32 v{DD+r}, v{DD+16+r}, v{SGN}, v{DD+r}")
    a1.gap(1)
    for r in range(16):
        a1(f"v_mul_f32 v{DD+r}, v{DD+r}, v{STA+r}")
    YB = CSL + 8
    for k in range(8):
        a1(f"v_cvt_pk_bf16_f32 v{YB + k}, v{DD+2*k}, v{DD+2*k+1}")
    PP, QQ = DD, XT
    m1 = Prog()
    for t in range(2):
        m1(f"v_mfma_f32_32x32x16_bf16 {v(PP,16)}, {v(MM+4*t,4)}, {v(YB+4*t,4)}, {'0' if t == 0 else v(PP,16)}")
        m1(f"v_mfma_f32_32x32x16_bf16 {v(QQ,16)}, {v(MM+8+4*t,4)}, {v(YB+4*t,4)}, {'0' if t == 0 else v(QQ,16)}")
    a2 = Prog()
    a2(f"s_add_u32 s62, s53, {M_YX}")
    a2(f"v_lshlrev_b32 v{RDA}, 1, v1")
    a2(f"v_and_b32 v{RDA}, 0x70, v{RDA}")
    a2(f"v_xor_b32 v{RDA}, v{RDA}, v2")
    a2(f"v_add_u32 v{RDA}, s62, v{RDA}")
    a2(f"v_lshlrev_b32 v{ST4+2}, 31, v1")
    a2(f"v_or_b32 v{ST4+2}, 1.0, v{ST4+2}")
    a2(f"v_lshlrev_b32 v{TB_}, 6, v{VM}")
    a2(f"v_lshl_add_u32 v{TB_}, v{VH}, 5, v{TB_}")
    a2(f"v_lshlrev_b32 v{TC}, 3, v1")
    a2(f"v_and_b32 v{TC}, 0x70, v{TC}")
    a2(f"v_xor_b32 v{TB_}, v{TB_}, v{TC}")
    a2(f"v_add_u32 v{TB_}, s62, v{TB_}")
    a2(f"v_xor_b32 v{TC}, 16, v{TB_}")
    a2(f"s_lshl_b32 s60, s{S_NT}, 17")
    a2(f"s_lshl_b32 s61, s{S_G}, 7")
    a2("s_add_u32 s60, s60, s61")
    a2(f"s_add_u32 s60, s60, {Y1_OFF}")
    a2("s_add_u32 s61, s60, 65536")
    for r in range(16):
        a2(f"v_fmac_f32_dpp v{PP+r}, v{QQ+r}, v{ST4+2} quad_perm:[1,0,3,2] row_mask:0xf bank_mask:0xf")
        if r % 8 == 7:
            for k in range(r // 2 - 3, r // 2 + 1):
                a2(f"v_cvt_pk_bf16_f32 v{YB+k}, v{PP+2*k}, v{PP+2*k+1}")
            a2(f"ds_write_b128 v{TB_ + (r >> 3)}, {v(YB+(r >> 3)*4,4)} offset:2048")
    a2(f"ds_read_b128 {v(QQ+8,4)}, v{RDA} offset:2048")
    a2(f"ds_read_b128 {v(QQ+12,4)}, v{RDA} offset:3072")
    a2(f"v_lshrrev_b32 v{TC}, 3, v1")
    a2(f"v_lshlrev_b32 v{TC}, 13, v{TC}")
    a2(f"v_and_b32 v{ST4+3}, 7, v1")
    a2(f"v_lshl_add_u32 v{TC}, v{ST4+3}, 4, v{TC}")
    a2.gap(3)
    a2(f"buffer_store_dwordx4 {v(QQ+8,4)}, v{TC}, {R(R_WS)}, s60 offen sc1", tag='P1st')
    a2(f"buffer_store_dwordx4 {v(QQ+12,4)}, v{TC}, {R(R_WS)}, s61 offen sc1", tag='P1st')
    a3 = Prog()
    if OPT.get('log'):
        print("A units left", len(units))
    return [u for _, u in units], [], a1.items + chk_nonce, m1.items, a2.items, w0.items + w1.items, TA


def gemm_phase(cx, p, left_a, a0, a1, m1, a2, a3, TA):
    ACC = 128
    ET = 64
    RB, RA, RSP = 88, 96, 124

    def reads(j):
        chunk, step, tl = j >> 6, (j >> 1) & 31, j & 1
        off = slot(8 + chunk*8 + (step >> 2)) + (step & 3) * 4096
        ad = AD + tl + 2 * (off >> 16)
        off &= 0xffff
        r = WF + (j % 6) * 4
        return [I(f"ds_read_b64_tr_b16 {v(r,2)}, v{ad} offset:{off}"),
                I(f"ds_read_b64_tr_b16 {v(r+2,2)}, v{ad} offset:{off+512}")]

    def epilogue(n, packed):
        q = Prog()
        G, Uu = ACC + 16*n, ACC + 16*n + 8
        Z = ET + (n & 1) * 8
        PK = ET + 16 + (n & 1) * 4
        RS = V_RS if (n & 1) == 0 else RSP
        if not packed:
            for i in range(8):
                q(f"v_mul_f32 v{G+i}, v{G+i}, v{RS}")
            for i in range(8):
                q(f"v_mul_f32 v{Z+i}, v{G+i}, v{G+i}")
            for i in range(8):
                q(f"v_fma_f32 v{Z+i}, v{Z+i}, v{V_C+1}, v{V_C}")
            for i in range(8):
                q(f"v_mul_f32 v{Z+i}, v{Z+i}, v{G+i}")
            for i in range(8):
                q(f"v_exp_f32 v{Z+i}, v{Z+i}")
                q(f"v_mul_f32 v{G+i}, v{G+i}, v{Uu+i}")
            for i in range(8):
                q(f"v_fma_f32 v{Z+i}, v{Z+i}, v{RS+1}, v{RS+1}")
            for i in range(8):
                q(f"v_rcp_f32 v{Z+i}, v{Z+i}")
            for i in range(8):
                q(f"v_mul_f32 v{G+i}, v{G+i}, v{Z+i}")
        else:
            rs = v(RS, 2)
            for i in range(0, 8, 2):
                q(f"v_pk_mul_f32 {v(G+i,2)}, {v(G+i,2)}, {rs} op_sel_hi:[1,0]")
            for i in range(0, 8, 2):
                q(f"v_pk_mul_f32 {v(Z+i,2)}, {v(G+i,2)}, {v(G+i,2)}")
            for i in range(0, 8, 2):
                q(f"v_pk_fma_f32 {v(Z+i,2)}, {v(Z+i,2)}, {v(V_C,2)}, {v(V_C,2)} op_sel:[0,1,0] op_sel_hi:[1,1,0]")
            for i in range(0, 8, 2):
                q(f"v_pk_mul_f32 {v(Z+i,2)}, {v(Z+i,2)}, {v(G+i,2)}")
            for i in range(8):
                q(f"v_exp_f32 v{Z+i}, v{Z+i}")
                if i % 2 == 0:
                    q(f"v_pk_mul_f32 {v(G+i,2)}, {v(G+i,2)}, {v(Uu+i,2)}")
            for i in range(0, 8, 2):
                q(f"v_pk_fma_f32 {v(Z+i,2)}, {v(Z+i,2)}, {rs}, {rs} op_sel:[0,1,1] op_sel_hi:[1,1,1]")
            for i in range(8):
                q(f"v_rcp_f32 v{Z+i}, v{Z+i}")
            for i in range(0, 8, 2):
                q(f"v_pk_mul_f32 {v(G+i,2)}, {v(G+i,2)}, {v(Z+i,2)}")
        for i in range(4):
            q(f"v_cvt_pk_bf16_f32 v{PK+i}, v{G+2*i}, v{G+2*i+1}")
        so = 56 + (n & 1) * 2 + (n >> 2)
        q(f"buffer_store_dwordx4 {v(PK,4)}, v{HV + ((n >> 1) & 1)}, {R(R_WS)}, s{so} offen sc1", tag='Hst')
        return q.items

    GA, ON2, CA, HV, CP = 112, 114, 116, 126, 104
    b0 = Prog()
    b0(f"v_mov_b32 v{ON2}, 0x3f803f80")
    b0(f"v_mov_b32 v{ON2+1}, 0x3f803f80")
    b1 = Prog()
    b1(f"v_xor_b32 v{TA}, 0x1000, v{TA}")
    b1(f"ds_read2_b32 {v(RSP,2)}, v{TA} offset0:0 offset1:32")
    b1("v_cmp_gt_u32 vcc, 32, v1")
    for k in range(2):
        if k:
            b1.gap(3)
        src = ST4 if k == 0 else RSP + 1
        r = RB + 4*k
        b1(f"v_mov_b32 v{r+2}, 0")
        b1(f"v_mov_b32 v{r+3}, 0")
        b1(f"v_and_b32 v{r}, 0xffff, v{src}")
        b1(f"v_xor_b32 v{r}, 0x8000, v{r}")
        b1(f"v_cndmask_b32 v{r+1}, 0, v{r}, vcc")
        b1(f"v_lshl_or_b32 v{r}, v{r+1}, 16, v{r+1}")
    b1(f"v_and_b32 v{RSP+1}, 0xffff0000, v{RSP+1}")
    b1("s_lshl_b32 s60, s63, 5")
    b1(f"v_add_u32 v{HV}, s60, v2")
    b1(f"v_xor_b32 v{HV+1}, 1024, v{HV}")
    b1(f"s_add_u32 s60, s53, {CSX}")
    b1(f"v_lshl_add_u32 v{GA}, v{VM}, 2, s60")
    b1(f"v_xor_b32 v{GA+1}, 0x2000, v{GA}")
    for k in range(2):
        b1(f"v_mov_b32 v{RA+4*k+2}, 0")
        b1(f"v_mov_b32 v{RA+4*k+3}, 0")
    for k in range(2):
        b1(f"s_xor_b32 s{56+2*k}, s{S_G}, {k}")
        b1(f"s_mul_i32 s{56+2*k}, s{56+2*k}, 112")
        b1(f"s_lshl_b32 s{57+2*k}, s{S_NT}, 3")
        b1(f"s_add_u32 s{56+2*k}, s{56+2*k}, s{57+2*k}")
        b1(f"s_lshl_b32 s{56+2*k}, s{56+2*k}, 10")
        b1(f"s_add_u32 s{56+2*k}, s{56+2*k}, {H_OFF}")
        b1(f"s_add_u32 s{57+2*k}, s{56+2*k}, 4096")
    def cs_mfma(j):
        r = WF + (j % 6) * 4
        first = (j & 63) == 0
        return [I(f"v_mfma_f32_4x4x4_16b_bf16 {v(CA+4*hf,4)}, {v(ON2,2)}, {v(r+2*hf,2)}, {'0' if first else v(CA+4*hf,4)}")
                for hf in range(2)]

    def cs_fin(ch):
        q = Prog()
        c = CP + 4*ch
        q(f"v_add_f32 v{c}, v{CA}, v{CA+4}")
        q(f"v_mov_b32 v{c+1}, v{c}")
        q("s_nop 1")
        q(f"v_permlane32_swap_b32 v{c}, v{c+1}")
        q(f"v_add_f32 v{c}, v{c}, v{c+1}")
        q(f"ds_write_b32 v{GA}, v{c} offset:{ch*128}")
        return q.items

    def cs_get(ch):
        q = Prog()
        q(f"ds_read_b32 v{CP+4*ch+2}, v{GA+1} offset:{ch*128}")
        q.gap(3)
        return q.items

    def rank1_prep(k):
        q = Prog()
        r = RA + 4 * (k & 1)
        c = CP + 2*k
        q(f"v_and_b32 v{r}, 0xffff0000, v{c}")
        q(f"v_sub_f32 v{c}, v{c}, v{r}")
        q(f"v_and_b32 v{r+1}, 0xffff0000, v{c}")
        q(f"v_sub_f32 v{c}, v{c}, v{r+1}")
        q(f"v_lshrrev_b32 v{r}, 16, v{r}")
        q(f"v_or_b32 v{r}, v{r}, v{r+1}")
        q(f"v_lshrrev_b32 v{r+1}, 16, v{c}")
        return q.items

    def rank1(n):
        r = RA + 4 * ((n >> 1) & 1)
        return I(f"v_mfma_f32_32x32x16_bf16 {v(ACC+16*n,16)}, {v(r,4)}, {v(RB+4*(n&1),4)}, {v(ACC+16*n,16)}")

    seen = set()
    ev = set()
    lastbar = [-100]
    LAF = 4

    def rd_for(j):
        q = Prog()
        key = (j >> 6, (j >> 3) & 7)
        if key not in seen:
            seen.add(key)
            q.wait_vm(('W',) + key)
            q("s_barrier")
            lastbar[0] = 2 * (j - LAF)
            if 'p3' in ev:
                ev.add('p3ok')
        r = reads(j)
        return q.items + r[:1], r[1:]

    def group(f):
        q = Prog()
        f(q)
        return [q.items]

    def publish(tag, delta):
        def f(q):
            q.wait_vm(tag)
            q("s_barrier")
            q.add(cx.set_flag(delta, CSL + 12))
        return group(f)
    LAF = 4
    for j in range(LAF):
        x_, y_ = rd_for(j)
        p.add(x_ + y_)
    BUD = OPT['gap_budget']
    bar = group(lambda q: q("s_barrier"))
    timed = []
    b0(f"v_mov_b32 v{V_C}, {hexf(C1)}")
    b0(f"v_mov_b32 v{V_C+1}, {hexf(C2)}")
    script = [('fill', a1), ('mfma', m1), ('fill', a2), ('fill', a3), ('mark', 'y'), ('fill', b0.items),
              ('after', ('y', OPT['pub1_gap'])), ('unit', publish('Wst', 1)), ('gap', 1),
              ('fill', b1.items), ('unit', [p3_setup()]), ('ev', 'p3'),
              ('at', 128), ('fill', cs_fin(0) + rank1_prep(0)), ('mfma', [rank1(0), rank1(1)]),
              ('fill', epilogue(0, False)), ('nextbar', None), ('fill', cs_get(0) + rank1_prep(1)), ('mfma', [rank1(2), rank1(3)])]
    marks = {}
    for n in range(1, 4):
        script += [('fill', epilogue(n, False))]
    if OPT.get('serial_y'):
        p.add(a1 + m1 + b0.items + a2 + a3)
        script = script[4:5] + script[6:]
        probe(p, 0, 1)
    units = [((lambda: True), u) for u in left_a]
    for ks in (1, 2, 3, 4, 0, 5, 6, 7):
        cond = (lambda: 'p3ok' in ev) if ks == 0 else ((lambda k=ks: (0, k + 1) in seen) if ks < 7 else (lambda: (1, 0) in seen))
        units += [(cond, u) for u in w_dma(1, ks)]
    for q_ in range(7):
        cond = (lambda k=q_: 'p3ok' in ev and (1, k + 1) in seen)
        units += [(cond, u) for u in wd_units('G', q_)]
    prio_units = []
    fill = []
    last_dsw = -100
    hold = 0
    log = []
    pend = []
    for i in range(256):
        j, rgi = i >> 1, i & 1
        n = (j >> 6) * 4 + (j & 1) * 2 + rgi
        step = (j >> 1) & 31
        gap = Prog()
        if i % 4 == 0:
            p.touch(v(WF + ((j + 1) % 6) * 4, 4))
        c = "0" if step == 0 else v(ACC + 16*n, 16)
        p(f"v_mfma_f32_32x32x16_bf16 {v(ACC+16*n,16)}, {v(WF + (j % 6)*4, 4)}, {a(rgi*128 + step*4,4)}, {c}")
        if rgi == 0:
            if j + LAF < 128:
                x_, pend = rd_for(j + LAF)
                gap.add(x_)
        else:
            gap.add(pend)
            pend = []
        if prio_units:
            gap.add(prio_units.pop(0))
        elif timed and i >= timed[0][0] and i % 2 == 0:
            gap.add(timed.pop(0)[1])
        elif units and i % 2 == 1 and units[0][0]():
            gap.add(units.pop(0)[1])
        cost = sum(x.cost for x in gap.items) + (4 if i % 4 == 3 else 0)
        extra_m = []
        while True:
            while fill and (cost + fill[0].cost <= BUD or (cost <= 8 and fill[0].cost > 8)) and i >= hold:
                if isinstance(fill[0], Marker) and fill[0].kind == 'gap':
                    hold = i + 1 + fill.pop(0).arg
                    continue
                cost += fill[0].cost
                if isinstance(fill[0], I) and fill[0].op.startswith('ds_write'):
                    last_dsw = i
                gap.add([fill.pop(0)])
            if fill or not script or prio_units:
                break
            kind, pay = script[0]
            if kind == 'at' and i + 1 < pay:
                break
            if kind == 'since' and i < last_dsw + pay:
                break
            if kind == 'after' and i < marks.get(pay[0], 0) + pay[1]:
                break
            if kind == 'nextbar' and not (lastbar[0] >= last_dsw + 10):
                break
            if kind == 'mark':
                marks[pay] = i
            script.pop(0)
            log.append((i, kind))
            if kind == 'fill':
                fill = list(pay)
            elif kind == 'mfma':
                extra_m = pay
                break
            elif kind == 'unit':
                prio_units = list(pay)
            elif kind == 'gap':
                script.insert(0, ('at', i + 1 + pay))
            elif kind == 'ev':
                ev.add(pay)
        p.add(gap)
        if rgi == 1 and (j & 1) == 0:
            p.add(cs_mfma(j))
        p.add(extra_m)
        if i in (127,):
            probe(p, 3)
        if i % 16 == 15 and i < 160:
            probe(p, 1 + i // 16, 1)
        z0, zs = OPT.get('zoom', (28, 2))
        if i >= z0 and (i - z0) % zs == 0 and (i - z0) // zs < 11:
            probe(p, (i - z0) // zs, 5)
    if OPT.get('log'):
        print(log, len(fill), [k for k, _ in script], len(units))
    assert not prio_units and not timed
    probe(p, 4)
    rest = list(fill)
    for kind, pay in script:
        assert kind == 'fill'
        rest += pay
    rest = cs_fin(1) + rank1_prep(2) + [rank1(4), rank1(5)] + rest + epilogue(4, True)
    q = Prog()
    q.wait_lgkm()
    q("s_barrier")
    rest += q.items + cs_get(1) + epilogue(5, True) + rank1_prep(3) + [rank1(6), rank1(7)]
    rest += [I("s_nop 7")] * 0 + epilogue(6, True) + epilogue(7, True)
    p.add(rest)
    probe(p, 5)
    p.wait_vm('Hst')
    p("s_barrier")
    p.add(cx.set_flag(2, 64))
    probe(p, 6)
    return [u for _, u in units] + wd_units('G', 7) + wd_units('G', 8) + wd_units('G', 9)


def fft_tables():
    def bf(x):
        u = np.asarray(x, dtype=np.float32).view(np.uint32)
        return ((u + 0x7fff + ((u >> 16) & 1)) >> 16).astype(np.uint16)
    lane = np.arange(64)
    m, h = lane & 31, lane >> 5
    i = np.arange(8)
    blob = []
    for N, ntile in ((32, 1), (64, 2)):
        fr = {0: [], 1: [], 2: []}
        for tile in range(ntile):
            for st in range(2 * ntile):
                tau, t = st >> 1, st & 1
                k = 32*tau + 16*t + 8*(i[None, :] >> 2) + 4*h[:, None] + (i[None, :] & 3)
                ang = 2*np.pi*(((32*tile + m[:, None]) * k) % N)/N
                fr[0].append(bf(np.cos(ang)))
                fr[1].append(bf(np.sin(ang)))
                fr[2].append(bf(-np.sin(ang)))
        for kind in range(3):
            blob.append(np.concatenate([x.ravel() for x in fr[kind]]).tobytes())
    e = np.arange(4)
    t2 = []
    for tau in range(2):
        for rq in range(4):
            row = 8*rq + 4*h[:, None] + e[None, :]
            ang2 = 2*np.pi*(row * (32*tau + m[:, None]))/2048
            t2 += [np.cos(ang2), np.sin(ang2)]
    T2 = np.concatenate([x.ravel() for x in t2]).astype(np.float32).tobytes()
    return T2 + b"".join(blob[:3]) + bytes(2048) + b"".join(blob[3:])


def fft_phase(cx, p, left, w0, a1, m1, a2, w1):
    for u in left:
        p.add(u)
    p("s_barrier")
    p("s_getpc_b64 s[32:33]")
    p("F_TPC:")
    p("s_add_u32 s32, s32, FFT_TBL-F_TPC")
    p("s_addc_u32 s33, s33, 0")
    p(f"s_mov_b32 s34, {TBL_BYTES}")
    p("s_mov_b32 s35, 0x00020000")
    tb = []
    for k in range(12):
        q = Prog()
        if k == 0:
            q(f"s_add_u32 m0, s53, {L_T2}")
            q("s_mov_b32 s55, s53")
        if k in (4, 8):
            q(f"s_lshl_b32 s55, s{S_W}, 13")
            q(f"s_add_u32 m0, s55, {L_WT + (k-4)*1024}")
            q(f"s_add_u32 s55, s55, {16384 + (k-4)*1024}")
        q(f"buffer_load_dwordx4 v2, s[32:35], s55 offen offset:{(k % 4)*1024} lds", tag='TB')
        tb.append(q.items)
    p.add(a1 + m1 + a2 + w1)
    FDV = 252
    p.add(p3_setup(FDV, 160))
    for u in tb:
        p.add(u)
    pre = []
    for q_ in range(4):
        U = wd_units('F', q_, FDV)
        U[0][0] = I(f"s_add_u32 m0, s53, {L_Y + q_*16384}")
        pre += U
    for u in pre[:8]:
        p.add(u)
    p("v_add_u32 v152, 0x10000, v2")
    p(f"s_lshl_b32 s56, s{S_X}, 2")
    p(f"s_add_u32 s56, s56, s{S_IDX}")
    p("s_sub_u32 s56, s56, 28")
    p("s_lshl_b32 s57, s56, 3")
    p(f"s_lshl_b32 s58, s{S_W}, 1")
    p("s_add_u32 s57, s57, s58")
    p("s_lshl_b32 s57, s57, 13")
    p(f"s_add_u32 s58, s57, {Y1_OFF}")
    p(f"s_add_u32 s59, s57, {WT_OFF}")
    p(f"s_lshl_b32 s54, s{S_W}, 14")
    p(f"s_add_u32 s52, s54, {L_Y}")
    p(f"s_add_u32 s54, s54, {L_WT}")
    p("v_add_u32 v6, s54, v2")
    p("v_lshlrev_b32 v3, 7, v0")
    p("v_lshrrev_b32 v4, 3, v1")
    p("v_and_b32 v4, 2, v4")
    p("v_lshlrev_b32 v4, 5, v4")
    p("v_xor_b32 v4, v4, v2")
    p("v_bfe_u32 v12, v1, 2, 2")
    p(f"v_lshl_add_u32 v5, v{VH}, 2, v12")
    p("v_lshlrev_b32 v5, 7, v5")
    p("v_bfe_u32 v11, v1, 4, 1")
    p("v_lshl_add_u32 v5, v11, 5, v5")
    p("v_and_b32 v11, 3, v1")
    p("v_lshl_add_u32 v5, v11, 3, v5")
    p("v_and_b32 v12, 2, v12")
    p("v_lshlrev_b32 v12, 5, v12")
    p("v_xor_b32 v5, v5, v12")
    p("v_add_u32 v5, s52, v5")
    p("v_xor_b32 v12, 64, v5")
    p("v_lshlrev_b32 v7, 2, v14")
    p("v_lshl_add_u32 v8, v15, 8, v7")
    p("v_lshl_add_u32 v7, v15, 11, v7")
    p(f"s_lshl_b32 s55, s{S_W}, 7")
    p(f"s_add_u32 s55, s55, {L_Y}")
    p("v_add_u32 v7, s55, v7")
    p(f"s_lshl_b32 s55, s{S_W}, 13")
    p(f"s_add_u32 s55, s55, {L_Y}")
    p("v_add_u32 v8, s55, v8")
    p("v_add_u32 v9, 128, v8")

    p.wait_vm('Wst')
    p("s_barrier")
    p.add(cx.set_flag(1, CSL + 12))
    probe(p, 3)
    for u in pre[8:]:
        p.add(u)
    AF32, AF64 = 0, 24
    iss, chk = cx.await_flags(11, 3, 1)
    p.wait_vm('TB')
    p("s_barrier")
    for k in range(24):
        p(f"ds_read_b128 {a(AF64+4*k,4)}, v152 offset:{L_F64 + k*1024 - 65536}")
    for k in range(6):
        p(f"ds_read_b128 {a(AF32+4*k,4)}, v152 offset:{L_F32 + k*1024 - 65536}")
    p.add(tr_addr(160, 161, 164))
    p.wait_vm(('D', 7))
    p.add(iss)
    for step in range(8):
        for Dt in range(2):
            for b in range(2):
                p(f"ds_read_b64_tr_b16 {a(128 + step*8 + Dt*4 + 2*b, 2)}, v{160+Dt} offset:{L_Y + (step >> 1)*16384 + (step & 1)*2048 + b*512 - 16384}")
    p.wait_lgkm()
    p.add(chk)
    p("s_barrier")
    probe(p, 4)
    ACC = [16, 112]
    PK = [80, 176]
    TB, RT, WU = 208, 224, 240
    wdu = []
    for q_ in range(1, OPT.get('f_wd', 1)):
        wdu += wd_units('F', q_, FDV)

    def acc(col, c, tile):
        return ACC[col] + c*32 + tile*16

    def pk(col, c, st):
        return PK[col] + c*16 + st*4

    def lin_dma(vo, lb, sb, name, col):
        U = []
        for k in range(8):
            q = Prog()
            if k % 4 == 0:
                q(f"s_add_u32 m0, s{lb}, {col*8192 + k*1024}")
                q(f"s_add_u32 s55, s{sb}, {col*8192 + k*1024}")
            q(f"buffer_load_dwordx4 v{vo}, {R(R_WS)}, s55 offen offset:{(k % 4)*1024} {OPT['ldf']} lds", tag=(name, col, k // 2))
            U.append(q.items)
        return U

    def y_reads(col, st):
        q = Prog()
        q.wait_vm(('Y', col, st))
        for c in range(2):
            for b in range(2):
                q(f"ds_read_b64_tr_b16 {v(pk(col,c,st)+2*b,2)}, v{5 if c == 0 else 12} offset:{col*8192 + st*2048 + b*1024}")
        return q.items
    units = lin_dma(4, 52, 58, 'Y', 0) + lin_dma(4, 52, 58, 'Y', 1) + lin_dma(2, 54, 59, 'WT', 0) + lin_dma(2, 54, 59, 'WT', 1)
    for u in units[:8]:
        p.add(u)
    for u in units[8:12]:
        p.add(u)
    units = units[12:]

    def mm(d, A, B, first):
        return I(f"v_mfma_f32_32x32x16_bf16 {v(d,16)}, {A}, {B}, {'0' if first else v(d,16)}")

    def f32(kind, t):
        return a(AF32 + kind*8 + t*4, 4)

    def f64(kind, tile, st):
        return a(AF64 + kind*32 + tile*16 + st*4, 4)

    def stage(col, n):
        L = []
        kre, kim = (2, 1) if n >= 3 else (1, 2)
        nst = 2 if n == 4 else 4
        for st in range(nst):
            for tile in range(2):
                if n == 2:
                    pr = lambda kind, c: (f64(kind, tile, st), v(pk(col, c, st), 4))
                elif n == 3:
                    pr = lambda kind, c: (v(pk(col, c, st), 4), f64(kind, tile, st))
                else:
                    pr = lambda kind, c: (v(pk(col, c, tile*2 + st), 4), f32(kind, st))
                L.append(mm(acc(col, 0, tile), *pr(0, 0), st == 0))
                L.append(mm(acc(col, 1, tile), *pr(0, 1), st == 0))
                L.append(mm(acc(col, 0, tile), *pr(kre, 1), False))
                L.append(mm(acc(col, 1, tile), *pr(kim, 0), False))
        return L

    def xw(col, k):
        g = 32*(k >> 4) + 8*((k & 15) >> 2) + (k & 3)
        return [I(f"ds_write_b32 v7, v{PK[col]+k} offset:{col*32768 + g*512}")]

    def vphase(col, n):
        q = Prog()
        if n == 4:
            for k in range(32):
                q(f"v_cvt_pk_bf16_f32 v{PK[col]+k}, v{acc(col,0,0)+k}, v{acc(col,1,0)+k}")
                if k >= 2:
                    q.add(xw(col, k - 2))
            return q.items + xw(col, 30) + xw(col, 31)

        def rd(k):
            b = TB + (k & 1) * 8
            if n == 2:
                q(f"ds_read_b128 {v(b,4)}, v6 offset:{col*8192 + k*1024}")
            else:
                q(f"ds_read_b128 {v(b,4)}, v2 offset:{L_T2 + k*2048}")
                q(f"ds_read_b128 {v(b+4,4)}, v2 offset:{L_T2 + k*2048 + 1024}")
        rd(0)
        for k in range(8):
            tile, rq = k >> 2, k & 3
            if k + 1 < 8:
                rd(k + 1)
            b = TB + (k & 1) * 8
            xr, xi = acc(col, 0, tile) + 4*rq, acc(col, 1, tile) + 4*rq
            Rr = RT + (k & 1) * 8
            if n == 2:
                for e in range(4):
                    q(f"v_lshlrev_b32 v{WU+e}, 16, v{b+e}")
                    q(f"v_and_b32 v{WU+4+e}, 0xffff0000, v{b+e}")
                cc, ss = WU, WU + 4
            else:
                cc, ss = b, b + 4
            for e in range(4):
                q(f"v_mul_f32 v{Rr+e}, v{xr+e}, v{cc+e}")
                q(f"v_mul_f32 v{Rr+4+e}, v{xi+e}, v{cc+e}")
            for e in range(4):
                q(f"v_fma_f32 v{Rr+e}, -v{xi+e}, v{ss+e}, v{Rr+e}")
                q(f"v_fma_f32 v{Rr+4+e}, v{xr+e}, v{ss+e}, v{Rr+4+e}")
            st, half = tile*2 + (rq >> 1), (rq & 1) * 2
            for c in range(2):
                for e in range(2):
                    q(f"v_cvt_pk_bf16_f32 v{pk(col,c,st)+half+e}, v{Rr+4*c+2*e}, v{Rr+4*c+2*e+1}")
        return q.items
    probe(p, 0, 3)
    S = stage(0, 2)
    S = y_reads(0, 0) + y_reads(0, 1) + S[:8] + y_reads(0, 2) + S[8:16] + y_reads(0, 3) + S[16:24] + y_reads(1, 0) + y_reads(1, 1) + S[24:]
    mer, units = spread(S, units, 40)
    p.add(mer)
    p.add(y_reads(1, 2) + y_reads(1, 3))
    probe(p, 1, 3)
    order = [((1, 2), (0, 2)), ((0, 3), (1, 2)), ((1, 3), (0, 3)), ((0, 4), (1, 3)), ((1, 4), (0, 4))]
    for (sc, sn), (vc, vn) in order:
        if vn == 2:
            p.wait_vm(('WT', vc, 3))
        if (sc, sn) == (1, 3):
            p("s_barrier")
            units = units + wdu
        S, Vv = stage(sc, sn), vphase(vc, vn)
        tot = sum(x.cost for x in Vv)
        bud = max(24, -(-tot // len(S) // 4) * 4)
        mer, left = interleave(S, Vv, budget=bud)
        mer, units = spread(mer + left, units, 64)
        p.add(mer)
        probe(p, 2 + order.index(((sc, sn), (vc, vn))), 3)
    assert not units
    p.add(vphase(1, 4))
    probe(p, 5)
    p(f"s_lshl_b32 s60, s{S_W}, 19")
    p("s_lshl_b32 s61, s56, 10")
    p("s_add_u32 s60, s60, s61")
    p(f"s_add_u32 s60, s60, {V_OFF}")
    probe(p, 7, 3)
    p.wait_lgkm()
    p("s_barrier")
    probe(p, 8, 3)
    O = 16

    for k in range(16):
        p(f"ds_read2st64_b32 {v(O+4*k,2)}, v8 offset0:{2*k} offset1:{2*k+128}")
        p(f"ds_read2st64_b32 {v(O+4*k+2,2)}, v9 offset0:{2*k} offset1:{2*k+128}")
        if k >= 3:
            p(f"buffer_store_dwordx4 {v(O+4*(k-3),4)}, v2, {R(R_WS)}, s60 offen sc1", tag='Vst')
            p("s_add_u32 s60, s60, 32768")
    for k in range(13, 16):
        p(f"buffer_store_dwordx4 {v(O+4*k,4)}, v2, {R(R_WS)}, s60 offen sc1", tag='Vst')
        if k < 15:
            p("s_add_u32 s60, s60, 32768")
    probe(p, 9, 3)
    for q_ in range(4, 9):
        for u in wd_units('F', q_, FDV):
            p.add(u)
    pub = Prog()
    pub.wait_vm('Vst')
    pub("s_barrier")
    pub.add(cx.set_flag(2, 112))
    cx.pub = pub.items
    probe(p, 6)
    probe(p, 10, 3)
    return []


P3_DV = 44
X_S, X_G = {'G': 16384, 'F': 5*16384}, {'G': 5*16384, 'F': 0}
P3_SLOT = {'G': [k * 16384 for k in (6, 7, 8, 0, 1, 2, 3, 4, 5)] + [MISC],
           'F': [k * 16384 for k in (0, 1, 2, 3)] + [MISC] + [k * 16384 for k in (5, 6, 7, 8, 4)]}
R_WD, R_OUT = R_WR, R_WI
S_WD, S_G0, S_DB = 48, 49, 50
A_V, A_PRE, A_H = 0, 64, 128


def p3_setup(dv=P3_DV, t=84):
    q = Prog()
    q(f"s_and_b32 s60, s{S_IDX}, 3")
    q(f"s_lshl_b32 s61, s{S_X}, 3")
    q("s_lshl_b32 s60, s60, 1")
    q(f"s_add_u32 s{S_G0}, s60, s61")
    q(f"s_lshr_b32 s{S_DB}, s{S_IDX}, 2")
    q(f"v_lshrrev_b32 v{t}, 3, v1")
    q(f"v_and_b32 v{t+1}, 7, v1")
    q(f"v_and_b32 v{t+2}, 2, v{t}")
    q(f"v_lshlrev_b32 v{t+2}, 1, v{t+2}")
    q(f"v_xor_b32 v{t+1}, v{t+1}, v{t+2}")
    q(f"v_lshlrev_b32 v{t}, 10, v{t}")
    q(f"v_lshl_add_u32 v{dv}, v{t+1}, 4, v{t}")
    for k in range(1, 4):
        q(f"v_add_u32 v{dv+k}, {k*(8192-1024)}, v{dv}")
    q(f"s_mul_i32 s{S_WD}, s{S_W}, {28*16*1024}")
    q(f"s_lshl_b32 s60, s{S_DB}, 7")
    q(f"s_add_u32 s{S_WD}, s{S_WD}, s60")
    srd(q, R_WD, 4, 1792*512*2)
    srd(q, R_OUT, 6, 2097152)
    return q.items


def wd_units(role, pair, dv=P3_DV):
    U = []
    for k in range(4):
        q = Prog()
        if k == 0:
            q(f"s_add_u32 m0, s53, {P3_SLOT[role][pair % 10]}")
            q(f"s_add_u32 s55, s{S_WD}, {pair*32*1024}")
        q(f"buffer_load_dwordx4 v{dv+k}, {R(R_WD)}, s55 offen offset:{k*1024} lds", tag=('D', pair*2 + (k >> 1)))
        U.append(q.items)
    return U


def tr_addr(d0, d1, t):
    q = Prog()
    q(f"v_bfe_u32 v{t}, v1, 2, 2")
    q(f"v_lshrrev_b32 v{t+1}, 5, v1")
    q(f"v_lshl_add_u32 v{t+1}, v{t+1}, 3, v{t}")
    q(f"v_lshl_add_u32 v{t+1}, v{t+1}, 7, s53")
    q(f"v_bfe_u32 v{t+2}, v1, 4, 1")
    q(f"v_lshl_add_u32 v{t+1}, v{t+2}, 5, v{t+1}")
    q(f"v_and_b32 v{t+2}, 3, v1")
    q(f"v_lshl_add_u32 v{t+1}, v{t+2}, 3, v{t+1}")
    q(f"v_and_b32 v{t}, 2, v{t}")
    q(f"v_lshlrev_b32 v{t}, 5, v{t}")
    q(f"v_xor_b32 v{d0}, v{t+1}, v{t}")
    if d0 == 160:
        q(f"v_add_u32 v{d0}, 16384, v{d0}")
    q(f"v_xor_b32 v{d1}, 64, v{d0}")
    return q.items


def cgen(dst, S0, T, packed):
    q = Prog()
    S1 = S0 + 8
    d_, j_, th, t8, c2, tmp = T, T + 1, T + 2, T + 3, T + 4, T + 6
    q(f"v_and_b32 v{d_}, 31, v1")
    q(f"s_lshl_b32 s62, s{S_DB}, 6")
    q(f"v_add_u32 v{d_}, s62, v{d_}")
    q(f"v_lshrrev_b32 v{j_}, 5, v1")
    q(f"s_lshl_b32 s62, s{S_W}, 6")
    q(f"v_lshl_add_u32 v{j_}, v{j_}, 2, s62")
    q(f"v_add_u32 v{j_}, 1, v{j_}")
    q("s_movk_i32 s62, 0xc5")
    q(f"v_cmp_eq_u32 s[60:61], s62, v{j_}")
    q(f"v_cvt_f32_u32 v{j_}, v{j_}")
    for Dt in range(2):
        q(f"v_cvt_f32_u32 v{th}, v{d_}")
        q(f"v_mul_f32 v{th}, {hexf(1/512)}, v{th}")
        q(f"v_mul_f32 v{t8}, {hexf(8.0)}, v{th}")
        q(f"v_sub_f32 v{c2}, {hexf(0.25)}, v{t8}")
        q(f"v_sin_f32 v{c2}, v{c2}")
        q(f"v_fma_f32 v{S0+1}, -v{j_}, v{th}, 0")
        for ci in range(1, 4):
            q(f"v_sub_f32 v{S0+2*ci+1}, v{S0+2*ci-1}, v{th}")
        for ci in range(4):
            q(f"v_add_f32 v{S0+2*ci}, {hexf(0.25)}, v{S0+2*ci+1}")
        for i in range(8):
            q(f"v_sub_f32 v{S1+i}, v{S0+i}, v{t8}")
        q(f"v_add_f32 v{c2}, v{c2}, v{c2}")
        for i in range(16):
            q(f"v_sin_f32 v{S0+i}, v{S0+i}")
        for t in range(8):
            cur = S0 if t % 2 == 0 else S1
            oth = S1 if t % 2 == 0 else S0
            if t >= 2:
                for i in range(0, 8, 2 if packed else 1):
                    if packed:
                        q(f"v_pk_fma_f32 {v(cur+i,2)}, {v(c2,2)}, {v(oth+i,2)}, {v(cur+i,2)} op_sel_hi:[0,1,1] neg_lo:[0,0,1] neg_hi:[0,0,1]")
                    else:
                        q(f"v_fma_f32 v{cur+i}, v{c2}, v{oth+i}, -v{cur+i}")
            for i in range(4):
                q(f"v_cvt_pk_bf16_f32 v{dst+Dt*32+4*t+i}, v{cur+2*i}, v{cur+2*i+1}")
        q(f"v_and_b32 v{tmp}, 1, v{d_}")
        q(f"v_lshlrev_b32 v{tmp}, 15, v{tmp}")
        q(f"v_or_b32 v{tmp}, {fbits(0.5) >> 16}, v{tmp}")
        q(f"v_cndmask_b32 v{dst+Dt*32+31}, v{dst+Dt*32+31}, v{tmp}, s[60:61]")
        if Dt == 0:
            q(f"v_add_u32 v{d_}, 32, v{d_}")
    return q.items


def phase3(cx, p, pre_left, dv):
    G = cx.role == 'G'
    SL = P3_SLOT[cx.role]
    XRR, TAD, DV3, EW, ER = 240, 250, 12, 96, 104
    CF, AS, AG, WF3, SV = 16, 112, 176, 80, 16
    SC = 2.0 ** -19

    PRE = A_PRE if G else 128

    def hreg(step, rg):
        r = A_H + (step % 16)*8 + rg*4
        return r if G or r >= 192 else r - 64
    q = Prog()
    if dv != DV3:
        for k in range(4):
            q(f"v_mov_b32 v{DV3+k}, v{dv+k}")
    q("v_and_b32 v248, 31, v1")
    q("v_and_b32 v10, 15, v1")
    q("v_min_u32 v10, 13, v10")
    q("v_cmp_lt_u32 vcc, 6, v10")
    q("v_subrev_u32 v3, 7, v10")
    q(f"s_lshr_b32 s58, s{S_G0}, 2")
    q("v_cndmask_b32 v10, v10, v3, vcc")
    q("v_cndmask_b32 v3, 0, 4, vcc")
    q("v_lshl_add_u32 v10, v10, 5, v3")
    q("s_and_b32 s59, s58, 3")
    q("s_lshl_b32 s59, s59, 3")
    q("s_lshr_b32 s58, s58, 2")
    q("s_add_u32 s58, s58, s59")
    q("v_add_lshl_u32 v10, v10, s58, 7")
    iss, chk = cx.await_flags(3, 10, 2)
    iss2, chk2 = cx.await_flags(4, 9, 2)
    if not G:
        q.add(iss)
    q("v_lshrrev_b32 v249, 5, v1")
    q("v_add_u32 v9, 224, v248")
    q("v_lshlrev_b32 v9, 7, v9")
    q.add(tr_addr(TAD, TAD + 1, 96))
    for k in range(2):
        q(f"v_add_u32 v{TAD+2+k}, 0x10000, v{TAD+k}")
        q(f"v_add_u32 v{TAD+4+k}, 0x20000, v{TAD+k}")

    def wreads(step, dst):
        q = Prog()
        q.wait_vm(('D', step))
        off = SL[(step >> 1) % 10] + (step & 1) * 2048
        for Dt in range(2):
            ad = TAD + Dt + 2 * (off >> 16)
            q(f"ds_read_b64_tr_b16 {dst(Dt*4,2)}, v{ad} offset:{off & 0xffff}")
            q(f"ds_read_b64_tr_b16 {dst(Dt*4+2,2)}, v{ad} offset:{(off & 0xffff)+512}")
        return q.items
    NPRE = 8
    for step in range(NPRE if G else 0):
        q.add(wreads(step, lambda o, n: a(A_PRE + step*8 + o, n)))
    q(f"v_add_u32 v11, {112*1024}, v2")
    q(f"s_mul_i32 s56, s{S_G0}, 112")
    q(f"s_mul_i32 s57, s{S_W}, 28")
    q("s_add_u32 s56, s56, s57")
    q("s_lshl_b32 s56, s56, 10")
    q(f"s_add_u32 s56, s56, {H_OFF}")
    fix = lambda U: [[I(x.text.replace(f"dwordx4 v{dv+k}, ", f"dwordx4 v{DV3+k}, "), x.tag) for x in u]
                     for u in U for k in [int(u[-1].text.split('offset:')[1].split()[0]) // 1024]]
    mer, left = spread(q.items, fix(pre_left) if G else [], 48, phase=24)
    p.add(mer)
    for u in left:
        p.add(u)
    if G:
        p.touch(a(A_PRE, 64))
        p.add(iss)
        for pair in range(10, 10 + OPT.get('g_post', 2)):
            for u in wd_units(cx.role, pair, DV3):
                p.add(u)
    else:
        p.add(cx.pub)
        for pair in range(9, 9 + OPT.get('f_post', 1)):
            for u in wd_units(cx.role, pair, DV3):
                p.add(u)
    q = Prog()
    q(f"s_lshl_b32 s57, s{S_G0}, 15")
    q(f"s_lshl_b32 s58, s{S_W}, 13")
    q("s_add_u32 s57, s57, s58")
    q(f"s_add_u32 s57, s57, {V_OFF}")
    q("v_lshrrev_b32 v6, 3, v0")
    q("v_and_b32 v7, 7, v0")
    q("v_lshlrev_b32 v8, 16, v6")
    q("v_lshl_add_u32 v8, v7, 4, v8")
    q(f"s_lshl_b32 s54, s{S_G0}, 10")
    q(f"s_lshl_b32 s58, s{S_DB}, 7")
    q("s_add_u32 s54, s54, s58")
    setup1 = q.items
    q = Prog()
    q("v_bfe_u32 v110, v1, 1, 2")
    q("v_and_b32 v111, 1, v1")
    q("v_lshl_or_b32 v110, v111, 2, v110")
    q("v_xor_b32 v110, v110, v249")
    q("v_lshl_add_u32 v111, v248, 7, s53")
    for rq in range(4):
        q(f"v_xor_b32 v{EW+rq}, {2*rq}, v110")
        q(f"v_lshl_add_u32 v{EW+rq}, v{EW+rq}, 4, v111")
        q(f"v_add_u32 v{EW+4+rq}, {X_G[cx.role]}, v{EW+rq}")
        q(f"v_add_u32 v{EW+rq}, {X_S[cx.role]}, v{EW+rq}")
    q("v_bfe_u32 v110, v6, 1, 2")
    q("v_and_b32 v111, 1, v6")
    q("v_lshl_or_b32 v110, v111, 2, v110")
    q("v_lshrrev_b32 v111, 2, v7")
    q("v_lshlrev_b32 v111, 14, v111")
    q("v_lshl_add_u32 v111, v6, 7, v111")
    q("v_and_b32 v109, 3, v7")
    for b in range(2):
        q(f"v_lshl_add_u32 v108, v109, 1, {b}")
        q("v_xor_b32 v108, v108, v110")
        q(f"v_lshl_add_u32 v{ER+b}, v108, 4, v111")
        q(f"v_add_u32 v{ER+2+b}, {X_G[cx.role]}, v{ER+b}")
        q(f"v_add_u32 v{ER+b}, {X_S[cx.role]}, v{ER+b}")
    setup2 = q.items
    probe(p, 7)
    p.add(chk)
    probe(p, 8)
    VS = OPT['v_s']

    def tuse(step):
        return 4 * step + (32 if step > VS else 0)
    units = []
    for step in range(28):
        for rg in range(2):
            q = Prog()
            if rg == 0:
                q(f"s_add_u32 s59, s56, {step*1024}")
            q(f"buffer_load_dwordx4 {a(hreg(step, rg),4)}, v{2 if rg == 0 else 11}, {R(R_WS)}, s59 offen {OPT['ld3']}")
            units.append((tuse(step), step - 15, q.items))
    for t in range(8):
        for rg in range(2):
            q = Prog()
            if t == 0 and rg == 0:
                q.add(chk2)
            q(f"s_add_u32 s58, s57, {rg*32768 + t*1024}")
            q(f"buffer_load_dwordx4 {a(A_V + t*8 + rg*4, 4)}, v2, {R(R_WS)}, s58 offen {OPT['ld3']}")
            units.append((4 * (VS + 1) + 4 * t, -1, q.items))
    units.append((4 * (VS + 1) - OPT.get('v_poll', 40), -1, iss2))
    for k in range(2):
        units.append((100 + k, -1, [I(f"buffer_load_dwordx4 {v(XRR+4*k,4)}, v8, {R(R_XX)}, s54 offen offset:{k*1024}")]))
    if True:
        done = {x.tag[1] // 2 for x in p.items if isinstance(x, I) and isinstance(x.tag, tuple) and x.tag[0] == 'D'}
        for pair in range(14):
            if pair not in done:
                units += [(tuse(2*pair - 1) - 4, -1, u) for u in wd_units(cx.role, pair, DV3)]
    units.sort(key=lambda u: u[0])

    def xwrite(accb, ew):
        return [I(f"ds_write_b128 v{ew+rq}, {v(accb + t*16 + 4*rq, 4)} offset:{t*16384}") for t in range(4) for rq in range(4)]

    def xread(er, T, packed):
        q = Prog()
        for w in range(4):
            for rg in range(2):
                for b in range(2):
                    q(f"ds_read_b128 {v(T + w*16 + rg*8 + b*4, 4)}, v{er+b} offset:{rg*32768 + w*4096}")
        s_ = Prog()
        for d_, s0 in ((0, 16), (32, 48), (0, 32)):
            for k in range(0, 16, 2 if packed else 1):
                if packed:
                    s_(f"v_pk_add_f32 {v(T+d_+k,2)}, {v(T+d_+k,2)}, {v(T+s0+k,2)}")
                else:
                    s_(f"v_add_f32 v{T+d_+k}, v{T+d_+k}, v{T+s0+k}")
        return q.items, s_.items

    def pop(step):
        k = next((i for i, u in enumerate(units) if u[1] <= step), None)
        if k is not None:
            p.add(units.pop(k)[2])

    def wsrc(step, Dt):
        return a(PRE + step*8 + Dt*4, 4) if step < NPRE else v(WF3 + (step & 1)*8 + Dt*4, 4)

    def wrd(step):
        return wreads(step, lambda o, n: v(WF3 + (step & 1)*8 + o, n)) if NPRE <= step < 28 else []
    for _ in range(OPT['p3_n0']):
        pop(-1)
    cg = setup1 + cgen(CF, AS, AS + 16, False) + setup2
    k0 = OPT.get('cg_pre', 120)
    p.add(cg[:k0])
    probe(p, 0, 6)
    p.add(wrd(0))
    fill = cg[k0:]
    nm = [0]

    def gapwork(step):
        nm[0] += 1
        cost = 0
        if nm[0] % OPT['p3_per'] == 0 or (units and units[0][0] <= nm[0] + OPT.get('p3_lead', 32)):
            pop(step)
            cost = 16
        while units and units[0][0] <= nm[0] + 8 and units[0][1] <= step:
            pop(step)
        assert not units or units[0][0] > nm[0] + 4, (step, nm, units[0][:2])
        while fill and (cost + fill[0].cost <= 20 or cost == 0):
            it = fill.pop(0)
            cost += it.cost
            p.add([it])
    for step in range(28):
        rd = wrd(step + 1)
        for k in range(4):
            rg, Dt = k >> 1, k & 1
            d = AG + k*16
            p(f"v_mfma_f32_32x32x16_bf16 {v(d,16)}, {wsrc(step, Dt)}, {a(hreg(step,rg),4)}, {'0' if step == 0 else v(d,16)}")
            if k == 0:
                p.add(rd)
            else:
                gapwork(step)
            if k == 0:
                nm[0] += 1
        if step % 3 == 2:
            probe(p, 1 + step // 3, 6)
        if step == VS:
            p.add(fill)
            fill = []
            for t in range(8):
                for k in range(4):
                    rg, Dt = k >> 1, k & 1
                    d = AS + k*16
                    cf = v(CF+Dt*32+4*t, 4)
                    p(f"v_mfma_f32_32x32x16_bf16 {v(d,16)}, {cf}, {a(A_V+t*8+rg*4,4)}, {'0' if t == 0 else v(d,16)}")
                    gapwork(step)
            fill = xwrite(AS, EW)
    while units:
        pop(99)
    p.add(fill)
    probe(p, 10)
    probe(p, 10, 6)
    GT = 112
    un = Prog()
    un(f"v_mov_b32 v248, {hexf(-math.log2(math.e))}")
    un(f"v_mov_b32 v249, {hexf(SC)}")
    for k in range(8):
        un(f"v_lshlrev_b32 v{XUF+2*k}, 16, v{XRR+k}")
        un(f"v_and_b32 v{XUF+2*k+1}, 0xffff0000, v{XRR+k}")
    for k, w_ in enumerate(xwrite(AG, EW + 4)):
        p.add([w_] + un.items[k*18//16:(k+1)*18//16])
    p.wait_lgkm()
    p("s_barrier")
    probe(p, 9)
    rd, sm = xread(ER + 2, GT, True)
    rd2, sm2 = xread(ER, SV, True)
    p.add(rd + rd2[:6] + sm[:8] + rd2[6:] + sm[8:])
    Z = 176
    for k in range(0, 16, 2):
        p(f"v_pk_mul_f32 {v(Z+k,2)}, {v(GT+k,2)}, v[248:249] op_sel_hi:[1,0]")
    for k in range(16):
        p(f"v_exp_f32 v{Z+k}, v{Z+k}")
    p.add(sm2)
    for k in range(0, 16, 2):
        p(f"v_pk_mul_f32 {v(GT+k,2)}, {v(GT+k,2)}, v[248:249] op_sel:[0,1] op_sel_hi:[1,1]")
    for k in range(0, 16, 2):
        p(f"v_pk_mul_f32 {v(GT+k,2)}, {v(GT+k,2)}, {v(SV+k,2)}")
    for k in range(0, 16, 2):
        p(f"v_pk_add_f32 {v(Z+k,2)}, {v(Z+k,2)}, 1.0 op_sel_hi:[1,0]")
    for k in range(16):
        p(f"v_rcp_f32 v{Z+k}, v{Z+k}")
        if k % 8 == 7:
            for m in range(k - 7, k + 1, 2):
                p(f"v_pk_fma_f32 {v(Z+m,2)}, {v(GT+m,2)}, {v(Z+m,2)}, {v(XUF+m,2)}")
            for m in range(k - 7, k + 1, 2):
                p(f"v_cvt_pk_bf16_f32 v{192+m//2}, v{Z+m}, v{Z+m+1}")
            p(f"buffer_store_dwordx4 {v(192 + (k >> 3)*4,4)}, v8, {R(R_OUT)}, s54 offen offset:{(k >> 3)*1024}")


XUF = 80


def program(role):
    cx = Ctx(role)
    p = Prog()
    la, a0, a1, m1, a2, a3, TA = phase1(cx, p)
    if role == 'G':
        left = gemm_phase(cx, p, la, a0, a1, m1, a2, a3, TA)
    else:
        left = fft_phase(cx, p, la, a0, a1, m1, a2, a3)
    phase3(cx, p, left, P3_DV if role == 'G' else 252)
    stamp_end(p, 8)
    p("s_endpgm")
    return finalize(p.items) + cx.tail


HEADER = """; Kernarg layout (80 bytes, ptrs only, base s[0:1]): A_x 0, A_w_r 8, A_w_i 16, B_x 24, w_gate 32, w_up 40,
; One launch, 256 resident workgroups.  Phase 1: row statistics, row DFT, first column-FFT stage, filter re-layout.
; Phase 2: gate/up GEMM + GELU (224 workgroups) or column FFT * filter * inverse FFT (32 workgroups).
; Phase 3: down GEMM + inverse row DFT + silu / combine.   Generated by tools/genf.py
"""


def build():
    out = [HEADER.rstrip()]
    out.append("; @launch grid=(256,1,1) block=(256,1,1) lds=163840")
    out.append('.amdgcn_target "amdgcn-amd-amdhsa--gfx950"')
    out.append(".text")
    out.append(f".globl {NAME}\n.p2align 8\n.type {NAME},@function\n{NAME}:")
    p = Prog()
    p("s_cmp_ge_u32 s2, 256")
    p("s_cbranch_scc1 K_END")
    p("s_load_dwordx2 s[4:5], s[0:1], 0")
    p("s_load_dwordx4 s[8:11], s[0:1], 8")
    p("s_load_dwordx2 s[12:13], s[0:1], 32")
    p("s_load_dwordx2 s[58:59], s[0:1], 40")
    p("s_load_dwordx2 s[14:15], s[0:1], 64")
    p("s_load_dwordx2 s[6:7], s[0:1], 72")
    stamp_begin(p)
    p(f"s_and_b32 s{S_X}, s2, 7")
    p(f"s_lshr_b32 s{S_IDX}, s2, 3")
    p("v_lshrrev_b32 v1, 6, v0")
    p(f"v_readfirstlane_b32 s{S_W}, v1")
    p(f"s_cmp_ge_u32 s{S_IDX}, 28")
    p("s_cbranch_scc0 ROLE_G")
    p("s_branch ROLE_F")
    p("K_END:")
    p("s_endpgm")
    out += finalize(p.items)
    pend = Prog()
    for role in ('G', 'F'):
        out.append(f"ROLE_{role}:")
        out.append("    s_nop 4")
        lines = program(role)
        out += lines
    blob = fft_tables()
    assert len(blob) == TBL_BYTES
    out.append(".p2align 8\n.type FFT_TBL,@object\nFFT_TBL:")
    w = np.frombuffer(blob, dtype=np.uint32)
    for i in range(0, len(w), 8):
        out.append(".long " + ",".join(f"0x{x:x}" for x in w[i:i+8]))
    out.append(f".size FFT_TBL, {TBL_BYTES}")
    out.append("CODE_END:")
    out.append('.section .rodata,"a"')
    out.append(f""".p2align 6
.amdhsa_kernel {NAME}
  .amdhsa_next_free_vgpr 512
  .amdhsa_next_free_sgpr 102
  .amdhsa_accum_offset 256
  .amdhsa_group_segment_fixed_size 0
  .amdhsa_kernarg_size 80
  .amdhsa_user_sgpr_count 2
  .amdhsa_user_sgpr_kernarg_segment_ptr 1
  .amdhsa_system_sgpr_workgroup_id_x 1
.end_amdhsa_kernel""")
    return "\n".join(out) + "\n"


if __name__ == "__main__":
    path = sys.argv[1]
    for kv in sys.argv[2:]:
        k, val = kv.split("=", 1)
        OPT[k] = eval(val)
    open(path, "w").write(build())
```

```python
import sys, math, struct
import numpy as np
sys.path.insert(0, 'tools')
from emit import *

NAME = "recurrent_scan__spectral_gfnet__glu_gated_geglu__prompt_kernel"
FL_OFF = 0x000000
CS_OFF = 0x010000
Y1_OFF = 0x200000
WT_OFF = 0x400000
H_OFF = 0x600000
V_OFF = 0xD00000
ST_OFF = 0x1000000
PR_OFF = ST_OFF + 0x40000
WS_USED = 0x1100000
NPROBE = 12

OPT = dict(stamps=False, gap_budget=20, spin_limit=1 << 16, poll_cs=92, cs_wait=22, pub1_gap=16, nonce_at=1, codepf=True, wpf=3, x_burst=8, pub2_gap=24, w_wait=30, rot=False, acq=False, ld3='sc1', ldf='sc1', v_s=17, serial_y=True, p3_n0=14, p3_per=2)

C1 = -2.0 * math.log2(math.e) * math.sqrt(2.0 / math.pi)
C2 = C1 * 0.044715
MISC = 9 * 16384
CSX = MISC
M_YX, M_ST = MISC, 7 * 16384
TBL_BYTES = 48 * 1024
L_T2, L_Y, L_WT = 0, 16*1024, 80*1024
L_F32, L_F64 = L_WT, L_WT + 8*1024
RING = 12
L_SX = 4 * RING * 2048

S_X, S_IDX, S_W, S_G, S_NT, S_MT, S_NONCE = 16, 17, 18, 19, 20, 21, 22
R_WS, R_WG, R_WU, R_XX, R_WR, R_WI, R_DBG = 24, 28, 32, 36, 40, 44, 48


def fbits(x):
    return struct.unpack('<I', struct.pack('<f', x))[0]


def hexf(x):
    return f"0x{fbits(x):08x}"


def srd(p, d, base, nbytes):
    p(f"s_mov_b32 s{d}, s{base}")
    p(f"s_mov_b32 s{d+1}, s{base+1}")
    p(f"s_mov_b32 s{d+2}, {nbytes}")
    p(f"s_mov_b32 s{d+3}, 0x00020000")


def R(n):
    return f"s[{n}:{n+3}]"


def probe(p, i, pset=0):
    if OPT['stamps'] and OPT.get('pset', 0) == pset:
        p(f"s_memtime s[{64+2*i}:{65+2*i}]")


def stamp_begin(p):
    if OPT['stamps']:
        p("s_memrealtime s[90:91]")
        for i in range(NPROBE):
            p(f"s_mov_b32 s{64+2*i}, 0")
        p("s_memtime s[88:89]")


def stamp_end(p, vtmp):
    if OPT['stamps']:
        p.wait_all_vm()
        p("s_memrealtime s[92:93]")
        p("s_memtime s[86:87]")
        p.wait_lgkm()
        p(f"v_mov_b32 v{vtmp}, s90")
        p(f"v_mov_b32 v{vtmp+1}, s92")
        p(f"v_lshrrev_b32 v{vtmp+2}, 6, v0")
        p(f"v_lshlrev_b32 v{vtmp+2}, 3, v{vtmp+2}")
        p(f"s_lshl_b32 s94, s2, 6")
        p(f"s_add_u32 s94, s94, {ST_OFF}")
        p(f"v_and_b32 v{vtmp+3}, 63, v0")
        p(f"v_cmp_eq_u32 vcc, 0, v{vtmp+3}")
        p("s_and_saveexec_b64 s[96:97], vcc")
        p(f"buffer_store_dwordx2 v[{vtmp}:{vtmp+1}], v{vtmp+2}, {R(R_WS)}, s94 offen")
        p(f"v_lshlrev_b32 v{vtmp+2}, 3, v{vtmp+2}")
        p(f"s_lshl_b32 s94, s2, 9")
        p(f"s_add_u32 s94, s94, {PR_OFF}")
        for i in range(NPROBE):
            p(f"s_sub_u32 s95, s{64+2*i}, s88")
            p(f"v_mov_b32 v{vtmp}, s95")
            p(f"buffer_store_dword v{vtmp}, v{vtmp+2}, {R(R_WS)}, s94 offen offset:{4*i}")
        p("s_mov_b64 exec, s[96:97]")


class Ctx:
    def __init__(self, role):
        self.role = role
        self.tail = []
        self.n = 0

    def await_flags(self, vflag, vaddr, delta, srdn=R_WS, soff=None, nonce=False):
        self.n += 1
        lab = f"{self.role}_AW{self.n}"
        so = "0" if soff is None else f"s{soff}"
        ld = f"buffer_load_dword v{vflag}, v{vaddr}, {R(srdn)}, {so} offen sc1"
        a_ = Prog()
        a_(ld)
        c = Prog()

        def cmp_(q):
            if nonce:
                q(f"v_cmp_eq_u32 vcc, 0, v{vflag}")
            else:
                q(f"v_subrev_u32 v{vflag}, s{S_NONCE}, v{vflag}")
                if delta:
                    q(f"v_subrev_u32 v{vflag}, {delta}, v{vflag}")
                q(f"v_cmp_lt_u32 vcc, {2 - delta}, v{vflag}")
        cmp_(c)
        c("s_nop 1")
        c(f"s_cbranch_vccnz {lab}_SPIN")
        c(f"{lab}_OK:")
        if nonce:
            c(f"v_readfirstlane_b32 s{S_NONCE}, v{vflag}")
        elif OPT['acq']:
            c("buffer_inv sc1")
        t = Prog()
        t(f"s_mov_b32 s101, {OPT['spin_limit']}")
        t(f"{lab}_L:")
        t(ld)
        t("s_sub_u32 s101, s101, 1")
        t("s_waitcnt vmcnt(0)")
        cmp_(t)
        t("s_cmp_eq_u32 s101, 0")
        t(f"s_cbranch_scc1 {lab}_OK")
        t("s_nop 1")
        t(f"s_cbranch_vccnz {lab}_L")
        t(f"s_branch {lab}_OK")
        self.tail += [f"{lab}_SPIN:"] + finalize(t.items)
        return a_.items, c.items

    def set_flag(self, delta, vt):
        q = Prog()
        q(f"s_add_u32 s100, s{S_NONCE}, {delta}")
        q(f"v_mov_b32 v{vt}, s100")
        q(f"s_cmp_eq_u32 s{S_W}, 0")
        q(f"s_cselect_b32 s100, 0, 0x7ffffff0")
        q(f"v_mov_b32 v{vt+1}, s100")
        q(f"s_lshl_b32 s100, s2, 7")
        q("s_mov_b64 exec, 1")
        q(f"buffer_store_dword v{vt}, v{vt+1}, {R(R_WS)}, s100 offen sc1")
        q("s_mov_b64 exec, -1")
        return q.items


V_C, V_RS = 4, 6
AD, VM, VH, DV, XV, XR, XP = 8, 14, 15, 16, 20, 24, 32
WF = 20
ST4, WTL, CSL, DD, XT, MM, FF = 44, 48, 64, 80, 96, 112, 128
STA, ONE, SGN, RDA, TMP = 192, 208, 210, 211, 212
VWT = 3
S_ROT = 3
WX = 7 * 16384


def slot(idx):
    return (idx % 9) * 16384


def kblock(q, st, mul, base, extra=0):
    if not OPT['rot']:
        q(f"s_add_u32 s55, s{base}, {st*mul + extra}")
        return
    q(f"s_add_u32 s55, s{S_ROT}, {st}")
    q("s_and_b32 s55, s55, 7")
    q(f"s_mul_i32 s55, s55, {mul}")
    q(f"s_add_u32 s55, s55, s{base}")
    if extra:
        q(f"s_add_u32 s55, s55, {extra}")


def w_dma(chunk, ks):
    U = []
    for k in range(4):
        q = Prog()
        if k == 0:
            q(f"s_add_u32 m0, s53, {slot(8 + chunk*8 + ks)}")
            kblock(q, ks, 64*3584, 52, chunk*128)
        q(f"buffer_load_dwordx4 v{DV+k}, {R(R_WG if k < 2 else R_WU)}, s55 offen offset:{k*1024} lds", tag=('W', chunk, ks))
        U.append(q.items)
    return U


def phase1(cx, p):
    gemm = cx.role == 'G'
    t0, t1, t2, t3, t4, t5, t6, t7 = range(XT, XT + 8)
    p(f"s_and_b32 s{S_MT}, s{S_X}, 3")
    p(f"s_lshl_b32 s{S_MT}, s{S_MT}, 2")
    p(f"s_and_b32 s52, s{S_IDX}, 3")
    p(f"s_add_u32 s{S_MT}, s{S_MT}, s52")
    p(f"s_lshr_b32 s53, s{S_IDX}, 2")
    if OPT['rot']:
        p("s_lshl_b32 s52, s52, 1")
        p(f"s_add_u32 s{S_ROT}, s52, s53")
        p(f"s_and_b32 s{S_ROT}, s{S_ROT}, 7")
    p(f"s_lshr_b32 s{S_NT}, s{S_X}, 2")
    if gemm:
        p(f"s_mul_i32 s{S_NT}, s{S_NT}, 7")
        p(f"s_add_u32 s{S_NT}, s{S_NT}, s53")
    else:
        p(f"s_add_u32 s{S_NT}, s{S_NT}, 14")
    p(f"s_lshl_b32 s{S_G}, s{S_MT}, 2")
    p(f"s_add_u32 s{S_G}, s{S_G}, s{S_W}")
    p("v_and_b32 v1, 63, v0")
    p("v_lshlrev_b32 v2, 4, v1")
    p(f"v_lshrrev_b32 v{t0}, 3, v1")
    p(f"v_and_b32 v{t1}, 7, v1")
    p(f"v_lshrrev_b32 v{t2}, 4, v1")
    p(f"v_xor_b32 v{t1}, v{t1}, v{t2}")
    p(f"v_lshlrev_b32 v{t3}, 16, v{t0}")
    p(f"v_lshl_add_u32 v{XV}, v{t1}, 4, v{t3}")
    p(f"v_xor_b32 v{t1}, 4, v{t1}")
    p(f"v_lshl_add_u32 v{XV+1}, v{t1}, 4, v{t3}")
    p(f"v_add_u32 v{XV+1}, {8*65536-1024}, v{XV+1}")
    p(f"v_add_u32 v{XV+2}, {16*65536-2048}, v{XV}")
    p(f"v_add_u32 v{XV+3}, {16*65536-2048}, v{XV+1}")
    p(f"s_lshl_b32 s53, s{S_W}, 12")
    p(f"s_lshl_b32 s54, s{S_G}, 10")
    p("s_waitcnt lgkmcnt(0)")
    srd(p, R_XX, 4, 2097152)
    srd(p, R_WS, 6, WS_USED)
    srd(p, R_DBG, 14, 256)
    p("s_load_dwordx4 s[4:7], s[0:1], 48")
    lab = cx.role + "_NONCE"
    if not gemm:
        p("s_lshl_b32 s57, s2, 2")
        p("s_add_u32 s57, s57, s18")
        p("s_cmp_lg_u32 s57, 896")
        p(f"s_cbranch_scc1 {lab}_A")
        t = Prog()
        t(f"v_lshlrev_b32 v{t4}, 7, v1")
        for k in range(4):
            t(f"s_mov_b32 s56, {FL_OFF + k*8192}")
            t(f"buffer_load_dword v{TMP+k}, v{t4}, {R(R_WS)}, s56 offen sc1")
        for l in finalize(t.items):
            p.items.append(Marker('raw', l))
        p(f"{lab}_A:")
    units = []
    for ks in range(8):
        for z in range(4):
            q = Prog()
            if z == 0:
                q(f"s_add_u32 m0, s53, {slot(ks)}")
                kblock(q, ks, 128, 54)
            q(f"buffer_load_dwordx4 v{XV+z}, {R(R_XX)}, s55 offen offset:{z*1024} lds", tag=('X', ks))
            units.append(q.items)
    for u in units[:OPT['x_burst']]:
        p.add(u)
    units = units[OPT['x_burst']:]
    probe(p, 0)
    S0, S1 = DD, DD + 8
    fgen = Prog()
    fgen(f"v_and_b32 v{VM}, 31, v1")
    fgen(f"v_lshrrev_b32 v{VH}, 5, v1")
    fgen(f"v_and_b32 v{t2}, 1, v1")
    fgen(f"v_lshrrev_b32 v{t3}, 1, v{VM}")
    fgen(f"s_lshl_b32 s62, s{S_NT}, 4")
    fgen(f"v_add3_u32 v{t3}, s62, v{t3}, 1")
    fgen(f"v_lshlrev_b32 v{SGN}, 31, v{t3}")
    fgen(f"v_or_b32 v{SGN}, 1.0, v{SGN}")
    fgen(f"v_cvt_f32_u32 v{t5}, v{t2}")
    fgen(f"v_cvt_f32_u32 v{t3}, v{t3}")
    fgen(f"v_mul_f32 v{t3}, {hexf(1/512)}, v{t3}")
    fgen(f"v_mul_f32 v{t5}, {hexf(-0.25)}, v{t5}")
    fgen(f"v_add_f32 v{t5}, {hexf(0.25)}, v{t5}")
    if OPT['rot']:
        fgen(f"s_add_u32 s62, s{S_ROT}, s{S_W}")
        fgen("s_lshl_b32 s62, s62, 6")
    else:
        fgen(f"s_lshl_b32 s62, s{S_W}, 6")
    fgen(f"v_lshl_add_u32 v{t4}, v{VH}, 3, s62")
    fgen(f"v_cvt_f32_u32 v{t4}, v{t4}")
    fgen(f"v_fma_f32 v{S0}, -v{t4}, v{t3}, v{t5}")
    fgen(f"v_mul_f32 v{t4}, {hexf(16.0)}, v{t3}")
    fgen(f"v_sub_f32 v{t5}, {hexf(0.25)}, v{t4}")
    fgen(f"v_sin_f32 v{t5}, v{t5}")
    for i in range(1, 8):
        fgen(f"v_sub_f32 v{S0+i}, v{S0+i-1}, v{t3}")
    for i in range(8):
        fgen(f"v_sub_f32 v{S1+i}, v{S0+i}, v{t4}")
    fgen(f"v_add_f32 v{t5}, v{t5}, v{t5}")
    for i in range(16):
        fgen(f"v_sin_f32 v{S0+i}, v{S0+i}")
    fgen(f"v_add_u32 v{t6}, s53, v2")
    fgen(f"v_add_u32 v{t6}, {MISC}, v{t6}")
    for t in range(4):
        cur = S0 if t % 2 == 0 else S1
        oth = S1 if t % 2 == 0 else S0
        if t >= 2:
            for i in range(0, 8, 2):
                fgen(f"v_pk_fma_f32 {v(cur+i,2)}, {v(t5-1,2)}, {v(oth+i,2)}, {v(cur+i,2)} op_sel:[1,0,0] op_sel_hi:[1,1,1] neg_lo:[0,0,1] neg_hi:[0,0,1]")
        for i in range(4):
            fgen(f"v_cvt_pk_bf16_f32 v{FF+4*t+i}, v{cur+2*i}, v{cur+2*i+1}")
        fgen(f"ds_write_b128 v{t6}, {v(FF+4*t,4)} offset:{t*1024}")
    svc = Prog()
    svc(f"v_bfe_u32 v{t3}, v1, 1, 3")
    svc(f"v_xor_b32 v{t3}, v{t3}, v{VH}")
    svc(f"v_lshl_add_u32 v{t4}, v{VM}, 7, s53")
    for tp in range(4):
        svc(f"v_xor_b32 v{t5}, {2*tp}, v{t3}")
        svc(f"v_lshl_add_u32 v{XR+tp}, v{t5}, 4, v{t4}")
        svc(f"v_add_u32 v{XR+4+tp}, 0x10000, v{XR+tp}")
        if gemm:
            svc(f"v_xor_b32 v{XP+tp}, 0x1000, v{XR+tp}")
            svc(f"v_xor_b32 v{XP+4+tp}, 0x1000, v{XR+4+tp}")
    svc(f"v_mov_b32 v{ONE}, 0x3f803f80")
    svc(f"v_mov_b32 v{ONE+1}, 0x3f803f80")
    svc(f"v_add_u32 v{t6}, {MISC}, v2")
    u0, u2 = TMP + 18, 41
    small = []
    if gemm:
        srd(svc, R_WG, 12, 512*1792*2)
        svc(f"s_sub_u32 s{R_WU}, s58, 2048")
        svc(f"s_subb_u32 s{R_WU+1}, s59, 0")
        svc(f"s_mov_b32 s{R_WU+2}, {512*1792*2 + 2048}")
        svc(f"s_mov_b32 s{R_WU+3}, 0x00020000")
        svc(f"v_and_b32 v{t1}, 7, v1")
        svc(f"v_mul_u32_u24 v{t3}, 3584, v{t0}")
        svc(f"v_and_b32 v{t2}, 2, v{t0}")
        svc(f"v_xor_b32 v{t1}, v{t1}, v{t2}")
        svc(f"v_lshl_add_u32 v{DV}, v{t1}, 4, v{t3}")
        svc(f"v_xor_b32 v{DV+2}, 64, v{DV}")
        svc(f"v_add_u32 v{DV+1}, {8*3584-1024}, v{DV}")
        svc(f"v_add_u32 v{DV+3}, {8*3584-1024}, v{DV+2}")
        svc(f"s_mul_i32 s52, s{S_W}, {16*3584}")
        svc(f"s_lshl_b32 s56, s{S_NT}, 8")
        svc("s_add_u32 s52, s52, s56")
    svc.wait_lgkm()
    svc("s_barrier")
    for t in range(16):
        svc(f"ds_read_b128 {v(FF+4*t,4)}, v{t6} offset:{t*1024}")
    nsetup = len(svc.items)
    P_ = DD
    svc(f"v_bfe_u32 v{t3}, v1, 2, 1")
    svc(f"v_bfe_u32 v{t4}, v1, 3, 2")
    svc(f"v_lshlrev_b32 v{t4}, 2, v{t4}")
    svc(f"v_lshl_add_u32 v{t3}, v{t3}, 4, v{t4}")
    svc(f"v_and_or_b32 v{t3}, v1, 3, v{t3}")
    svc(f"v_cvt_f32_u32 v{t3}, v{t3}")
    svc(f"v_lshl_add_u32 v{t4}, v{VH}, 8, s{S_G}")
    svc(f"v_cvt_f32_u32 v{t4}, v{t4}")
    svc(f"v_mul_f32 v{t4}, {hexf(1/64)}, v{t4}")
    svc(f"v_mul_f32 v{t3}, {hexf(1/32)}, v{t3}")
    svc(f"v_mul_f32 v{P_+1}, v{t4}, v{t3}")
    svc(f"v_mul_f32 v{t5}, {hexf(8.0)}, v{t3}")
    svc(f"v_add_f32 v{P_+3}, v{P_+1}, v{t3}")
    svc(f"v_add_f32 v{P_+9}, v{P_+1}, v{t5}")
    svc(f"v_add_f32 v{P_+11}, v{P_+3}, v{t5}")
    svc(f"v_cos_f32 v{t4}, v{t3}")
    svc(f"v_cos_f32 v{t5}, v{t5}")
    for r in (0, 2, 8, 10):
        svc(f"v_cos_f32 v{P_+r}, v{P_+r+1}")
        svc(f"v_sin_f32 v{P_+r+1}, v{P_+r+1}")
    svc(f"v_pk_add_f32 {v(t4,2)}, {v(t4,2)}, {v(t4,2)}")
    NEG = "neg_lo:[0,0,1] neg_hi:[0,0,1]"
    for r in (4, 12, 6, 14):
        svc(f"v_pk_fma_f32 {v(P_+r,2)}, {v(t4,2)}, {v(P_+r-2,2)}, {v(P_+r-4,2)} op_sel_hi:[0,1,1] {NEG}")
    for t in range(2):
        for cs in range(2):
            for i in range(4):
                svc(f"v_cvt_pk_bf16_f32 v{MM+8*cs+4*t+i}, v{P_+4*i+cs}, v{P_+4*i+2+cs}")
        if t == 0:
            for hh in range(2):
                for r in range(0, 8, 2):
                    svc(f"v_pk_fma_f32 {v(P_+8*hh+r,2)}, {v(t4,2)}, {v(P_+8*(1-hh)+r,2)}, {v(P_+8*hh+r,2)} op_sel:[1,0,0] op_sel_hi:[1,1,1] {NEG}")
    if gemm:
        svc(f"v_bfe_u32 v{t3}, v1, 2, 2")
        svc(f"v_bfe_u32 v{t5}, v1, 4, 1")
        svc(f"v_lshl_add_u32 v{t6+1}, v{VH}, 3, v{t3}")
        svc(f"v_lshlrev_b32 v{t6+1}, 7, v{t6+1}")
        svc(f"v_lshl_add_u32 v{t6+1}, v{t5}, 11, v{t6+1}")
        svc(f"v_and_b32 v{t2}, 1, v1")
        svc(f"v_and_or_b32 v{t2}, v{t3}, 2, v{t2}")
        svc(f"v_lshl_add_u32 v{t2}, v{t5}, 2, v{t2}")
        svc(f"v_lshl_add_u32 v{t6+1}, v{t2}, 4, v{t6+1}")
        svc(f"v_bfe_u32 v{t4}, v1, 1, 1")
        svc(f"v_lshl_add_u32 v{t6+1}, v{t4}, 3, v{t6+1}")
        svc(f"s_bitreverse_b32 s63, s{S_W}" .replace("s_bitreverse_b32", "s_brev_b32"))
        svc("s_lshr_b32 s63, s63, 25")
        svc(f"v_xor_b32 v{AD}, s63, v{t6+1}")
        svc(f"v_xor_b32 v{AD+1}, 32, v{AD}")
        for k in range(2):
            svc(f"v_add_u32 v{AD+2+k}, 0x10000, v{AD+k}")
            svc(f"v_add_u32 v{AD+4+k}, 0x20000, v{AD+k}")
    w0 = Prog()
    w1_, w2_ = TMP + 19, TMP + 20
    srd(w0, R_WR, 8, 2048*257*2)
    srd(w0, R_WI, 10, 2048*257*2)
    w0(f"s_lshr_b32 s61, s{S_IDX}, 4")
    w0("s_lshl_b32 s61, s61, 2")
    w0(f"s_add_u32 s61, s61, s{S_W}")
    w0(f"v_lshrrev_b32 v{w1_}, 4, v1")
    w0(f"v_mul_u32_u24 v{u0}, 514, v{w1_}")
    w0(f"v_and_b32 v{w2_}, 15, v1")
    w0(f"v_lshl_add_u32 v{u0}, v{w2_}, 2, v{u0}")
    w0(f"s_bfe_u32 s60, s{S_IDX}, 0x10003")
    w0(f"s_lshl_b32 s8, s{S_X}, 1")
    w0("s_add_u32 s60, s60, s8")
    w0(f"s_and_b32 s8, s{S_IDX}, 7")
    w0("s_lshl_b32 s60, s60, 3")
    w0("s_add_u32 s8, s8, s60")
    w0("s_lshl_b32 s23, s8, 6")
    w0("s_lshl_b32 s9, s61, 18")
    w0("s_add_u32 s23, s23, s9")
    w0(f"s_add_u32 s23, s23, {WT_OFF}")
    w0("s_mul_i32 s60, s60, 3")
    w0("s_add_u32 s8, s8, s60")
    w0("s_mul_i32 s8, s8, 2056")
    w0("s_lshl_b32 s61, s61, 6")
    w0("s_add_u32 s8, s8, s61")
    svc.add(w0)
    wl = []
    for e in range(4):
        for c in range(2):
            q = Prog()
            if e and c == 0:
                q("s_add_u32 s8, s8, 16448")
            q(f"buffer_load_dword v{WTL+4+c*8+e}, v{u0}, {R(R_WR if c == 0 else R_WI)}, s8 offen offset:2")
            wl.append(q.items)
    w0 = Prog()
    w0(f"s_add_u32 s9, s53, {M_YX}")
    w0(f"v_lshl_add_u32 v{w2_}, v{w2_}, 7, s9")
    w0(f"v_and_b32 v{u0}, 7, v1")
    w0(f"v_xor_b32 v{w1_}, v{w1_}, v{u0}")
    w0(f"v_lshl_add_u32 v{w1_}, v{w1_}, 4, v{w2_}")
    w0(f"v_xor_b32 v{w2_}, 64, v{w1_}")
    w0(f"v_lshrrev_b32 v{VWT}, 2, v1")
    w0(f"v_lshlrev_b32 v{VWT}, 13, v{VWT}")
    w0(f"v_and_b32 v{u0}, 3, v1")
    w0(f"v_lshl_add_u32 v{VWT}, v{u0}, 4, v{VWT}")
    w0("s_mov_b32 s10, 0x05040100")
    w0("s_mov_b32 s11, 0x07060302")
    w0(f"s_add_u32 s9, s23, {16*8192}")
    w1 = Prog()
    for z in range(2):
        for e in range(4):
            w1(f"v_perm_b32 v{WTL+z*8+e}, v{WTL+12+e}, v{WTL+4+e}, s{10+z}")
        w1(f"ds_write_b128 v{w1_+z}, {v(WTL+z*8,4)}")
    w1(f"ds_read_b128 {v(WTL,4)}, v{RDA}")
    w1(f"ds_read_b128 {v(WTL+8,4)}, v{RDA} offset:1024")
    w1.gap(4)
    w1(f"buffer_store_dwordx4 {v(WTL,4)}, v{VWT}, {R(R_WS)}, s23 offen sc1", tag='Wst')
    w1(f"buffer_store_dwordx4 {v(WTL+8,4)}, v{VWT}, {R(R_WS)}, s9 offen sc1", tag='Wst')
    extra = []
    if OPT['codepf']:
        q2 = Prog()
        q2("s_getpc_b64 s[96:97]")
        q2(f"{cx.role}_PC:")
        q2(f"s_sub_u32 s96, s96, {cx.role}_PC-{NAME}")
        q2("s_subb_u32 s97, s97, 0")
        q2(f"s_mov_b32 s98, CODE_END-{NAME}")
        q2("s_mov_b32 s99, 0x00020000")
        q2(f"s_lshl_b32 s100, s{S_IDX}, 12")
        q2(f"v_lshlrev_b32 v{XT+12}, 4, v0")
        q2(f"buffer_load_dwordx4 v[{TMP+12}:{TMP+15}], v{XT+12}, s[96:99], s100 offen")
        extra = [q2.items]
    if OPT['wpf']:
        for k, base in enumerate((12, 58, 4)[:OPT['wpf']] if OPT['wpf'] < 4 else (4,)):
            q2 = Prog()
            if k == 0:
                q2("s_mul_i32 s100, s2, 7168")
                q2("s_add_u32 s101, s100, 4096")
                q2(f"v_lshlrev_b32 v{XT+12}, 4, v0")
            if base == 4:
                q2.touch("s[4:7]")
            srd(q2, 96, base, 512*1792*2)
            q2(f"buffer_load_dwordx4 v[{TMP+12}:{TMP+15}], v{XT+12}, s[96:99], s100 offen")
            extra.append(q2.items)
            extra.append([I(f"buffer_load_dwordx4 v[{TMP+12}:{TMP+15}], v{XT+12}, s[96:99], s101 offen")])
    wun = (w_dma(0, 0) if gemm else [])
    PER = OPT.get('p1_period', 48)
    if OPT.get('tlb'):
        q2 = Prog()
        q2(f"v_lshlrev_b32 v{XT+11}, 18, v1")
        q2(f"buffer_load_dword v{TMP+12}, v{XT+11}, {R(R_WS)}, 0 offen offset:64 sc1")
        q2.touch("s[4:7]")
        srd(q2, 96, 6, 2097152)
        q2(f"v_lshlrev_b32 v{XT+11}, 15, v1")
        q2(f"buffer_load_dword v{TMP+12}, v{XT+11}, s[96:99], 0 offen sc1")
        extra.append(q2.items)
    kx = OPT.get('wpf_pos', 0)
    mer, left = spread(fgen.items + svc.items[:nsetup], units[:kx] + extra + units[kx:], PER)
    p.add(mer)
    NYOUNG = sum(1 for x in p.items if isinstance(x, I) and x.kind == 'vmem')
    if not gemm:
        p("s_cmp_lg_u32 s57, 896")
        p(f"s_cbranch_scc1 {lab}_B")
        t = Prog()
        t(f"s_waitcnt vmcnt({NYOUNG})")
        t("s_mov_b32 s56, -3")
        t(f"{lab}_L:")
        t("s_add_u32 s56, s56, 4")
        for k in range(4):
            t(f"v_subrev_u32 v{TMP+4+k}, s56, v{TMP+k}")
        t(f"v_min_u32 v{TMP+4}, v{TMP+4}, v{TMP+5}")
        t(f"v_min3_u32 v{TMP+4}, v{TMP+4}, v{TMP+6}, v{TMP+7}")
        t(f"v_cmp_ge_u32 vcc, 3, v{TMP+4}")
        t("s_nop 1")
        t(f"s_cbranch_vccnz {lab}_L")
        t(f"v_mov_b32 v{TMP+8}, s56")
        t(f"v_mov_b32 v{TMP+9}, 0")
        t("s_mov_b64 exec, 1")
        t(f"buffer_store_dword v{TMP+8}, v{TMP+9}, {R(R_DBG)}, 0 offen sc1")
        t("s_mov_b64 exec, -1")
        t("s_nop 1")
        for l in finalize(t.items):
            p.items.append(Marker('raw', l))
        p(f"{lab}_B:")
    probe(p, 0, 2)
    mer, left = spread(svc.items[nsetup:], left + small + wun, PER)
    p.add(mer)
    probe(p, 1)
    probe(p, 1, 2)
    units = [(-1, u) for u in left]
    if gemm:
        for ks in range(1, 8):
            units += [(ks - 1, u) for u in w_dma(0, ks)]
            if ks == 2:
                units += [(0, u) for u in wl]
    else:
        k = sum(1 for _, u in units if u[-1].tag and u[-1].tag[0] == 'X')
        units[k:k] = [(-1, u) for u in wl]

    def xreads(ks):
        q = Prog()
        off = slot(ks)
        for tp in range(4):
            q(f"ds_read_b128 {a(ks*16 + 4*tp, 4)}, v{XR + tp + 4*(off >> 16)} offset:{off & 0xffff}")
        if gemm:
            for tp in range(4):
                q(f"ds_read_b128 {a(128 + ks*16 + 4*tp, 4)}, v{XP + tp + 4*(off >> 16)} offset:{off & 0xffff}")
        return q.items
    NF = TMP + 16
    nq = Prog()
    nq(f"v_mov_b32 v{NF+1}, 0")
    iss, chk_nonce = cx.await_flags(NF, NF + 1, 0, srdn=R_DBG, nonce=True)
    nq.add(iss)
    p.wait_vm(('X', 0))
    if gemm:
        p("s_barrier")
    p.add(xreads(0))
    for ks in range(8):
        probe(p, 2 + ks, 2)
        p.touch(a(ks*16, 16))
        if gemm:
            p.touch(a(128 + ks*16, 16))
        rd = []
        if ks + 1 < 8:
            p.wait_vm(('X', ks + 1))
            if gemm:
                p("s_barrier")
            rd = xreads(ks + 1)
        for tp in range(4):
            t = ks*4 + tp
            d = DD + 16 * (t >> 4)
            p(f"v_mfma_f32_32x32x16_bf16 {v(d,16)}, {a(4*t,4)}, {v(FF+4*(t & 15),4)}, {'0' if t % 16 == 0 else v(d,16)}")
            nrd = -(-len(rd) // (4 - tp))
            p.add(rd[:nrd])
            rd = rd[nrd:]
            for _ in range(1):
                if units and units[0][0] <= ks:
                    p.add(units.pop(0)[1])
            for hf in range(2):
                x_ = a(4*t + 2*hf, 2)
                for k, A_ in enumerate((v(ONE, 2), x_)):
                    r = v(STA + 8*k + 4*hf, 4)
                    p(f"v_mfma_f32_4x4x4_16b_bf16 {r}, {A_}, {x_}, {'0' if t == 0 else r}")
        if ks == OPT['nonce_at']:
            p.add(nq)
    probe(p, 2)
    probe(p, 0, 1)
    a0 = Prog()
    TA, TB_, TC = CSL + 4, CSL + 5, CSL + 6
    a1 = Prog()
    a1(f"v_and_b32 v{ST4+1}, 3, v1")
    for k in range(4):
        a1(f"v_add_f32 v{STA+8+k}, v{STA+8+k}, v{STA+12+k}")
    a1(f"v_add_f32 v{ST4}, v{STA}, v{STA+4}")
    for k in range(1, 4):
        a1(f"v_cmp_eq_u32 vcc, {k}, v{ST4+1}")
        a1(f"v_fma_f32 v{DD+k}, v{DD+16+k}, v{SGN}, v{DD+k}")
        a1(f"v_fma_f32 v{DD+4+k}, v{DD+20+k}, v{SGN}, v{DD+4+k}")
        a1(f"v_cndmask_b32 v{STA+8 if k < 3 else ST4+2}, v{STA+8}, v{STA+8+k}, vcc")
    a1(f"v_mov_b32 v{ST4+1}, v{ST4}")
    a1(f"v_mov_b32 v{ST4+3}, v{ST4+2}")
    a1(f"s_add_u32 s60, s53, {M_ST}")
    a1(f"v_lshl_add_u32 v{TA}, v{VM}, 2, s60")
    a1(f"v_permlane32_swap_b32 v{ST4}, v{ST4+1}")
    a1(f"v_permlane32_swap_b32 v{ST4+2}, v{ST4+3}")
    a1(f"v_add_f32 v{ST4}, v{ST4}, v{ST4+1}")
    a1(f"v_add_f32 v{ST4+2}, v{ST4+2}, v{ST4+3}")
    a1(f"v_mul_f32 v{ST4}, {hexf(1/512)}, v{ST4}")
    a1(f"v_mul_f32 v{ST4+2}, {hexf(1/512)}, v{ST4+2}")
    a1(f"v_fma_f32 v{ST4+2}, -v{ST4}, v{ST4}, v{ST4+2}")
    a1(f"v_max_f32 v{ST4+2}, 0, v{ST4+2}")
    a1(f"v_cvt_pk_bf16_f32 v{ST4}, v{ST4}, v{ST4+2}")
    a1(f"v_and_b32 v{ST4+2}, 0xffff0000, v{ST4}")
    a1(f"v_add_f32 v{ST4+2}, {hexf(1e-5)}, v{ST4+2}")
    a1(f"v_cvt_pk_bf16_f32 v{ST4+2}, v{ST4+2}, v{ST4+2}")
    a1(f"v_and_b32 v{ST4+2}, 0xffff0000, v{ST4+2}")
    a1(f"v_sqrt_f32 v{ST4+2}, v{ST4+2}")
    a1(f"v_lshl_add_u32 v{ST4+3}, v{VH}, 4, s60")
    a1(f"v_cvt_pk_bf16_f32 v{ST4+2}, v{ST4+2}, v{ST4+2}")
    a1(f"v_and_b32 v{V_RS+1}, 0xffff0000, v{ST4+2}")
    a1(f"v_rcp_f32 v{V_RS}, v{V_RS+1}")
    a1(f"v_and_b32 v{ST4}, 0xffff, v{ST4}")
    a1(f"v_or_b32 v{ST4}, v{ST4}, v{V_RS+1}")
    a1(f"ds_write2_b32 v{TA}, v{V_RS}, v{ST4} offset0:0 offset1:32")
    for rq in range(4):
        a1(f"ds_read_b128 {v(STA+4*rq,4)}, v{ST4+3} offset:{rq*32}")
    for r in (0, 4, 8, 9, 10, 11, 12, 13, 14, 15):
        a1(f"v_fma_f32 v{DD+r}, v{DD+16+r}, v{SGN}, v{DD+r}")
    a1.gap(1)
    for r in range(16):
        a1(f"v_mul_f32 v{DD+r}, v{DD+r}, v{STA+r}")
    YB = CSL + 8
    for k in range(8):
        a1(f"v_cvt_pk_bf16_f32 v{YB + k}, v{DD+2*k}, v{DD+2*k+1}")
    PP, QQ = DD, XT
    m1 = Prog()
    for t in range(2):
        m1(f"v_mfma_f32_32x32x16_bf16 {v(PP,16)}, {v(MM+4*t,4)}, {v(YB+4*t,4)}, {'0' if t == 0 else v(PP,16)}")
        m1(f"v_mfma_f32_32x32x16_bf16 {v(QQ,16)}, {v(MM+8+4*t,4)}, {v(YB+4*t,4)}, {'0' if t == 0 else v(QQ,16)}")
    a2 = Prog()
    a2(f"s_add_u32 s62, s53, {M_YX}")
    a2(f"v_lshlrev_b32 v{RDA}, 1, v1")
    a2(f"v_and_b32 v{RDA}, 0x70, v{RDA}")
    a2(f"v_xor_b32 v{RDA}, v{RDA}, v2")
    a2(f"v_add_u32 v{RDA}, s62, v{RDA}")
    a2(f"v_lshlrev_b32 v{ST4+2}, 31, v1")
    a2(f"v_or_b32 v{ST4+2}, 1.0, v{ST4+2}")
    a2(f"v_lshlrev_b32 v{TB_}, 6, v{VM}")
    a2(f"v_lshl_add_u32 v{TB_}, v{VH}, 5, v{TB_}")
    a2(f"v_lshlrev_b32 v{TC}, 3, v1")
    a2(f"v_and_b32 v{TC}, 0x70, v{TC}")
    a2(f"v_xor_b32 v{TB_}, v{TB_}, v{TC}")
    a2(f"v_add_u32 v{TB_}, s62, v{TB_}")
    a2(f"v_xor_b32 v{TC}, 16, v{TB_}")
    a2(f"s_lshl_b32 s60, s{S_NT}, 17")
    a2(f"s_lshl_b32 s61, s{S_G}, 7")
    a2("s_add_u32 s60, s60, s61")
    a2(f"s_add_u32 s60, s60, {Y1_OFF}")
    a2("s_add_u32 s61, s60, 65536")
    for r in range(16):
        a2(f"v_fmac_f32_dpp v{PP+r}, v{QQ+r}, v{ST4+2} quad_perm:[1,0,3,2] row_mask:0xf bank_mask:0xf")
        if r % 8 == 7:
            for k in range(r // 2 - 3, r // 2 + 1):
                a2(f"v_cvt_pk_bf16_f32 v{YB+k}, v{PP+2*k}, v{PP+2*k+1}")
            a2(f"ds_write_b128 v{TB_ + (r >> 3)}, {v(YB+(r >> 3)*4,4)} offset:2048")
    a2(f"ds_read_b128 {v(QQ+8,4)}, v{RDA} offset:2048")
    a2(f"ds_read_b128 {v(QQ+12,4)}, v{RDA} offset:3072")
    a2(f"v_lshrrev_b32 v{TC}, 3, v1")
    a2(f"v_lshlrev_b32 v{TC}, 13, v{TC}")
    a2(f"v_and_b32 v{ST4+3}, 7, v1")
    a2(f"v_lshl_add_u32 v{TC}, v{ST4+3}, 4, v{TC}")
    a2.gap(3)
    a2(f"buffer_store_dwordx4 {v(QQ+8,4)}, v{TC}, {R(R_WS)}, s60 offen sc1", tag='P1st')
    a2(f"buffer_store_dwordx4 {v(QQ+12,4)}, v{TC}, {R(R_WS)}, s61 offen sc1", tag='P1st')
    a3 = Prog()
    if OPT.get('log'):
        print("A units left", len(units))
    return [u for _, u in units], [], a1.items + chk_nonce, m1.items, a2.items, w0.items + w1.items, TA


def gemm_phase(cx, p, left_a, a0, a1, m1, a2, a3, TA):
    ACC = 128
    ET = 64
    RB, RA, RSP = 88, 96, 124

    def reads(j):
        chunk, step, tl = j >> 6, (j >> 1) & 31, j & 1
        off = slot(8 + chunk*8 + (step >> 2)) + (step & 3) * 4096
        ad = AD + tl + 2 * (off >> 16)
        off &= 0xffff
        r = WF + (j % 6) * 4
        return [I(f"ds_read_b64_tr_b16 {v(r,2)}, v{ad} offset:{off}"),
                I(f"ds_read_b64_tr_b16 {v(r+2,2)}, v{ad} offset:{off+512}")]

    def epilogue(n, packed):
        q = Prog()
        G, Uu = ACC + 16*n, ACC + 16*n + 8
        Z = ET + (n & 1) * 8
        PK = ET + 16 + (n & 1) * 4
        RS = V_RS if (n & 1) == 0 else RSP
        if not packed:
            for i in range(8):
                q(f"v_mul_f32 v{G+i}, v{G+i}, v{RS}")
            for i in range(8):
                q(f"v_mul_f32 v{Z+i}, v{G+i}, v{G+i}")
            for i in range(8):
                q(f"v_fma_f32 v{Z+i}, v{Z+i}, v{V_C+1}, v{V_C}")
            for i in range(8):
                q(f"v_mul_f32 v{Z+i}, v{Z+i}, v{G+i}")
            for i in range(8):
                q(f"v_exp_f32 v{Z+i}, v{Z+i}")
                q(f"v_mul_f32 v{G+i}, v{G+i}, v{Uu+i}")
            for i in range(8):
                q(f"v_fma_f32 v{Z+i}, v{Z+i}, v{RS+1}, v{RS+1}")
            for i in range(8):
                q(f"v_rcp_f32 v{Z+i}, v{Z+i}")
            for i in range(8):
                q(f"v_mul_f32 v{G+i}, v{G+i}, v{Z+i}")
        else:
            rs = v(RS, 2)
            for i in range(0, 8, 2):
                q(f"v_pk_mul_f32 {v(G+i,2)}, {v(G+i,2)}, {rs} op_sel_hi:[1,0]")
            for i in range(0, 8, 2):
                q(f"v_pk_mul_f32 {v(Z+i,2)}, {v(G+i,2)}, {v(G+i,2)}")
            for i in range(0, 8, 2):
                q(f"v_pk_fma_f32 {v(Z+i,2)}, {v(Z+i,2)}, {v(V_C,2)}, {v(V_C,2)} op_sel:[0,1,0] op_sel_hi:[1,1,0]")
            for i in range(0, 8, 2):
                q(f"v_pk_mul_f32 {v(Z+i,2)}, {v(Z+i,2)}, {v(G+i,2)}")
            for i in range(8):
                q(f"v_exp_f32 v{Z+i}, v{Z+i}")
                if i % 2 == 0:
                    q(f"v_pk_mul_f32 {v(G+i,2)}, {v(G+i,2)}, {v(Uu+i,2)}")
            for i in range(0, 8, 2):
                q(f"v_pk_fma_f32 {v(Z+i,2)}, {v(Z+i,2)}, {rs}, {rs} op_sel:[0,1,1] op_sel_hi:[1,1,1]")
            for i in range(8):
                q(f"v_rcp_f32 v{Z+i}, v{Z+i}")
            for i in range(0, 8, 2):
                q(f"v_pk_mul_f32 {v(G+i,2)}, {v(G+i,2)}, {v(Z+i,2)}")
        for i in range(4):
            q(f"v_cvt_pk_bf16_f32 v{PK+i}, v{G+2*i}, v{G+2*i+1}")
        so = 56 + (n & 1) * 2 + (n >> 2)
        q(f"buffer_store_dwordx4 {v(PK,4)}, v{HV + ((n >> 1) & 1)}, {R(R_WS)}, s{so} offen sc1", tag='Hst')
        return q.items

    GA, ON2, CA, HV, CP = 112, 114, 116, 126, 104
    b0 = Prog()
    b0(f"v_mov_b32 v{ON2}, 0x3f803f80")
    b0(f"v_mov_b32 v{ON2+1}, 0x3f803f80")
    b1 = Prog()
    b1(f"v_xor_b32 v{TA}, 0x1000, v{TA}")
    b1(f"ds_read2_b32 {v(RSP,2)}, v{TA} offset0:0 offset1:32")
    b1("v_cmp_gt_u32 vcc, 32, v1")
    for k in range(2):
        if k:
            b1.gap(3)
        src = ST4 if k == 0 else RSP + 1
        r = RB + 4*k
        b1(f"v_mov_b32 v{r+2}, 0")
        b1(f"v_mov_b32 v{r+3}, 0")
        b1(f"v_and_b32 v{r}, 0xffff, v{src}")
        b1(f"v_xor_b32 v{r}, 0x8000, v{r}")
        b1(f"v_cndmask_b32 v{r+1}, 0, v{r}, vcc")
        b1(f"v_lshl_or_b32 v{r}, v{r+1}, 16, v{r+1}")
    b1(f"v_and_b32 v{RSP+1}, 0xffff0000, v{RSP+1}")
    b1("s_lshl_b32 s60, s63, 5")
    b1(f"v_add_u32 v{HV}, s60, v2")
    b1(f"v_xor_b32 v{HV+1}, 1024, v{HV}")
    b1(f"s_add_u32 s60, s53, {CSX}")
    b1(f"v_lshl_add_u32 v{GA}, v{VM}, 2, s60")
    b1(f"v_xor_b32 v{GA+1}, 0x2000, v{GA}")
    for k in range(2):
        b1(f"v_mov_b32 v{RA+4*k+2}, 0")
        b1(f"v_mov_b32 v{RA+4*k+3}, 0")
    for k in range(2):
        b1(f"s_xor_b32 s{56+2*k}, s{S_G}, {k}")
        b1(f"s_mul_i32 s{56+2*k}, s{56+2*k}, 112")
        b1(f"s_lshl_b32 s{57+2*k}, s{S_NT}, 3")
        b1(f"s_add_u32 s{56+2*k}, s{56+2*k}, s{57+2*k}")
        b1(f"s_lshl_b32 s{56+2*k}, s{56+2*k}, 10")
        b1(f"s_add_u32 s{56+2*k}, s{56+2*k}, {H_OFF}")
        b1(f"s_add_u32 s{57+2*k}, s{56+2*k}, 4096")
    def cs_mfma(j):
        r = WF + (j % 6) * 4
        first = (j & 63) == 0
        return [I(f"v_mfma_f32_4x4x4_16b_bf16 {v(CA+4*hf,4)}, {v(ON2,2)}, {v(r+2*hf,2)}, {'0' if first else v(CA+4*hf,4)}")
                for hf in range(2)]

    def cs_fin(ch):
        q = Prog()
        c = CP + 4*ch
        q(f"v_add_f32 v{c}, v{CA}, v{CA+4}")
        q(f"v_mov_b32 v{c+1}, v{c}")
        q("s_nop 1")
        q(f"v_permlane32_swap_b32 v{c}, v{c+1}")
        q(f"v_add_f32 v{c}, v{c}, v{c+1}")
        q(f"ds_write_b32 v{GA}, v{c} offset:{ch*128}")
        return q.items

    def cs_get(ch):
        q = Prog()
        q(f"ds_read_b32 v{CP+4*ch+2}, v{GA+1} offset:{ch*128}")
        q.gap(3)
        return q.items

    def rank1_prep(k):
        q = Prog()
        r = RA + 4 * (k & 1)
        c = CP + 2*k
        q(f"v_and_b32 v{r}, 0xffff0000, v{c}")
        q(f"v_sub_f32 v{c}, v{c}, v{r}")
        q(f"v_and_b32 v{r+1}, 0xffff0000, v{c}")
        q(f"v_sub_f32 v{c}, v{c}, v{r+1}")
        q(f"v_lshrrev_b32 v{r}, 16, v{r}")
        q(f"v_or_b32 v{r}, v{r}, v{r+1}")
        q(f"v_lshrrev_b32 v{r+1}, 16, v{c}")
        return q.items

    def rank1(n):
        r = RA + 4 * ((n >> 1) & 1)
        return I(f"v_mfma_f32_32x32x16_bf16 {v(ACC+16*n,16)}, {v(r,4)}, {v(RB+4*(n&1),4)}, {v(ACC+16*n,16)}")

    seen = set()
    ev = set()
    lastbar = [-100]
    LAF = 4

    def rd_for(j):
        q = Prog()
        key = (j >> 6, (j >> 3) & 7)
        if key not in seen:
            seen.add(key)
            q.wait_vm(('W',) + key)
            q("s_barrier")
            lastbar[0] = 2 * (j - LAF)
            if 'p3' in ev:
                ev.add('p3ok')
        r = reads(j)
        return q.items + r[:1], r[1:]

    def group(f):
        q = Prog()
        f(q)
        return [q.items]

    def publish(tag, delta):
        def f(q):
            q.wait_vm(tag)
            q("s_barrier")
            q.add(cx.set_flag(delta, CSL + 12))
            probe(q, 0, 7)
        return group(f)
    LAF = 4
    for j in range(LAF):
        x_, y_ = rd_for(j)
        p.add(x_ + y_)
    BUD = OPT['gap_budget']
    bar = group(lambda q: q("s_barrier"))
    timed = []
    b0(f"v_mov_b32 v{V_C}, {hexf(C1)}")
    b0(f"v_mov_b32 v{V_C+1}, {hexf(C2)}")
    script = [('fill', a1), ('mfma', m1), ('fill', a2), ('fill', a3), ('mark', 'y'), ('fill', b0.items),
              ('after', ('y', OPT['pub1_gap'])), ('unit', publish('Wst', 1)), ('gap', 1),
              ('fill', b1.items), ('unit', [p3_setup()]), ('ev', 'p3'),
              ('at', 128), ('fill', cs_fin(0) + rank1_prep(0)), ('mfma', [rank1(0), rank1(1)]),
              ('fill', epilogue(0, False)), ('nextbar', None), ('fill', cs_get(0) + rank1_prep(1)), ('mfma', [rank1(2), rank1(3)])]
    marks = {}
    for n in range(1, 4):
        script += [('fill', epilogue(n, False))]
    if OPT.get('serial_y'):
        p.add(a1 + m1 + b0.items + a2 + a3)
        script = script[4:5] + script[6:]
        probe(p, 0, 1)
    units = [((lambda: True), u) for u in left_a]
    for ks in (1, 2, 3, 4, 0, 5, 6, 7):
        cond = (lambda: 'p3ok' in ev) if ks == 0 else ((lambda k=ks: (0, k + 1) in seen) if ks < 7 else (lambda: (1, 0) in seen))
        units += [(cond, u) for u in w_dma(1, ks)]
    for q_ in range(7):
        cond = (lambda k=q_: 'p3ok' in ev and (1, k + 1) in seen)
        units += [(cond, u) for u in wd_units('G', q_)]
    prio_units = []
    fill = []
    last_dsw = -100
    hold = 0
    log = []
    pend = []
    for i in range(256):
        j, rgi = i >> 1, i & 1
        n = (j >> 6) * 4 + (j & 1) * 2 + rgi
        step = (j >> 1) & 31
        gap = Prog()
        if i % 4 == 0:
            p.touch(v(WF + ((j + 1) % 6) * 4, 4))
        c = "0" if step == 0 else v(ACC + 16*n, 16)
        p(f"v_mfma_f32_32x32x16_bf16 {v(ACC+16*n,16)}, {v(WF + (j % 6)*4, 4)}, {a(rgi*128 + step*4,4)}, {c}")
        if rgi == 0:
            if j + LAF < 128:
                x_, pend = rd_for(j + LAF)
                gap.add(x_)
        else:
            gap.add(pend)
            pend = []
        if prio_units:
            gap.add(prio_units.pop(0))
        elif timed and i >= timed[0][0] and i % 2 == 0:
            gap.add(timed.pop(0)[1])
        elif units and i % 2 == 1 and units[0][0]():
            gap.add(units.pop(0)[1])
        cost = sum(x.cost for x in gap.items) + (4 if i % 4 == 3 else 0)
        extra_m = []
        while True:
            while fill and (cost + fill[0].cost <= BUD or (cost <= 8 and fill[0].cost > 8)) and i >= hold:
                if isinstance(fill[0], Marker) and fill[0].kind == 'gap':
                    hold = i + 1 + fill.pop(0).arg
                    continue
                cost += fill[0].cost
                if isinstance(fill[0], I) and fill[0].op.startswith('ds_write'):
                    last_dsw = i
                gap.add([fill.pop(0)])
            if fill or not script or prio_units:
                break
            kind, pay = script[0]
            if kind == 'at' and i + 1 < pay:
                break
            if kind == 'since' and i < last_dsw + pay:
                break
            if kind == 'after' and i < marks.get(pay[0], 0) + pay[1]:
                break
            if kind == 'nextbar' and not (lastbar[0] >= last_dsw + 10):
                break
            if kind == 'mark':
                marks[pay] = i
            script.pop(0)
            log.append((i, kind))
            if kind == 'fill':
                fill = list(pay)
            elif kind == 'mfma':
                extra_m = pay
                break
            elif kind == 'unit':
                prio_units = list(pay)
            elif kind == 'gap':
                script.insert(0, ('at', i + 1 + pay))
            elif kind == 'ev':
                ev.add(pay)
        p.add(gap)
        if rgi == 1 and (j & 1) == 0:
            p.add(cs_mfma(j))
        p.add(extra_m)
        if i in (127,):
            probe(p, 3)
        if i % 16 == 15 and i < 160:
            probe(p, 1 + i // 16, 1)
        z0, zs = OPT.get('zoom', (28, 2))
        if i >= z0 and (i - z0) % zs == 0 and (i - z0) // zs < 11:
            probe(p, (i - z0) // zs, 5)
    if OPT.get('log'):
        print(log, len(fill), [k for k, _ in script], len(units))
    assert not prio_units and not timed
    probe(p, 4)
    rest = list(fill)
    for kind, pay in script:
        assert kind == 'fill'
        rest += pay
    rest = cs_fin(1) + rank1_prep(2) + [rank1(4), rank1(5)] + rest + epilogue(4, True)
    q = Prog()
    q.wait_lgkm()
    q("s_barrier")
    rest += q.items + cs_get(1) + epilogue(5, True) + rank1_prep(3) + [rank1(6), rank1(7)]
    rest += [I("s_nop 7")] * 0 + epilogue(6, True) + epilogue(7, True)
    p.add(rest)
    probe(p, 5)
    p.wait_vm('Hst')
    p("s_barrier")
    p.add(cx.set_flag(2, 64))
    probe(p, 6)
    return [u for _, u in units] + wd_units('G', 7) + wd_units('G', 8) + wd_units('G', 9)


def fft_tables():
    def bf(x):
        u = np.asarray(x, dtype=np.float32).view(np.uint32)
        return ((u + 0x7fff + ((u >> 16) & 1)) >> 16).astype(np.uint16)
    lane = np.arange(64)
    m, h = lane & 31, lane >> 5
    i = np.arange(8)
    blob = []
    for N, ntile in ((32, 1), (64, 2)):
        fr = {0: [], 1: [], 2: []}
        for tile in range(ntile):
            for st in range(2 * ntile):
                tau, t = st >> 1, st & 1
                k = 32*tau + 16*t + 8*(i[None, :] >> 2) + 4*h[:, None] + (i[None, :] & 3)
                ang = 2*np.pi*(((32*tile + m[:, None]) * k) % N)/N
                fr[0].append(bf(np.cos(ang)))
                fr[1].append(bf(np.sin(ang)))
                fr[2].append(bf(-np.sin(ang)))
        for kind in range(3):
            blob.append(np.concatenate([x.ravel() for x in fr[kind]]).tobytes())
    e = np.arange(4)
    t2 = []
    for tau in range(2):
        for rq in range(4):
            row = 8*rq + 4*h[:, None] + e[None, :]
            ang2 = 2*np.pi*(row * (32*tau + m[:, None]))/2048
            t2 += [np.cos(ang2), np.sin(ang2)]
    T2 = np.concatenate([x.ravel() for x in t2]).astype(np.float32).tobytes()
    return T2 + b"".join(blob[:3]) + bytes(2048) + b"".join(blob[3:])


def fft_phase(cx, p, left, w0, a1, m1, a2, w1):
    for u in left:
        p.add(u)
    p("s_barrier")
    p("s_getpc_b64 s[32:33]")
    p("F_TPC:")
    p("s_add_u32 s32, s32, FFT_TBL-F_TPC")
    p("s_addc_u32 s33, s33, 0")
    p(f"s_mov_b32 s34, {TBL_BYTES}")
    p("s_mov_b32 s35, 0x00020000")
    tb = []
    for k in range(12):
        q = Prog()
        if k == 0:
            q(f"s_add_u32 m0, s53, {L_T2}")
            q("s_mov_b32 s55, s53")
        if k in (4, 8):
            q(f"s_lshl_b32 s55, s{S_W}, 13")
            q(f"s_add_u32 m0, s55, {L_WT + (k-4)*1024}")
            q(f"s_add_u32 s55, s55, {16384 + (k-4)*1024}")
        q(f"buffer_load_dwordx4 v2, s[32:35], s55 offen offset:{(k % 4)*1024} lds", tag='TB')
        tb.append(q.items)
    p.add(a1 + m1 + a2 + w1)
    FDV = 252
    p.add(p3_setup(FDV, 160))
    pre = []
    for q_ in range(4):
        U = wd_units('F', q_, FDV)
        U[0][0] = I(f"s_add_u32 m0, s53, {L_Y + q_*16384}")
        pre += U
    pre = tb + pre
    nb = OPT.get('f_b4', 6)
    for u in pre[:nb]:
        p.add(u)
    p("v_add_u32 v152, 0x10000, v2")
    p(f"s_lshl_b32 s56, s{S_X}, 2")
    p(f"s_add_u32 s56, s56, s{S_IDX}")
    p("s_sub_u32 s56, s56, 28")
    p("s_lshl_b32 s57, s56, 3")
    p(f"s_lshl_b32 s58, s{S_W}, 1")
    p("s_add_u32 s57, s57, s58")
    p("s_lshl_b32 s57, s57, 13")
    p(f"s_add_u32 s58, s57, {Y1_OFF}")
    p(f"s_add_u32 s59, s57, {WT_OFF}")
    p(f"s_lshl_b32 s54, s{S_W}, 14")
    p(f"s_add_u32 s52, s54, {L_Y}")
    p(f"s_add_u32 s54, s54, {L_WT}")
    p("v_add_u32 v6, s54, v2")
    p("v_lshlrev_b32 v3, 7, v0")
    p("v_lshrrev_b32 v4, 3, v1")
    p("v_and_b32 v4, 2, v4")
    p("v_lshlrev_b32 v4, 5, v4")
    p("v_xor_b32 v4, v4, v2")
    p("v_bfe_u32 v12, v1, 2, 2")
    p(f"v_lshl_add_u32 v5, v{VH}, 2, v12")
    p("v_lshlrev_b32 v5, 7, v5")
    p("v_bfe_u32 v11, v1, 4, 1")
    p("v_lshl_add_u32 v5, v11, 5, v5")
    p("v_and_b32 v11, 3, v1")
    p("v_lshl_add_u32 v5, v11, 3, v5")
    p("v_and_b32 v12, 2, v12")
    p("v_lshlrev_b32 v12, 5, v12")
    p("v_xor_b32 v5, v5, v12")
    p("v_add_u32 v5, s52, v5")
    p("v_xor_b32 v12, 64, v5")
    p("v_lshlrev_b32 v7, 2, v14")
    p("v_lshl_add_u32 v8, v15, 8, v7")
    p("v_lshl_add_u32 v7, v15, 11, v7")
    p(f"s_lshl_b32 s60, s{S_W}, 7")
    p(f"s_add_u32 s60, s60, {L_Y}")
    p("v_add_u32 v7, s60, v7")
    p(f"s_add_u32 s60, s53, {L_Y}")
    p("v_add_u32 v8, s60, v8")
    p("v_add_u32 v9, 128, v8")

    p.wait_vm('Wst')
    p("s_barrier")
    p.add(cx.set_flag(1, CSL + 12))
    probe(p, 3)
    for u in pre[nb:]:
        p.add(u)
    AF32, AF64 = 0, 24
    iss, chk = cx.await_flags(11, 3, 1)
    probe(p, 0, 7)
    p.wait_vm('TB')
    p("s_barrier")
    probe(p, 1, 7)
    for k in range(24):
        p(f"ds_read_b128 {a(AF64+4*k,4)}, v152 offset:{L_F64 + k*1024 - 65536}")
    for k in range(6):
        p(f"ds_read_b128 {a(AF32+4*k,4)}, v152 offset:{L_F32 + k*1024 - 65536}")
    p.add(tr_addr(160, 161, 164))
    probe(p, 2, 7)
    p.wait_vm(('D', 7))
    probe(p, 3, 7)
    p.add(iss)
    for step in range(8):
        for Dt in range(2):
            for b in range(2):
                p(f"ds_read_b64_tr_b16 {a(128 + step*8 + Dt*4 + 2*b, 2)}, v{160+Dt} offset:{L_Y + (step >> 1)*16384 + (step & 1)*2048 + b*512 - 16384}")
    p.wait_lgkm()
    probe(p, 4, 7)
    p.add(chk)
    probe(p, 5, 7)
    p("s_barrier")
    probe(p, 4)
    probe(p, 6, 7)
    ACC = [16, 112]
    PK = [80, 176]
    TB, RT, WU = 208, 224, 240
    wdu = []
    for q_ in range(1, OPT.get('f_wd', 1)):
        wdu += wd_units('F', q_, FDV)

    def acc(col, c, tile):
        return ACC[col] + c*32 + tile*16

    def pk(col, c, st):
        return PK[col] + c*16 + st*4

    def lin_dma(vo, lb, sb, name, col):
        U = []
        for k in range(8):
            q = Prog()
            if k % 4 == 0:
                q(f"s_add_u32 m0, s{lb}, {col*8192 + k*1024}")
                q(f"s_add_u32 s55, s{sb}, {col*8192 + k*1024}")
            q(f"buffer_load_dwordx4 v{vo}, {R(R_WS)}, s55 offen offset:{(k % 4)*1024} {OPT['ldf']} lds", tag=(name, col, k // 2))
            U.append(q.items)
        return U

    def y_reads(col, st):
        q = Prog()
        q.wait_vm(('Y', col, st))
        for c in range(2):
            for b in range(2):
                q(f"ds_read_b64_tr_b16 {v(pk(col,c,st)+2*b,2)}, v{5 if c == 0 else 12} offset:{col*8192 + st*2048 + b*1024}")
        return q.items
    units = lin_dma(4, 52, 58, 'Y', 0) + lin_dma(4, 52, 58, 'Y', 1) + lin_dma(2, 54, 59, 'WT', 0) + lin_dma(2, 54, 59, 'WT', 1)
    for u in units[:8]:
        p.add(u)
    for u in units[8:12]:
        p.add(u)
    units = units[12:]

    def mm(d, A, B, first):
        return I(f"v_mfma_f32_32x32x16_bf16 {v(d,16)}, {A}, {B}, {'0' if first else v(d,16)}")

    def f32(kind, t):
        return a(AF32 + kind*8 + t*4, 4)

    def f64(kind, tile, st):
        return a(AF64 + kind*32 + tile*16 + st*4, 4)

    def stage(col, n):
        L = []
        kre, kim = (2, 1) if n >= 3 else (1, 2)
        nst = 2 if n == 4 else 4
        for st, tile in ([(st, tile) for st in range(nst) for tile in range(2)] if n < 4 else [(0, 0), (1, 0), (0, 1), (1, 1)]):
            if True:
                if n == 2:
                    pr = lambda kind, c: (f64(kind, tile, st), v(pk(col, c, st), 4))
                elif n == 3:
                    pr = lambda kind, c: (v(pk(col, c, st), 4), f64(kind, tile, st))
                else:
                    pr = lambda kind, c: (v(pk(col, c, tile*2 + st), 4), f32(kind, st))
                L.append(mm(acc(col, 0, tile), *pr(0, 0), st == 0))
                L.append(mm(acc(col, 1, tile), *pr(0, 1), st == 0))
                L.append(mm(acc(col, 0, tile), *pr(kre, 1), False))
                L.append(mm(acc(col, 1, tile), *pr(kim, 0), False))
        return L

    def xw(col, k):
        g = 32*(k >> 4) + 8*((k & 15) >> 2) + (k & 3)
        return [I(f"ds_write_b32 v7, v{PK[col]+k} offset:{col*32768 + g*512}")]

    def vphase(col, n):
        q = Prog()
        if n == 4:
            for k in range(32):
                q(f"v_cvt_pk_bf16_f32 v{PK[col]+k}, v{acc(col,0,0)+k}, v{acc(col,1,0)+k}")
                if k >= 2:
                    q.add(xw(col, k - 2))
            return q.items + xw(col, 30) + xw(col, 31)

        def rd(k):
            b = TB + (k & 1) * 8
            if n == 2:
                q(f"ds_read_b128 {v(b,4)}, v6 offset:{col*8192 + k*1024}")
            else:
                q(f"ds_read_b128 {v(b,4)}, v2 offset:{L_T2 + k*2048}")
                q(f"ds_read_b128 {v(b+4,4)}, v2 offset:{L_T2 + k*2048 + 1024}")
        rd(0)
        for k in range(8):
            tile, rq = k >> 2, k & 3
            if k + 1 < 8:
                rd(k + 1)
            b = TB + (k & 1) * 8
            xr, xi = acc(col, 0, tile) + 4*rq, acc(col, 1, tile) + 4*rq
            Rr = RT + (k & 1) * 8
            if n == 2:
                for e in range(4):
                    q(f"v_lshlrev_b32 v{WU+e}, 16, v{b+e}")
                    q(f"v_and_b32 v{WU+4+e}, 0xffff0000, v{b+e}")
                cc, ss = WU, WU + 4
            else:
                cc, ss = b, b + 4
            for e in range(4):
                q(f"v_mul_f32 v{Rr+e}, v{xr+e}, v{cc+e}")
                q(f"v_mul_f32 v{Rr+4+e}, v{xi+e}, v{cc+e}")
            for e in range(4):
                q(f"v_fma_f32 v{Rr+e}, -v{xi+e}, v{ss+e}, v{Rr+e}")
                q(f"v_fma_f32 v{Rr+4+e}, v{xr+e}, v{ss+e}, v{Rr+4+e}")
            st, half = tile*2 + (rq >> 1), (rq & 1) * 2
            for c in range(2):
                for e in range(2):
                    q(f"v_cvt_pk_bf16_f32 v{pk(col,c,st)+half+e}, v{Rr+4*c+2*e}, v{Rr+4*c+2*e+1}")
        return q.items
    probe(p, 0, 3)
    S = stage(0, 2)
    S = y_reads(0, 0) + y_reads(0, 1) + S[:8] + y_reads(0, 2) + S[8:16] + y_reads(0, 3) + S[16:24] + y_reads(1, 0) + y_reads(1, 1) + S[24:]
    mer, units = spread(S, units, 40)
    p.add(mer)
    p.add(y_reads(1, 2) + y_reads(1, 3))
    probe(p, 1, 3)
    order = [((1, 2), (0, 2)), ((0, 3), (1, 2)), ((1, 3), (0, 3)), ((0, 4), (1, 3)), ((1, 4), (0, 4))]
    for (sc, sn), (vc, vn) in order:
        if vn == 2:
            p.wait_vm(('WT', vc, 3))
        if (sc, sn) == (1, 3):
            p("s_barrier")
            units = units + wdu
        S, Vv = stage(sc, sn), vphase(vc, vn)
        tot = sum(x.cost for x in Vv)
        bud = max(24, -(-tot // len(S) // 4) * 4)
        mer, left = interleave(S, Vv, budget=bud)
        mer, units = spread(mer + left, units, 64)
        p.add(mer)
        probe(p, 2 + order.index(((sc, sn), (vc, vn))), 3)
    assert not units
    V4 = vphase(1, 4)
    kh = [i for i, x in enumerate(V4) if x.op == 'ds_write_b32'][15] + 1
    O = 16

    def out_half(hf):
        q = Prog()
        for k in range(8):
            r = O + 32*hf + 4*k
            q(f"ds_read2st64_b32 {v(r,2)}, v8 offset0:{64*hf + 2*k} offset1:{64*hf + 2*k+128}")
            q(f"ds_read2st64_b32 {v(r+2,2)}, v9 offset0:{64*hf + 2*k} offset1:{64*hf + 2*k+128}")
        U = []
        for k in range(8):
            u = Prog()
            u(f"s_add_u32 s61, s60, {(32*hf + k)*32768}")
            u(f"buffer_store_dwordx4 {v(O+32*hf+4*k,4)}, v2, {R(R_WS)}, s61 offen sc1", tag='Vst')
            U.append(u.items)
        return q.items, U
    p(f"s_lshl_b32 s60, s{S_W}, 18")
    p("s_lshl_b32 s61, s56, 10")
    p("s_add_u32 s60, s60, s61")
    p(f"s_add_u32 s60, s60, {V_OFF}")
    p.add(V4[:kh])
    probe(p, 5)
    probe(p, 7, 3)
    p.wait_lgkm()
    p("s_barrier")
    rd, st0 = out_half(0)
    mer, st0 = spread(rd + V4[kh:], st0[:OPT.get('v_st0', 4)], 24, phase=100)
    p.add(mer)
    p.wait_lgkm()
    p("s_barrier")
    probe(p, 8, 3)
    rd, st1 = out_half(1)
    p.add(rd)
    for u in st0 + out_half(0)[1][OPT.get('v_st0', 4):] + st1:
        p.add(u)
    probe(p, 9, 3)
    wdu = []
    for q_ in range(4, 9):
        wdu += wd_units('F', q_, FDV)
    nb = OPT.get('f_drain', 8)
    for u in wdu[:nb]:
        p.add(u)
    cx.after_pub = wdu[nb:]
    pub = Prog()
    pub.wait_vm('Vst')
    pub("s_barrier")
    pub.add(cx.set_flag(2, 112))
    cx.pub = pub.items
    probe(p, 6)
    probe(p, 10, 3)
    return []


P3_DV = 44
X_S, X_G = {'G': 16384, 'F': 5*16384}, {'G': 5*16384, 'F': 0}
P3_SLOT = {'G': [k * 16384 for k in (6, 7, 8, 0, 1, 2, 3, 4, 5)] + [MISC],
           'F': [k * 16384 for k in (0, 1, 2, 3)] + [MISC] + [k * 16384 for k in (5, 6, 7, 8, 4)]}
R_WD, R_OUT = R_WR, R_WI
S_WD, S_G0, S_DB = 48, 49, 50
A_V, A_PRE, A_H = 0, 64, 128


def p3_setup(dv=P3_DV, t=84):
    q = Prog()
    q(f"s_and_b32 s60, s{S_IDX}, 3")
    q(f"s_lshl_b32 s61, s{S_X}, 3")
    q("s_lshl_b32 s60, s60, 1")
    q(f"s_add_u32 s{S_G0}, s60, s61")
    q(f"s_lshr_b32 s{S_DB}, s{S_IDX}, 2")
    q(f"v_lshrrev_b32 v{t}, 3, v1")
    q(f"v_and_b32 v{t+1}, 7, v1")
    q(f"v_and_b32 v{t+2}, 2, v{t}")
    q(f"v_lshlrev_b32 v{t+2}, 1, v{t+2}")
    q(f"v_xor_b32 v{t+1}, v{t+1}, v{t+2}")
    q(f"v_lshlrev_b32 v{t}, 10, v{t}")
    q(f"v_lshl_add_u32 v{dv}, v{t+1}, 4, v{t}")
    for k in range(1, 4):
        q(f"v_add_u32 v{dv+k}, {k*(8192-1024)}, v{dv}")
    q(f"s_mul_i32 s{S_WD}, s{S_W}, {28*16*1024}")
    q(f"s_lshl_b32 s60, s{S_DB}, 7")
    q(f"s_add_u32 s{S_WD}, s{S_WD}, s60")
    srd(q, R_WD, 4, 1792*512*2)
    srd(q, R_OUT, 6, 2097152)
    return q.items


def wd_units(role, pair, dv=P3_DV):
    U = []
    for k in range(4):
        q = Prog()
        if k == 0:
            q(f"s_add_u32 m0, s53, {P3_SLOT[role][pair % 10]}")
            q(f"s_add_u32 s55, s{S_WD}, {pair*32*1024}")
        q(f"buffer_load_dwordx4 v{dv+k}, {R(R_WD)}, s55 offen offset:{k*1024} lds", tag=('D', pair*2 + (k >> 1)))
        U.append(q.items)
    return U


def tr_addr(d0, d1, t):
    q = Prog()
    q(f"v_bfe_u32 v{t}, v1, 2, 2")
    q(f"v_lshrrev_b32 v{t+1}, 5, v1")
    q(f"v_lshl_add_u32 v{t+1}, v{t+1}, 3, v{t}")
    q(f"v_lshl_add_u32 v{t+1}, v{t+1}, 7, s53")
    q(f"v_bfe_u32 v{t+2}, v1, 4, 1")
    q(f"v_lshl_add_u32 v{t+1}, v{t+2}, 5, v{t+1}")
    q(f"v_and_b32 v{t+2}, 3, v1")
    q(f"v_lshl_add_u32 v{t+1}, v{t+2}, 3, v{t+1}")
    q(f"v_and_b32 v{t}, 2, v{t}")
    q(f"v_lshlrev_b32 v{t}, 5, v{t}")
    q(f"v_xor_b32 v{d0}, v{t+1}, v{t}")
    if d0 == 160:
        q(f"v_add_u32 v{d0}, 16384, v{d0}")
    q(f"v_xor_b32 v{d1}, 64, v{d0}")
    return q.items


def cgen(dst, S0, T, packed):
    q = Prog()
    S1 = S0 + 8
    d_, j_, th, t8, c2, tmp = T, T + 1, T + 2, T + 3, T + 4, T + 6
    q(f"v_and_b32 v{d_}, 31, v1")
    q(f"s_lshl_b32 s62, s{S_DB}, 6")
    q(f"v_add_u32 v{d_}, s62, v{d_}")
    q(f"v_lshrrev_b32 v{j_}, 5, v1")
    q(f"s_lshl_b32 s62, s{S_W}, 6")
    q(f"v_lshl_add_u32 v{j_}, v{j_}, 2, s62")
    q(f"v_add_u32 v{j_}, 1, v{j_}")
    q("s_movk_i32 s62, 0xc5")
    q(f"v_cmp_eq_u32 s[60:61], s62, v{j_}")
    q(f"v_cvt_f32_u32 v{j_}, v{j_}")
    for Dt in range(2):
        q(f"v_cvt_f32_u32 v{th}, v{d_}")
        q(f"v_mul_f32 v{th}, {hexf(1/512)}, v{th}")
        q(f"v_mul_f32 v{t8}, {hexf(8.0)}, v{th}")
        q(f"v_sub_f32 v{c2}, {hexf(0.25)}, v{t8}")
        q(f"v_sin_f32 v{c2}, v{c2}")
        q(f"v_fma_f32 v{S0+1}, -v{j_}, v{th}, 0")
        for ci in range(1, 4):
            q(f"v_sub_f32 v{S0+2*ci+1}, v{S0+2*ci-1}, v{th}")
        for ci in range(4):
            q(f"v_add_f32 v{S0+2*ci}, {hexf(0.25)}, v{S0+2*ci+1}")
        for i in range(8):
            q(f"v_sub_f32 v{S1+i}, v{S0+i}, v{t8}")
        q(f"v_add_f32 v{c2}, v{c2}, v{c2}")
        for i in range(16):
            q(f"v_sin_f32 v{S0+i}, v{S0+i}")
        for t in range(8):
            cur = S0 if t % 2 == 0 else S1
            oth = S1 if t % 2 == 0 else S0
            if t >= 2:
                for i in range(0, 8, 2 if packed else 1):
                    if packed:
                        q(f"v_pk_fma_f32 {v(cur+i,2)}, {v(c2,2)}, {v(oth+i,2)}, {v(cur+i,2)} op_sel_hi:[0,1,1] neg_lo:[0,0,1] neg_hi:[0,0,1]")
                    else:
                        q(f"v_fma_f32 v{cur+i}, v{c2}, v{oth+i}, -v{cur+i}")
            for i in range(4):
                q(f"v_cvt_pk_bf16_f32 v{dst+Dt*32+4*t+i}, v{cur+2*i}, v{cur+2*i+1}")
        q(f"v_and_b32 v{tmp}, 1, v{d_}")
        q(f"v_lshlrev_b32 v{tmp}, 15, v{tmp}")
        q(f"v_or_b32 v{tmp}, {fbits(0.5) >> 16}, v{tmp}")
        q(f"v_cndmask_b32 v{dst+Dt*32+31}, v{dst+Dt*32+31}, v{tmp}, s[60:61]")
        if Dt == 0:
            q(f"v_add_u32 v{d_}, 32, v{d_}")
    return q.items


def phase3(cx, p, pre_left, dv):
    G = cx.role == 'G'
    SL = P3_SLOT[cx.role]
    XRR, TAD, DV3, EW, ER = 240, 250, 12, 96, 104
    CF, AS, AG, WF3, SV = 16, 112, 176, 80, 16
    SC = 2.0 ** -19

    PRE = A_PRE if G else 128

    def hreg(step, rg):
        r = A_H + (step % 16)*8 + rg*4
        return r if G or r >= 192 else r - 64
    q = Prog()
    if dv != DV3:
        for k in range(4):
            q(f"v_mov_b32 v{DV3+k}, v{dv+k}")
    q("v_and_b32 v248, 31, v1")
    q("v_and_b32 v10, 15, v1")
    q("v_min_u32 v10, 13, v10")
    q("v_cmp_lt_u32 vcc, 6, v10")
    q("v_subrev_u32 v3, 7, v10")
    q(f"s_lshr_b32 s58, s{S_G0}, 2")
    q("v_cndmask_b32 v10, v10, v3, vcc")
    q("v_cndmask_b32 v3, 0, 4, vcc")
    q("v_lshl_add_u32 v10, v10, 5, v3")
    q("s_and_b32 s59, s58, 3")
    q("s_lshl_b32 s59, s59, 3")
    q("s_lshr_b32 s58, s58, 2")
    q("s_add_u32 s58, s58, s59")
    q("v_add_lshl_u32 v10, v10, s58, 7")
    iss, chk = cx.await_flags(3, 10, 2)
    iss2, chk2 = cx.await_flags(4, 9, 2)
    if not G:
        q.add(iss)
    q("v_lshrrev_b32 v249, 5, v1")
    q("v_add_u32 v9, 224, v248")
    q("v_lshlrev_b32 v9, 7, v9")
    q.add(tr_addr(TAD, TAD + 1, 96))
    for k in range(2):
        q(f"v_add_u32 v{TAD+2+k}, 0x10000, v{TAD+k}")
        q(f"v_add_u32 v{TAD+4+k}, 0x20000, v{TAD+k}")

    def wreads(step, dst):
        q = Prog()
        q.wait_vm(('D', step))
        off = SL[(step >> 1) % 10] + (step & 1) * 2048
        for Dt in range(2):
            ad = TAD + Dt + 2 * (off >> 16)
            q(f"ds_read_b64_tr_b16 {dst(Dt*4,2)}, v{ad} offset:{off & 0xffff}")
            q(f"ds_read_b64_tr_b16 {dst(Dt*4+2,2)}, v{ad} offset:{(off & 0xffff)+512}")
        return q.items
    NPRE = 8
    for step in range(NPRE if G else 0):
        q.add(wreads(step, lambda o, n: a(A_PRE + step*8 + o, n)))
    q(f"v_add_u32 v11, {112*1024}, v2")
    q(f"s_mul_i32 s56, s{S_G0}, 112")
    q(f"s_mul_i32 s57, s{S_W}, 28")
    q("s_add_u32 s56, s56, s57")
    q("s_lshl_b32 s56, s56, 10")
    q(f"s_add_u32 s56, s56, {H_OFF}")
    fix = lambda U: [[I(x.text.replace(f"dwordx4 v{dv+k}, ", f"dwordx4 v{DV3+k}, "), x.tag) for x in u]
                     for u in U for k in [int(u[-1].text.split('offset:')[1].split()[0]) // 1024]]
    mer, left = spread(q.items, fix(pre_left) if G else [], 48, phase=24)
    p.add(mer)
    for u in left:
        p.add(u)
    if G:
        p.touch(a(A_PRE, 64))
        p.add(iss)
        for pair in range(10, 10 + OPT.get('g_post', 2)):
            for u in wd_units(cx.role, pair, DV3):
                p.add(u)
    else:
        p.add(cx.pub)
        for u in fix(cx.after_pub):
            p.add(u)
        for pair in range(9, 9 + OPT.get('f_post', 1)):
            for u in wd_units(cx.role, pair, DV3):
                p.add(u)
    q = Prog()
    q(f"s_lshl_b32 s57, s{S_G0}, 15")
    q(f"s_lshl_b32 s58, s{S_W}, 13")
    q("s_add_u32 s57, s57, s58")
    q(f"s_add_u32 s57, s57, {V_OFF}")
    q("v_lshrrev_b32 v6, 3, v0")
    q("v_and_b32 v7, 7, v0")
    q("v_lshlrev_b32 v8, 16, v6")
    q("v_lshl_add_u32 v8, v7, 4, v8")
    q(f"s_lshl_b32 s54, s{S_G0}, 10")
    q(f"s_lshl_b32 s58, s{S_DB}, 7")
    q("s_add_u32 s54, s54, s58")
    setup1 = q.items
    q = Prog()
    q("v_bfe_u32 v110, v1, 1, 2")
    q("v_and_b32 v111, 1, v1")
    q("v_lshl_or_b32 v110, v111, 2, v110")
    q("v_xor_b32 v110, v110, v249")
    q("v_lshl_add_u32 v111, v248, 7, s53")
    for rq in range(4):
        q(f"v_xor_b32 v{EW+rq}, {2*rq}, v110")
        q(f"v_lshl_add_u32 v{EW+rq}, v{EW+rq}, 4, v111")
        q(f"v_add_u32 v{EW+4+rq}, {X_G[cx.role]}, v{EW+rq}")
        q(f"v_add_u32 v{EW+rq}, {X_S[cx.role]}, v{EW+rq}")
    q("v_bfe_u32 v110, v6, 1, 2")
    q("v_and_b32 v111, 1, v6")
    q("v_lshl_or_b32 v110, v111, 2, v110")
    q("v_lshrrev_b32 v111, 2, v7")
    q("v_lshlrev_b32 v111, 14, v111")
    q("v_lshl_add_u32 v111, v6, 7, v111")
    q("v_and_b32 v109, 3, v7")
    for b in range(2):
        q(f"v_lshl_add_u32 v108, v109, 1, {b}")
        q("v_xor_b32 v108, v108, v110")
        q(f"v_lshl_add_u32 v{ER+b}, v108, 4, v111")
        q(f"v_add_u32 v{ER+2+b}, {X_G[cx.role]}, v{ER+b}")
        q(f"v_add_u32 v{ER+b}, {X_S[cx.role]}, v{ER+b}")
    setup2 = q.items
    probe(p, 7)
    p.add(chk)
    probe(p, 8)
    VS = OPT['v_s']

    def tuse(step):
        return 4 * step + (32 if step > VS else 0)
    units = []
    for step in range(28):
        for rg in range(2):
            q = Prog()
            if rg == 0:
                q(f"s_add_u32 s59, s56, {step*1024}")
            q(f"buffer_load_dwordx4 {a(hreg(step, rg),4)}, v{2 if rg == 0 else 11}, {R(R_WS)}, s59 offen {OPT['ld3']}")
            units.append((tuse(step), step - 15, q.items))
    for t in range(8):
        for rg in range(2):
            q = Prog()
            if t == 0 and rg == 0:
                q.add(chk2)
            q(f"s_add_u32 s58, s57, {rg*32768 + t*1024}")
            q(f"buffer_load_dwordx4 {a(A_V + t*8 + rg*4, 4)}, v2, {R(R_WS)}, s58 offen {OPT['ld3']}")
            units.append((4 * (VS + 1) + 4 * t, -1, q.items))
    units.append((4 * (VS + 1) - OPT.get('v_poll', 40), -1, iss2))
    for k in range(2):
        units.append((100 + k, -1, [I(f"buffer_load_dwordx4 {v(XRR+4*k,4)}, v8, {R(R_XX)}, s54 offen offset:{k*1024}")]))
    if True:
        done = {x.tag[1] // 2 for x in p.items if isinstance(x, I) and isinstance(x.tag, tuple) and x.tag[0] == 'D'}
        for pair in range(14):
            if pair not in done:
                units += [(tuse(2*pair - 1) - 4, -1, u) for u in wd_units(cx.role, pair, DV3)]
    units.sort(key=lambda u: u[0])

    def xwrite(accb, ew):
        return [I(f"ds_write_b128 v{ew+rq}, {v(accb + t*16 + 4*rq, 4)} offset:{t*16384}") for t in range(4) for rq in range(4)]

    def xread(er, T, packed):
        q = Prog()
        for w in range(4):
            for rg in range(2):
                for b in range(2):
                    q(f"ds_read_b128 {v(T + w*16 + rg*8 + b*4, 4)}, v{er+b} offset:{rg*32768 + w*4096}")
        s_ = Prog()
        for d_, s0 in ((0, 16), (32, 48), (0, 32)):
            for k in range(0, 16, 2 if packed else 1):
                if packed:
                    s_(f"v_pk_add_f32 {v(T+d_+k,2)}, {v(T+d_+k,2)}, {v(T+s0+k,2)}")
                else:
                    s_(f"v_add_f32 v{T+d_+k}, v{T+d_+k}, v{T+s0+k}")
        return q.items, s_.items

    def pop(step):
        k = next((i for i, u in enumerate(units) if u[1] <= step), None)
        if k is not None:
            p.add(units.pop(k)[2])

    def wsrc(step, Dt):
        return a(PRE + step*8 + Dt*4, 4) if step < NPRE else v(WF3 + (step & 1)*8 + Dt*4, 4)

    def wrd(step):
        return wreads(step, lambda o, n: v(WF3 + (step & 1)*8 + o, n)) if NPRE <= step < 28 else []
    for _ in range(OPT['p3_n0']):
        pop(-1)
    cg = setup1 + cgen(CF, AS, AS + 16, False) + setup2
    k0 = OPT.get('cg_pre', 120)
    p.add(cg[:k0])
    probe(p, 0, 6)
    p.add(wrd(0))
    fill = cg[k0:]
    nm = [0]

    def gapwork(step):
        nm[0] += 1
        cost = 0
        if nm[0] % OPT['p3_per'] == 0 or (units and units[0][0] <= nm[0] + OPT.get('p3_lead', 32)):
            pop(step)
            cost = 16
        while units and units[0][0] <= nm[0] + 8 and units[0][1] <= step:
            pop(step)
        assert not units or units[0][0] > nm[0] + 4, (step, nm, units[0][:2])
        while fill and (cost + fill[0].cost <= 20 or cost == 0):
            it = fill.pop(0)
            cost += it.cost
            p.add([it])
    for step in range(28):
        rd = wrd(step + 1)
        for k in range(4):
            rg, Dt = k >> 1, k & 1
            d = AG + k*16
            p(f"v_mfma_f32_32x32x16_bf16 {v(d,16)}, {wsrc(step, Dt)}, {a(hreg(step,rg),4)}, {'0' if step == 0 else v(d,16)}")
            if k == 0:
                p.add(rd)
            else:
                gapwork(step)
            if k == 0:
                nm[0] += 1
        if step % 3 == 2:
            probe(p, 1 + step // 3, 6)
        if step == VS:
            p.add(fill)
            fill = []
            for t in range(8):
                for k in range(4):
                    rg, Dt = k >> 1, k & 1
                    d = AS + k*16
                    cf = v(CF+Dt*32+4*t, 4)
                    p(f"v_mfma_f32_32x32x16_bf16 {v(d,16)}, {cf}, {a(A_V+t*8+rg*4,4)}, {'0' if t == 0 else v(d,16)}")
                    gapwork(step)
            fill = xwrite(AS, EW)
    while units:
        pop(99)
    p.add(fill)
    probe(p, 10)
    probe(p, 10, 6)
    GT = 112
    un = Prog()
    un(f"v_mov_b32 v248, {hexf(-math.log2(math.e))}")
    un(f"v_mov_b32 v249, {hexf(SC)}")
    for k in range(8):
        un(f"v_lshlrev_b32 v{XUF+2*k}, 16, v{XRR+k}")
        un(f"v_and_b32 v{XUF+2*k+1}, 0xffff0000, v{XRR+k}")
    for k, w_ in enumerate(xwrite(AG, EW + 4)):
        p.add([w_] + un.items[k*18//16:(k+1)*18//16])
    p.wait_lgkm()
    p("s_barrier")
    probe(p, 9)
    rd, sm = xread(ER + 2, GT, True)
    rd2, sm2 = xread(ER, SV, True)
    p.add(rd + rd2[:6] + sm[:8] + rd2[6:] + sm[8:])
    Z = 176
    for k in range(0, 16, 2):
        p(f"v_pk_mul_f32 {v(Z+k,2)}, {v(GT+k,2)}, v[248:249] op_sel_hi:[1,0]")
    for k in range(16):
        p(f"v_exp_f32 v{Z+k}, v{Z+k}")
    p.add(sm2)
    for k in range(0, 16, 2):
        p(f"v_pk_mul_f32 {v(GT+k,2)}, {v(GT+k,2)}, v[248:249] op_sel:[0,1] op_sel_hi:[1,1]")
    for k in range(0, 16, 2):
        p(f"v_pk_mul_f32 {v(GT+k,2)}, {v(GT+k,2)}, {v(SV+k,2)}")
    for k in range(0, 16, 2):
        p(f"v_pk_add_f32 {v(Z+k,2)}, {v(Z+k,2)}, 1.0 op_sel_hi:[1,0]")
    for k in range(16):
        p(f"v_rcp_f32 v{Z+k}, v{Z+k}")
        if k % 8 == 7:
            for m in range(k - 7, k + 1, 2):
                p(f"v_pk_fma_f32 {v(Z+m,2)}, {v(GT+m,2)}, {v(Z+m,2)}, {v(XUF+m,2)}")
            for m in range(k - 7, k + 1, 2):
                p(f"v_cvt_pk_bf16_f32 v{192+m//2}, v{Z+m}, v{Z+m+1}")
            p(f"buffer_store_dwordx4 {v(192 + (k >> 3)*4,4)}, v8, {R(R_OUT)}, s54 offen offset:{(k >> 3)*1024}")


XUF = 80


def program(role):
    cx = Ctx(role)
    p = Prog()
    la, a0, a1, m1, a2, a3, TA = phase1(cx, p)
    if role == 'G':
        left = gemm_phase(cx, p, la, a0, a1, m1, a2, a3, TA)
    else:
        left = fft_phase(cx, p, la, a0, a1, m1, a2, a3)
    phase3(cx, p, left, P3_DV if role == 'G' else 252)
    stamp_end(p, 8)
    p("s_endpgm")
    return finalize(p.items) + cx.tail


HEADER = """; Kernarg layout (80 bytes, ptrs only, base s[0:1]): A_x 0, A_w_r 8, A_w_i 16, B_x 24, w_gate 32, w_up 40,
; One launch, 256 resident workgroups.  Phase 1: row statistics, row DFT, first column-FFT stage, filter re-layout.
; Phase 2: gate/up GEMM + GELU (224 workgroups) or column FFT * filter * inverse FFT (32 workgroups).
; Phase 3: down GEMM + inverse row DFT + silu / combine.   Generated by tools/genf.py
"""


def build():
    out = [HEADER.rstrip()]
    out.append("; @launch grid=(256,1,1) block=(256,1,1) lds=163840")
    out.append('.amdgcn_target "amdgcn-amd-amdhsa--gfx950"')
    out.append(".text")
    out.append(f".globl {NAME}\n.p2align 8\n.type {NAME},@function\n{NAME}:")
    p = Prog()
    p("s_cmp_ge_u32 s2, 256")
    p("s_cbranch_scc1 K_END")
    p("s_load_dwordx2 s[4:5], s[0:1], 0")
    p("s_load_dwordx4 s[8:11], s[0:1], 8")
    p("s_load_dwordx2 s[12:13], s[0:1], 32")
    p("s_load_dwordx2 s[58:59], s[0:1], 40")
    p("s_load_dwordx2 s[14:15], s[0:1], 64")
    p("s_load_dwordx2 s[6:7], s[0:1], 72")
    stamp_begin(p)
    p(f"s_and_b32 s{S_X}, s2, 7")
    p(f"s_lshr_b32 s{S_IDX}, s2, 3")
    p("v_lshrrev_b32 v1, 6, v0")
    p(f"v_readfirstlane_b32 s{S_W}, v1")
    p(f"s_cmp_ge_u32 s{S_IDX}, 28")
    p("s_cbranch_scc0 ROLE_G")
    p("s_branch ROLE_F")
    p("K_END:")
    p("s_endpgm")
    out += finalize(p.items)
    pend = Prog()
    for role in ('G', 'F'):
        out.append(f"ROLE_{role}:")
        out.append("    s_nop 4")
        lines = program(role)
        out += lines
    blob = fft_tables()
    assert len(blob) == TBL_BYTES
    out.append(".p2align 8\n.type FFT_TBL,@object\nFFT_TBL:")
    w = np.frombuffer(blob, dtype=np.uint32)
    for i in range(0, len(w), 8):
        out.append(".long " + ",".join(f"0x{x:x}" for x in w[i:i+8]))
    out.append(f".size FFT_TBL, {TBL_BYTES}")
    out.append("CODE_END:")
    out.append('.section .rodata,"a"')
    out.append(f""".p2align 6
.amdhsa_kernel {NAME}
  .amdhsa_next_free_vgpr 512
  .amdhsa_next_free_sgpr 102
  .amdhsa_accum_offset 256
  .amdhsa_group_segment_fixed_size 0
  .amdhsa_kernarg_size 80
  .amdhsa_user_sgpr_count 2
  .amdhsa_user_sgpr_kernarg_segment_ptr 1
  .amdhsa_system_sgpr_workgroup_id_x 1
.end_amdhsa_kernel""")
    return "\n".join(out) + "\n"


if __name__ == "__main__":
    path = sys.argv[1]
    for kv in sys.argv[2:]:
        k, val = kv.split("=", 1)
        OPT[k] = eval(val)
    open(path, "w").write(build())
```
